```python
import torch

def _softmax(x, axis=-1):
    return torch.softmax(x, dim=axis)
def _gelu(x):
    return torch.nn.functional.gelu(x, approximate="tanh")
def _silu(x):
    return torch.nn.functional.silu(x)
def _sigmoid(x):
    return torch.sigmoid(x)
def _layernorm(x, axis=-1, eps=1e-5):
    m = x.mean(dim=axis, keepdim=True)
    v = x.var(dim=axis, keepdim=True, unbiased=False)
    return (x - m) / torch.sqrt(v + eps)
def _scatter_add(tgt, idx, src, axis=0):
    return tgt.clone().index_add_(axis, idx, src)
def _segment_sum(src, seg, n):
    out = torch.zeros((n,) + src.shape[1:], dtype=src.dtype)
    return out.index_add_(0, seg, src)
def _pad(x, pw):
    flat = tuple(v for pair in reversed(pw) for v in pair)
    return torch.nn.functional.pad(x, flat)

kernel_name = 'standalone__gqa_block_cached__sampling'

def setup_inputs():

    _w = (lambda a: (lambda t: t.to(torch.bfloat16) if t.is_floating_point() else t)(torch.as_tensor(a)))
    B, Sq, D = 8, 4, 512
    Hq, Hkv, Sk, Dh = 32, 8, 2048, 128
    assert Hq % Hkv == 0, (Hq, Hkv)
    return {
        "x": _w((lambda *s: torch.randn(*s, dtype=torch.bfloat16) * 0.8)(B, Sq, D)),
        "k_cache": _w((lambda *s: torch.randn(*s, dtype=torch.bfloat16) * 0.8)(B, Hkv, Sk, Dh)),
        "v_cache": _w((lambda *s: torch.randn(*s, dtype=torch.bfloat16) * 0.05)(B, Hkv, Sk, Dh)),
        "wq": _w((lambda *s: torch.randn(*s, dtype=torch.bfloat16) * 0.8)(D, Hq * Dh) * (D ** -0.5)),
        "wo": _w((lambda *s: torch.randn(*s, dtype=torch.bfloat16) * 0.05)(Hq * Dh, D) * ((Hq * Dh) ** -0.5)),
    }

def reference(x, k_cache, v_cache, wq, wo):
    B, Sq, D = x.shape
    Hq, Dh = 32, 128
    Hkv = k_cache.shape[1]
    rep = Hq // Hkv
    q = (lambda x, *d: x.permute(*d))((x @ wq).reshape(B, Sq, Hq, Dh), 0, 2, 1, 3)
    k = (lambda x, n, axis: torch.repeat_interleave(x, n, dim=axis))(k_cache, rep, axis=1)
    v = (lambda x, n, axis: torch.repeat_interleave(x, n, dim=axis))(v_cache, rep, axis=1)
    scores = torch.einsum("bhqd,bhkd->bhqk", q, k) * (Dh ** -0.5)
    p = _softmax(scores, axis=-1)
    o = torch.einsum("bhqk,bhkd->bhqd", p, v)
    return (lambda x, *d: x.permute(*d))(o, 0, 2, 1, 3).reshape(B, Sq, Hq * Dh) @ wo
```

```python
import sys

KNAME = "standalone__gqa_block_cached__sampling_kernel"

class G:
    def __init__(self):
        self.L = []
        self.nvm = 0
        self.pos = {}
        self.lbl = 0
    def e(self, s):
        for ln in s.strip("\n").split("\n"):
            self.L.append("    " + ln.strip())
    def label(self, name):
        self.L.append(name + ":")
    def newlabel(self, p="L"):
        self.lbl += 1
        return f"{p}_{self.lbl}"
    def vm(self, s, tag=None):
        self.e(s)
        self.nvm += 1
        if tag: self.pos[tag] = self.nvm
    def mark(self, tag):
        self.pos[tag] = self.nvm
    def wait(self, tag):
        n = self.nvm - self.pos[tag]
        assert n <= 63
        self.e(f"s_waitcnt vmcnt({n})")
    def nop(self, n):
        while n > 0:
            k = min(n, 16)
            self.e(f"s_nop {k-1}")
            n -= k
    def text(self):
        return "\n".join(self.L) + "\n"

QWS = 0
STATS = 0x40000
GOW = 0x50000
MSG1 = 0x100000
MSG2 = 0x300000
DBGA = 0x800000
AUX1 = 131072
AUX2 = 147456
MX = AUX2
LS = AUX2 + 512
SCL = AUX2 + 1024
OB = AUX2 + 2048
LDS_TOTAL = 163840

def gen(TH=4, stamps=False, wopol="", spin_limit=200000, wqpol="", early_bar=True):
    g = G()
    e = g.e
    nst = [0]
    def stamp():
        if not stamps: return
        i = nst[0]; nst[0] += 1
        assert i < 15
        e(f"s_memrealtime s[{100}:{101}]\ns_waitcnt lgkmcnt(0)\ns_mov_b32 s{80+i}, s100")
    e("""
    s_cmp_ge_u32 s2, 256
    s_cbranch_scc1 L_done
    s_load_dwordx16 s[64:79], s[0:1], 0
    v_and_b32 v1, 63, v0
    v_lshrrev_b32 v12, 6, v0
    v_and_b32 v2, 15, v0
    v_bfe_u32 v3, v0, 4, 2
    v_readfirstlane_b32 s44, v12
    s_and_b32 s40, s2, 7
    s_lshr_b32 s41, s2, 3
    s_lshr_b32 s42, s41, 2
    s_and_b32 s43, s41, 3
    s_lshl_b32 s45, s42, 3
    s_add_u32 s45, s45, s40
    """)
    e("""
    s_lshl_b32 s46, s45, 2
    s_add_u32 s46, s46, s43
    s_lshl_b32 s46, s46, 17
    s_lshl_b32 s47, s44, 14
    s_add_u32 s46, s46, s47
    s_add_u32 s48, s41, s40
    s_lshr_b32 s50, s44, 2
    s_add_u32 s49, s44, s50
    s_lshr_b32 s50, s41, 2
    s_add_u32 s49, s49, s50
    """)
    for t in range(4):
        e(f"s_add_u32 s50, s48, {t}\ns_and_b32 s50, s50, 3\ns_lshl_b32 s{52+t}, s50, 12")
        e(f"s_add_u32 s50, s49, {t}\ns_and_b32 s50, s50, 3\ns_lshl_b32 s{56+t}, s50, 10")
    e("""
    v_xor_b32 v12, v2, v3
    v_lshlrev_b32 v12, 4, v12
    v_lshl_add_u32 v12, v3, 8, v12
    v_lshlrev_b32 v13, 1, v3
    v_xor_b32 v13, v2, v13
    v_lshlrev_b32 v13, 4, v13
    v_lshl_add_u32 v13, v3, 8, v13
    """)
    for k in range(4):
        e(f"""
        s_lshr_b32 s50, s{56+k}, 4
        v_xor_b32 v{4+k}, s50, v12
        v_add_u32 v{4+k}, s{56+k}, v{4+k}
        s_lshr_b32 s50, s{56+k}, 3
        s_and_b32 s50, s50, 128
        v_xor_b32 v{8+k}, s50, v13
        v_add_u32 v{8+k}, s{56+k}, v{8+k}
        """)
    e("s_waitcnt lgkmcnt(0)")
    def srd(d, p, size):
        e(f"s_mov_b32 s{d}, s{p}\ns_mov_b32 s{d+1}, s{p+1}\ns_mov_b32 s{d+2}, {size}\ns_mov_b32 s{d+3}, 0x00020000")
    srd(8, 64, 32768); srd(12, 66, 0x2000000); srd(16, 68, 0x2000000); srd(20, 70, 0x400000)
    srd(24, 72, 0x400000); srd(28, 74, 32768); srd(32, 76, 256); srd(36, 78, 0x10000000)
    stamp()
    e("""
    v_lshrrev_b32 v14, 1, v1
    v_lshlrev_b32 v14, 13, v14
    v_and_b32 v15, 1, v1
    v_lshl_add_u32 v14, v15, 4, v14
    s_lshl_b32 s50, s44, 19
    s_lshl_b32 s51, s40, 10
    s_add_u32 s50, s50, s51
    s_lshl_b32 s51, s41, 5
    s_add_u32 s50, s50, s51
    s_lshl_b32 s51, s44, 11
    """)
    e(f"s_add_u32 s62, s51, {AUX1}\ns_mov_b32 m0, s62\ns_nop 0")
    g.vm(f"buffer_load_dwordx4 v14, s[20:23], s50 offen {wqpol} lds", "wq0")
    e(f"s_add_u32 s50, s50, 0x40000\ns_add_u32 m0, s62, 1024\ns_nop 0")
    g.vm(f"buffer_load_dwordx4 v14, s[20:23], s50 offen {wqpol} lds", "wq1")
    e("""
    v_lshlrev_b32 v15, 10, v2
    v_lshl_add_u32 v15, v3, 4, v15
    s_lshl_b32 s50, s44, 7
    s_add_u32 s51, s50, 16384
    """)
    XF = 80
    for rt in range(2):
        for d in range(2):
            r = XF + (rt * 2 + d) * 4
            g.vm(f"buffer_load_dwordx4 v[{r}:{r+3}], v15, s[8:11], s{50+rt} offen offset:{d*64} {wqpol}", f"x{rt}{d}")
    if early_bar: e("s_barrier")
    e(f"""
    v_mov_b32 v20, -1
    v_mov_b32 v21, -1
    v_mov_b32 v22, -1
    v_mov_b32 v23, -1
    v_lshlrev_b32 v16, 13, v3
    v_lshl_add_u32 v16, v2, 4, v16
    s_lshl_b32 s50, s45, 15
    s_lshl_b32 s51, s43, 11
    s_add_u32 s50, s50, s51
    s_lshl_b32 s51, s44, 8
    s_add_u32 s50, s50, s51
    s_add_u32 s50, s50, {MSG1}
    v_add_u32 v16, s50, v16
    v_lshrrev_b32 v17, 2, v2
    v_lshlrev_b32 v17, 13, v17
    v_and_b32 v18, 3, v2
    v_lshl_add_u32 v17, v18, 6, v17
    v_lshl_add_u32 v17, v3, 4, v17
    s_lshl_b32 s50, s42, 18
    s_lshl_b32 s51, s44, 15
    s_add_u32 s50, s50, s51
    s_lshl_b32 s51, s40, 2
    s_add_u32 s51, s51, s43
    s_lshl_b32 s63, s51, 8
    s_add_u32 s50, s50, s63
    s_add_u32 s50, s50, {MSG2}
    v_add_u32 v17, s50, v17
    v_and_b32 v18, 7, v1
    v_lshlrev_b32 v18, 4, v18
    s_lshl_b32 s50, s45, 9
    s_lshl_b32 s51, s43, 7
    s_add_u32 s50, s50, s51
    s_add_u32 s50, s50, {STATS}
    s_lshl_b32 s95, s2, 7
    s_add_u32 s95, s95, {GOW}
    v_add_u32 v18, s50, v18
    v_mov_b32 v19, s95
    v_cmp_gt_u32 vcc, 8, v1
    s_nop 1
    v_cndmask_b32 v18, v19, v18, vcc
    """)
    g.vm("buffer_store_dwordx4 v[20:23], v16, s[36:39], 0 offen sc1", "c1")
    g.vm("buffer_store_dwordx4 v[20:23], v17, s[36:39], 0 offen sc1", "c2")
    g.vm("buffer_store_dwordx4 v[20:23], v18, s[36:39], 0 offen sc1", "c3")

    stream = []
    def throttle():
        if len(stream) >= TH:
            g.wait(stream[-TH])
    def kload(i):
        throttle()
        t, k = i // 4, i % 4
        e(f"s_add_u32 s50, s46, s{52+t}\ns_add_u32 s51, s47, s{52+t}\ns_add_u32 m0, s51, s{56+k}\ns_nop 0")
        g.vm(f"buffer_load_dwordx4 v{4+k}, s[12:15], s50 offen nt lds", f"k{i}")
        stream.append(f"k{i}")
    VST = 32
    WOB = 80
    wo_i = [0]
    def woload(n):
        for _ in range(n):
            i = wo_i[0]
            if i >= 32: return
            wo_i[0] += 1
            j, ee = i // 8, i % 8
            r = WOB + 16 * (j + 1) + 2 * ee
            off = (32 * j + ee) * 1024
            e(f"s_add_u32 s50, s97, {off & ~4095}")
            g.vm(f"buffer_load_dwordx2 v[{r}:{r+1}], v19, s[24:27], s50 offen offset:{off & 4095} {wopol}", f"wo{i}")
    def vload(i, nwo=3):
        throttle()
        t, k = i // 4, i % 4
        e(f"s_add_u32 s50, s46, s{52+t}")
        if i < 12:
            r = VST + 4 * i
            g.vm(f"buffer_load_dwordx4 v[{r}:{r+3}], v{8+k}, s[16:19], s50 offen nt", f"v{i}")
        else:
            e(f"s_add_u32 s51, s47, s{52+t}\ns_add_u32 m0, s51, s{56+k}\ns_nop 0")
            g.vm(f"buffer_load_dwordx4 v{8+k}, s[16:19], s50 offen nt lds", f"v{i}")
        stream.append(f"v{i}")
        woload(nwo)

    for i in range(4): kload(i)
    e("""
    v_lshrrev_b32 v24, 2, v2
    v_lshl_add_u32 v24, v3, 3, v24
    v_lshlrev_b32 v24, 5, v24
    v_and_b32 v25, 3, v1
    v_lshl_add_u32 v24, v25, 3, v24
    v_add_u32 v24, s62, v24
    """)
    e(f"v_lshlrev_b32 v25, 4, v1\ns_lshl_b32 s50, s44, 11\ns_add_u32 s50, s50, {AUX2}\nv_add_u32 v25, s50, v25")
    g.wait("x11")
    stamp()
    WF = 96; QA = 104
    for d in range(2):
        e(f"ds_read_b64_tr_b16 v[{WF+4*d}:{WF+4*d+1}], v24 offset:{1024*d}")
        e(f"ds_read_b64_tr_b16 v[{WF+4*d+2}:{WF+4*d+3}], v24 offset:{1024*d+128}")
    e("s_waitcnt lgkmcnt(0)")
    for rt in range(2):
        e(f"v_mfma_f32_16x16x32_bf16 v[{QA+4*rt}:{QA+4*rt+3}], v[{WF}:{WF+3}], v[{XF+8*rt}:{XF+8*rt+3}], 0")
    for rt in range(2):
        e(f"v_mfma_f32_16x16x32_bf16 v[{QA+4*rt}:{QA+4*rt+3}], v[{WF+4}:{WF+7}], v[{XF+8*rt+4}:{XF+8*rt+7}], v[{QA+4*rt}:{QA+4*rt+3}]")
    kload(4)
    g.nop(8)
    e(f"ds_write_b128 v25, v[{QA}:{QA+3}]\nds_write_b128 v25, v[{QA+4}:{QA+7}] offset:1024")
    kload(5)
    g.wait("c3")
    e("s_waitcnt lgkmcnt(0)\ns_barrier")
    stamp()
    lskip = g.newlabel("Lpub")
    e(f"s_cmp_lg_u32 s44, 0\ns_cbranch_scc1 {lskip}")
    e(f"v_lshlrev_b32 v26, 4, v1\nv_add_u32 v26, {AUX2}, v26")
    RT = 112
    e(f"""
    v_lshrrev_b32 v27, 2, v2
    v_lshlrev_b32 v27, 15, v27
    v_and_b32 v28, 3, v2
    v_lshl_add_u32 v27, v28, 8, v27
    v_lshl_add_u32 v27, v3, 3, v27
    s_lshl_b32 s50, s40, 2
    s_lshr_b32 s51, s41, 3
    s_add_u32 s50, s50, s51
    s_lshl_b32 s50, s50, 10
    s_and_b32 s51, s41, 7
    s_lshl_b32 s51, s51, 5
    s_add_u32 s50, s50, s51
    s_add_u32 s51, s50, 0x20000
    """)
    for rt in range(2):
        for w in range(8):
            e(f"ds_read_b128 v[{RT+4*w}:{RT+4*w+3}], v26 offset:{w*2048+rt*1024}")
        e("s_waitcnt lgkmcnt(0)")
        for st in (4, 2, 1):
            for w in range(st):
                a = RT + 4 * w; b = RT + 4 * (w + st)
                e(f"v_pk_add_f32 v[{a}:{a+1}], v[{a}:{a+1}], v[{b}:{b+1}]\nv_pk_add_f32 v[{a+2}:{a+3}], v[{a+2}:{a+3}], v[{b+2}:{b+3}]")
        e(f"v_cvt_pk_bf16_f32 v{28+2*rt}, v{RT}, v{RT+1}\nv_cvt_pk_bf16_f32 v{29+2*rt}, v{RT+2}, v{RT+3}")
        e(f"buffer_store_dwordx2 v[{28+2*rt}:{29+2*rt}], v27, s[36:39], s{50+rt} offen sc1")
    e(f"""
    s_lshl_b32 s50, s40, 5
    v_mov_b32 v26, s50
    v_mov_b32 v27, 1
    s_waitcnt vmcnt(0)
    s_mov_b64 exec, 1
    buffer_atomic_add v27, v26, s[32:35], 0 offen sc0 sc1
    s_mov_b64 exec, -1
    v_lshlrev_b32 v28, 10, v1
    s_lshl_b32 s50, s40, 7
    s_add_u32 s50, s50, {GOW}
    v_mov_b32 v29, 1
    v_mov_b32 v26, 16
    s_waitcnt vmcnt(0)
    v_readfirstlane_b32 s51, v27
    s_nop 3
    s_cmp_lg_u32 s51, 31
    s_cbranch_scc1 {lskip}
    s_mov_b32 exec_lo, -1
    s_mov_b32 exec_hi, 0
    buffer_store_dword v29, v28, s[36:39], s50 offen sc1
    s_mov_b64 exec, 1
    v_mov_b32 v27, 1
    s_nop 0
    buffer_atomic_add v27, v26, s[32:35], 0 offen sc0 sc1
    s_mov_b64 exec, -1
    v_lshlrev_b32 v28, 7, v1
    s_waitcnt vmcnt(0)
    v_readfirstlane_b32 s51, v27
    s_nop 3
    s_cmp_lg_u32 s51, 7
    s_cbranch_scc1 {lskip}
    s_mov_b32 s50, {GOW}
    buffer_store_dword v29, v28, s[36:39], s50 offen offset:4 sc1
    s_add_u32 s50, s50, 8192
    buffer_store_dword v29, v28, s[36:39], s50 offen offset:4 sc1
    s_add_u32 s50, s50, 8192
    buffer_store_dword v29, v28, s[36:39], s50 offen offset:4 sc1
    s_add_u32 s50, s50, 8192
    buffer_store_dword v29, v28, s[36:39], s50 offen offset:4 sc1
    """)
    g.label(lskip)
    stamp()
    e(f"""
    v_mov_b32 v18, 0
    v_lshlrev_b32 v19, 13, v3
    v_lshl_add_u32 v19, v2, 3, v19
    s_lshl_b32 s97, s40, 2
    s_add_u32 s97, s97, s43
    s_lshl_b32 s97, s97, 17
    s_lshl_b32 s50, s44, 7
    s_add_u32 s97, s97, s50
    v_lshlrev_b32 v26, 8, v2
    v_lshl_add_u32 v26, v3, 4, v26
    s_lshl_b32 s96, s42, 15
    s_lshl_b32 s50, s40, 12
    s_add_u32 s96, s96, s50
    s_mov_b32 s60, 0
    s_mov_b32 s98, 1
    """)
    QF = 224
    def qloads():
        for j in range(4):
            e(f"buffer_load_dwordx4 v[{QF+4*j}:{QF+4*j+3}], v26, s[36:39], s96 offen offset:{64*j} sc1")
    def poll(tag):
        g.vm("buffer_load_dword v252, v18, s[36:39], s95 offen sc1", tag)
    def check(tag):
        l = g.newlabel("Lchk")
        g.wait(tag)
        e(f"""
        s_cmp_eq_u32 s60, 1
        s_cbranch_scc1 {l}
        v_cmp_eq_u32 vcc, s98, v252
        s_nop 3
        s_cmp_eq_u64 vcc, -1
        s_cbranch_scc0 {l}
        """)
        qloads()
        e("s_mov_b32 s60, 1")
        g.label(l)
    for i in range(6, 10): kload(i)
    poll("pa")
    for i in range(10, 13): kload(i)
    check("pa")
    for i in range(13, 16): kload(i)
    poll("pb")
    for i in range(0, 3): vload(i)
    check("pb")
    g.mark("qdone")
    for i in range(3, 8): vload(i)
    ld, ll, lg = g.newlabel("Lqd"), g.newlabel("Lql"), g.newlabel("Lqg")
    e(f"s_cmp_eq_u32 s60, 1\ns_cbranch_scc1 {ld}\ns_mov_b32 s61, 0")
    g.label(ll)
    e(f"""
    buffer_load_dword v252, v18, s[36:39], s95 offen sc1
    s_waitcnt vmcnt(0)
    v_cmp_eq_u32 vcc, s98, v252
    s_nop 3
    s_cmp_eq_u64 vcc, -1
    s_cbranch_scc1 {lg}
    s_sleep 2
    s_add_u32 s61, s61, 1
    s_cmp_lt_u32 s61, {spin_limit}
    s_cbranch_scc1 {ll}
    """)
    g.label(lg)
    qloads()
    e("s_waitcnt vmcnt(0)")
    g.label(ld)
    e("""
    v_xor_b32 v12, v2, v3
    v_lshlrev_b32 v12, 4, v12
    v_lshlrev_b32 v13, 8, v2
    v_add_u32 v13, s47, v13
    v_add_u32 v28, v13, v12
    v_xor_b32 v29, 64, v12
    v_add_u32 v29, v13, v29
    v_xor_b32 v30, 0x80, v12
    v_add_u32 v30, v13, v30
    v_xor_b32 v31, 0xc0, v12
    v_add_u32 v31, v13, v31
    """)
    g.wait("qdone")
    stamp()
    KF = 160; SA = 192
    for t in range(2):
        for j in range(4):
            r = KF + (t % 2) * 16 + 4 * j
            e(f"ds_read_b128 v[{r}:{r+3}], v{28+j} offset:{4096*t}")
    for t in range(4):
        e(f"s_waitcnt lgkmcnt({4 if t < 3 else 0})")
        for j in range(4):
            r = KF + (t % 2) * 16 + 4 * j
            c = "0" if j == 0 else f"v[{SA+4*t}:{SA+4*t+3}]"
            e(f"v_mfma_f32_16x16x32_bf16 v[{SA+4*t}:{SA+4*t+3}], v[{r}:{r+3}], v[{QF+4*j}:{QF+4*j+3}], {c}")
        if t + 2 < 4:
            for j in range(4):
                r = KF + (t % 2) * 16 + 4 * j
                e(f"ds_read_b128 v[{r}:{r+3}], v{28+j} offset:{4096*(t+2)}")
    vload(8)
    e("s_mov_b32 s50, 0x3db504f3\ns_mov_b32 s51, 0xffff0000\ns_mov_b32 s99, 0x3fb8aa3b")
    g.nop(6)
    T = 208
    for p in range(8):
        a = SA + 2 * p
        e(f"""
        v_cvt_pk_bf16_f32 v{T}, v{a}, v{a+1}
        v_lshlrev_b32 v{a}, 16, v{T}
        v_and_b32 v{a+1}, s51, v{T}
        v_mul_f32 v{a}, s50, v{a}
        v_mul_f32 v{a+1}, s50, v{a+1}
        v_cvt_pk_bf16_f32 v{T}, v{a}, v{a+1}
        v_lshlrev_b32 v{a}, 16, v{T}
        v_and_b32 v{a+1}, s51, v{T}
        """)
    e(f"v_max3_f32 v{T}, v{SA}, v{SA+1}, v{SA+2}")
    for i in range(3, 15, 2):
        e(f"v_max3_f32 v{T}, v{T}, v{SA+i}, v{SA+i+1}")
    e(f"v_max_f32 v{T}, v{T}, v{SA+15}")
    def xreduce(r, tmp, op):
        for sw in ("v_permlane32_swap_b32", "v_permlane16_swap_b32"):
            e(f"v_mov_b32 v{tmp}, v{r}\ns_nop 1\n{sw} v{r}, v{tmp}\ns_nop 0\n{op} v{r}, v{r}, v{tmp}")
    xreduce(T, T + 1, "v_max_f32")
    e(f"""
    v_lshlrev_b32 v12, 5, v2
    v_add_u32 v12, {MX}, v12
    s_lshl_b32 s50, s44, 2
    v_add_u32 v13, s50, v12
    ds_write_b32 v13, v{T}
    """)
    vload(9)
    e("s_waitcnt lgkmcnt(0)\ns_barrier")
    e(f"ds_read_b128 v[{T+4}:{T+7}], v12\nds_read_b128 v[{T+8}:{T+11}], v12 offset:16\ns_waitcnt lgkmcnt(0)")
    e(f"""
    v_max3_f32 v{T}, v{T+4}, v{T+5}, v{T+6}
    v_max3_f32 v{T}, v{T}, v{T+7}, v{T+8}
    v_max3_f32 v{T}, v{T}, v{T+9}, v{T+10}
    v_max_f32 v{T}, v{T}, v{T+11}
    v_mul_f32 v253, s99, v{T}
    """)
    for i in range(16):
        e(f"v_fma_f32 v{SA+i}, v{SA+i}, s99, -v253")
    for i in range(16):
        e(f"v_exp_f32 v{SA+i}, v{SA+i}")
    e("s_nop 0")
    e(f"v_lshlrev_b32 v14, 3, v1\nv_add_u32 v14, s62, v14")
    for t in range(4):
        a = SA + 4 * t
        e(f"v_cvt_pk_bf16_f32 v{T+2*t}, v{a}, v{a+1}\nv_cvt_pk_bf16_f32 v{T+2*t+1}, v{a+2}, v{a+3}")
        e(f"ds_write_b64 v14, v[{T+2*t}:{T+2*t+1}] offset:{512*t}")
    for st in (8, 4, 2):
        for i in range(0, st, 2):
            a = SA + i; b = SA + i + st
            e(f"v_pk_add_f32 v[{a}:{a+1}], v[{a}:{a+1}], v[{b}:{b+1}]")
    e(f"v_add_f32 v{SA}, v{SA}, v{SA+1}")
    xreduce(SA, SA + 1, "v_add_f32")
    e(f"ds_write_b32 v13, v{SA} offset:512")
    vload(10)
    e("v_lshlrev_b32 v15, 4, v1\nv_add_u32 v15, s47, v15")
    def vstore(i):
        t, k = i // 4, i % 4
        g.wait(f"v{i}")
        e(f"s_add_u32 s50, s{52+t}, s{56+k}\nv_add_u32 v24, s50, v15")
        e(f"ds_write_b128 v24, v[{VST+4*i}:{VST+4*i+3}]")
    for i in range(0, 4): vstore(i)
    vload(11)
    for i in range(4, 8): vstore(i)
    vload(12)
    e("s_waitcnt lgkmcnt(0)\ns_barrier")
    stamp()
    lskip = g.newlabel("Lst")
    e(f"s_cmp_lg_u32 s44, 0\ns_cbranch_scc1 {lskip}")
    e(f"""
    ds_read_b128 v[{T+4}:{T+7}], v12 offset:512
    ds_read_b128 v[{T+8}:{T+11}], v12 offset:528
    s_lshl_b32 s50, s45, 9
    s_lshl_b32 s51, s43, 7
    s_add_u32 s50, s50, s51
    s_add_u32 s50, s50, {STATS}
    v_lshlrev_b32 v24, 3, v2
    s_waitcnt lgkmcnt(0)
    v_pk_add_f32 v[{T+4}:{T+5}], v[{T+4}:{T+5}], v[{T+6}:{T+7}]
    v_pk_add_f32 v[{T+8}:{T+9}], v[{T+8}:{T+9}], v[{T+10}:{T+11}]
    v_pk_add_f32 v[{T+4}:{T+5}], v[{T+4}:{T+5}], v[{T+8}:{T+9}]
    v_add_f32 v{T+1}, v{T+4}, v{T+5}
    v_min_u32 v{T}, -2, v253
    v_min_u32 v{T+1}, -2, v{T+1}
    s_mov_b64 exec, 0xffff
    buffer_store_dwordx2 v[{T}:{T+1}], v24, s[36:39], s50 offen sc1
    s_mov_b64 exec, -1
    s_nop 1
    """)
    g.label(lskip)
    PF = 160; PVA = 240; BF = 32
    e("""
    v_lshrrev_b32 v24, 2, v2
    v_lshl_add_u32 v24, v3, 2, v24
    v_and_b32 v25, 7, v24
    v_lshlrev_b32 v25, 1, v25
    v_bfe_u32 v27, v1, 1, 1
    s_lshl_b32 s50, s44, 1
    v_add_u32 v27, s50, v27
    v_xor_b32 v25, v25, v27
    v_lshlrev_b32 v25, 4, v25
    v_lshl_add_u32 v25, v24, 8, v25
    v_and_b32 v27, 1, v1
    v_lshl_add_u32 v25, v27, 3, v25
    """)
    e(f"v_lshlrev_b32 v27, 3, v1\nv_add_u32 v27, {AUX1}, v27")
    for k in range(4):
        e(f"s_lshr_b32 s50, s{52+k}, 3\nv_add_u32 v24, s50, v27")
        for i in range(4):
            r = PF + 16 * k + 4 * i
            e(f"ds_read2st64_b64 v[{r}:{r+3}], v24 offset0:{8*i} offset1:{8*i+4}")
    first = [True]
    def pv_phase(k, bf):
        e(f"v_add_u32 v28, s{52+k}, v25\nv_add_u32 v29, 0x10000, v28")
        for i in range(4):
            for hf in range(2):
                u = 2 * i + hf
                r = bf + 4 * i + 2 * hf
                e(f"ds_read_b64_tr_b16 v[{r}:{r+1}], v{28 + (u >= 4)} offset:{(u % 4) * 16384}")
        for i in range(4):
            e(f"s_waitcnt lgkmcnt({6 - 2*i})")
            c = "0" if first[0] else f"v[{PVA}:{PVA+3}]"
            first[0] = False
            e(f"v_mfma_f32_16x16x32_bf16 v[{PVA}:{PVA+3}], v[{PF+16*k+4*i}:{PF+16*k+4*i+3}], v[{bf+4*i}:{bf+4*i+3}], {c}")
    vload(13)
    pv_phase(0, BF)
    vload(14)
    pv_phase(1, BF + 16)
    woload(32)
    e(f"""
    v_lshlrev_b32 v30, 3, v2
    v_lshl_add_u32 v30, v3, 7, v30
    s_lshl_b32 s96, s45, 9
    s_add_u32 s96, s96, {STATS}
    """)
    throttle()
    g.vm("buffer_load_dword v252, v18, s[36:39], s95 offen offset:4 sc1", "go2")
    g.vm("buffer_load_dwordx2 v[254:255], v30, s[36:39], s96 offen sc1", "sa")
    vload(15)
    for i in range(8, 12): vstore(i)
    e("s_waitcnt lgkmcnt(0)\ns_barrier")
    stamp()
    pv_phase(2, BF)
    e("s_mov_b32 s50, 0x05040100\ns_mov_b32 s51, 0x07060302")
    for j in range(4):
        g.wait(f"wo{8*j+7}")
        src = WOB + 16 * (j + 1); dst = WOB + 16 * j
        for jc in range(4):
            for p in range(4):
                a = src + 2 * (2 * p) + (jc >> 1); b = src + 2 * (2 * p + 1) + (jc >> 1)
                e(f"v_perm_b32 v{dst+4*jc+p}, v{b}, v{a}, s{50 + (jc & 1)}")
    g.wait("sa")
    ll, lg = g.newlabel("Lsl"), g.newlabel("Lsg")
    e("s_mov_b32 s61, 0")
    g.label(ll)
    e(f"""
    v_max_u32 v31, v254, v255
    v_cmp_ne_u32 vcc, -1, v31
    s_nop 3
    s_cmp_eq_u64 vcc, -1
    s_cbranch_scc1 {lg}
    buffer_load_dwordx2 v[254:255], v30, s[36:39], s96 offen sc1
    s_waitcnt vmcnt(0)
    s_add_u32 s61, s61, 1
    s_cmp_lt_u32 s61, {spin_limit}
    s_cbranch_scc1 {ll}
    """)
    g.label(lg)
    e("v_mov_b32 v31, v254")
    xreduce(31, 24, "v_max_f32")
    e("""
    v_sub_f32 v254, v254, v31
    v_sub_f32 v24, v253, v31
    v_exp_f32 v254, v254
    v_exp_f32 v24, v24
    s_nop 0
    v_mul_f32 v254, v254, v255
    """)
    xreduce(254, 255, "v_add_f32")
    e(f"""
    v_rcp_f32 v254, v254
    s_lshl_b32 s50, s44, 6
    s_add_u32 s50, s50, {SCL}
    v_lshlrev_b32 v31, 2, v2
    v_add_u32 v31, s50, v31
    v_mul_f32 v24, v24, v254
    v_lshlrev_b32 v30, 4, v3
    v_add_u32 v30, s50, v30
    ds_write_b32 v31, v24
    s_waitcnt lgkmcnt(0)
    ds_read_b128 v[244:247], v30
    """)
    e(f"""
    v_lshlrev_b32 v24, 11, v3
    v_lshl_add_u32 v24, v2, 4, v24
    s_lshl_b32 s50, s45, 15
    s_lshl_b32 s51, s43, 13
    s_add_u32 s50, s50, s51
    s_lshl_b32 s51, s44, 8
    s_add_u32 s50, s50, s51
    s_add_u32 s96, s50, {MSG1}
    v_and_b32 v30, 1, v3
    v_cmp_eq_u32 s[4:5], 1, v30
    v_lshlrev_b32 v30, 4, v30
    v_cmp_le_u32 s[6:7], 2, v3
    v_lshlrev_b32 v31, 8, v3
    v_lshl_add_u32 v31, v2, 1, v31
    s_lshl_b32 s50, s44, 5
    s_add_u32 s50, s50, {OB}
    v_add_u32 v31, s50, v31
    v_and_b32 v27, 3, v2
    v_lshlrev_b32 v27, 8, v27
    v_lshl_add_u32 v27, v3, 4, v27
    v_add_u32 v27, {OB}, v27
    """)
    g.wait("v15")
    e("s_waitcnt lgkmcnt(0)\ns_barrier")
    stamp()
    pv_phase(3, BF + 16)
    g.nop(8)
    for i in range(4):
        e(f"v_mul_f32 v{PVA+i}, v{PVA+i}, v{244+i}")
    for i in range(4):
        e(f"v_min_u32 v{PVA+i}, -2, v{PVA+i}")
    g.vm(f"buffer_store_dwordx4 v[{PVA}:{PVA+3}], v16, s[36:39], 0 offen sc1", "m1")
    stamp()
    ll, lg = g.newlabel("Lm1l"), g.newlabel("Lm1g")
    e("s_mov_b32 s61, 0")
    g.label(ll)
    e(f"""
    buffer_load_dwordx4 v[248:251], v24, s[36:39], s96 offen sc1
    s_waitcnt vmcnt(0)
    v_max3_u32 v28, v248, v249, v250
    v_max_u32 v28, v28, v251
    v_cmp_ne_u32 vcc, -1, v28
    s_nop 3
    s_cmp_eq_u64 vcc, -1
    s_cbranch_scc1 {lg}
    s_add_u32 s61, s61, 1
    s_cmp_lt_u32 s61, {spin_limit}
    s_cbranch_scc1 {ll}
    """)
    g.label(lg)
    stamp()
    for sw in ("v_permlane32_swap_b32", "v_permlane16_swap_b32"):
        for i in range(4): e(f"v_mov_b32 v{244+i}, v{248+i}")
        e("s_nop 0")
        for i in range(4): e(f"{sw} v{248+i}, v{244+i}")
        e("s_nop 0")
        e("v_pk_add_f32 v[248:249], v[248:249], v[244:245]\nv_pk_add_f32 v[250:251], v[250:251], v[246:247]")
    e("""
    v_cvt_pk_bf16_f32 v28, v248, v249
    v_cvt_pk_bf16_f32 v29, v250, v251
    s_nop 0
    v_cndmask_b32 v28, v28, v29, s[6:7]
    v_lshrrev_b32 v28, v30, v28
    ds_write_b16 v31, v28
    s_waitcnt lgkmcnt(0)
    s_barrier
    """)
    AF = 32; OA = 224
    for j in range(4):
        e(f"ds_read_b128 v[{AF+4*j}:{AF+4*j+3}], v27 offset:{64*j}")
    for j in range(4):
        e(f"s_waitcnt lgkmcnt({3-j})")
        for jc in range(4):
            c = "0" if j == 0 else f"v[{OA+4*jc}:{OA+4*jc+3}]"
            b = WOB + 16 * j + 4 * jc
            e(f"v_mfma_f32_16x16x32_bf16 v[{OA+4*jc}:{OA+4*jc+3}], v[{AF+4*j}:{AF+4*j+3}], v[{b}:{b+3}], {c}")
    g.nop(8)
    for r in range(4):
        e(f"""
        v_cndmask_b32 v{48+r}, v{OA+r}, v{OA+4+r}, s[4:5]
        v_cndmask_b32 v{52+r}, v{OA+8+r}, v{OA+12+r}, s[4:5]
        """)
    for r in range(4):
        e(f"v_cndmask_b32 v{48+r}, v{48+r}, v{52+r}, s[6:7]")
    for r in range(4):
        e(f"v_min_u32 v{48+r}, -2, v{48+r}")
    g.vm("buffer_store_dwordx4 v[48:51], v17, s[36:39], 0 offen sc1", "m2")
    stamp()
    lend = g.newlabel("Lend")
    e(f"s_cmp_lg_u32 s44, 0\ns_cbranch_scc1 {lend}")
    e(f"""
    v_lshlrev_b32 v24, 4, v1
    s_lshl_b32 s50, s42, 18
    s_lshl_b32 s51, s63, 5
    s_add_u32 s50, s50, s51
    s_add_u32 s50, s50, {MSG2}
    s_add_u32 s51, s50, 4096
    s_mov_b32 s61, 0
    v_lshlrev_b32 v25, 10, v3
    v_lshl_add_u32 v25, v2, 1, v25
    s_lshl_b32 s96, s42, 12
    s_lshr_b32 s97, s63, 3
    s_add_u32 s96, s96, s97
    """)
    l2, l2g = g.newlabel("Lg2l"), g.newlabel("Lg2g")
    g.label(l2)
    e(f"""
    v_cmp_eq_u32 vcc, 1, v252
    s_nop 3
    s_cmp_eq_u64 vcc, -1
    s_cbranch_scc1 {l2g}
    buffer_load_dword v252, v18, s[36:39], s95 offen offset:4 sc1
    s_waitcnt vmcnt(0)
    s_add_u32 s61, s61, 1
    s_cmp_lt_u32 s61, {spin_limit}
    s_cbranch_scc1 {l2}
    """)
    g.label(l2g)
    e("s_mov_b32 s61, 0")
    ll, lg = g.newlabel("Lm2l"), g.newlabel("Lm2g")
    g.label(ll)
    FB = 64
    for i in range(8):
        e(f"buffer_load_dwordx4 v[{FB+4*i}:{FB+4*i+3}], v24, s[36:39], s{50 + i // 4} offen offset:{(i % 4) * 1024} sc1")
    e("s_waitcnt vmcnt(0)")
    e(f"v_max3_u32 v28, v{FB}, v{FB+1}, v{FB+2}")
    for i in range(3, 31, 2):
        e(f"v_max3_u32 v28, v28, v{FB+i}, v{FB+i+1}")
    e(f"""
    v_max_u32 v28, v28, v{FB+31}
    v_cmp_ne_u32 vcc, -1, v28
    s_nop 3
    s_cmp_eq_u64 vcc, -1
    s_cbranch_scc1 {lg}
    s_add_u32 s61, s61, 1
    s_cmp_lt_u32 s61, {spin_limit}
    s_cbranch_scc1 {ll}
    """)
    g.label(lg)
    stamp()
    for st in (4, 2, 1):
        for w in range(st):
            a = FB + 4 * w; b = FB + 4 * (w + st)
            e(f"v_pk_add_f32 v[{a}:{a+1}], v[{a}:{a+1}], v[{b}:{b+1}]\nv_pk_add_f32 v[{a+2}:{a+3}], v[{a+2}:{a+3}], v[{b+2}:{b+3}]")
    for sw in ("v_permlane32_swap_b32", "v_permlane16_swap_b32"):
        for i in range(4): e(f"v_mov_b32 v{FB+4+i}, v{FB+i}")
        e("s_nop 0")
        for i in range(4): e(f"{sw} v{FB+i}, v{FB+4+i}")
        e("s_nop 0")
        e(f"v_pk_add_f32 v[{FB}:{FB+1}], v[{FB}:{FB+1}], v[{FB+4}:{FB+5}]\nv_pk_add_f32 v[{FB+2}:{FB+3}], v[{FB+2}:{FB+3}], v[{FB+6}:{FB+7}]")
    e(f"""
    v_cvt_pk_bf16_f32 v28, v{FB}, v{FB+1}
    v_cvt_pk_bf16_f32 v29, v{FB+2}, v{FB+3}
    s_nop 0
    v_cndmask_b32 v28, v28, v29, s[6:7]
    v_lshrrev_b32 v28, v30, v28
    buffer_store_short v28, v25, s[28:31], s96 offen
    """)
    g.label(lend)
    if stamps:
        stamp()
        n = nst[0]
        e(f"s_lshl_b32 s50, s2, 3\ns_add_u32 s50, s50, s44\ns_lshl_b32 s50, s50, 6\ns_add_u32 s50, s50, {DBGA}\nv_mov_b32 v24, 0\ns_mov_b64 exec, 1")
        for i in range(0, 16, 4):
            for k in range(4): e(f"v_mov_b32 v{28+k}, s{80+i+k}")
            e(f"buffer_store_dwordx4 v[28:31], v24, s[36:39], s50 offen offset:{4*i}\ns_nop 1")
    hdr = f"""; fused GQA decode block: q-proj -> split-KV attention -> out-proj, one launch, in-kernel hand-offs
; @launch grid=(256,1,1) block=(512,1,1) lds={LDS_TOTAL}
.amdgcn_target "amdgcn-amd-amdhsa--gfx950"
.text
.globl {KNAME}
.p2align 8
.type {KNAME},@function
{KNAME}:
"""
    ftr = f"""L_done:
    s_endpgm
.section .rodata,"a"
.p2align 6
.amdhsa_kernel {KNAME}
  .amdhsa_next_free_vgpr 256
  .amdhsa_next_free_sgpr 102
  .amdhsa_accum_offset 256
  .amdhsa_group_segment_fixed_size 0
  .amdhsa_kernarg_size 64
  .amdhsa_user_sgpr_count 2
  .amdhsa_user_sgpr_kernarg_segment_ptr 1
  .amdhsa_system_sgpr_workgroup_id_x 1
  .amdhsa_float_denorm_mode_32 3
.end_amdhsa_kernel
"""
    return hdr + g.text() + ftr

if __name__ == "__main__":
    open("g1.s", "w").write(gen())
    open("g1_st.s", "w").write(gen(stamps=True))
    open("g1_nt.s", "w").write(gen(wqpol="nt", wopol="nt"))
    open("g1_nt_st.s", "w").write(gen(stamps=True, wqpol="nt", wopol="nt"))
    open("g1_nobar_st.s", "w").write(gen(stamps=True, early_bar=False))
```

```python
import sys
from gen1 import G, KNAME

QWS = 0
STATS = 0x40000
GOW = 0x50000
MSG1 = 0x100000
MSG2 = 0x300000
DBGA = 0x800000
AUX1 = 131072
AUX2 = 147456
MX = AUX2
LS = AUX2 + 512
SCL = AUX2 + 1024
OB = AUX2 + 2048
CNT = AUX1 + 16384 - 0
LDS_TOTAL = 163840

def gen(TH=4, stamps=False, wopol="", wqpol="", spin_limit=200000, attempts=(("k", 15), ("v", 2), ("v", 5))):
    g = G()
    e = g.e
    nst = [0]
    def stamp(idx=None):
        if not stamps: return
        i = nst[0] if idx is None else idx
        if idx is None: nst[0] += 1
        assert i < 15
        e(f"s_memrealtime s[100:101]\ns_waitcnt lgkmcnt(0)\ns_mov_b32 s{80+i}, s100")
    def stamp_store():
        if not stamps: return
        e(f"s_mul_i32 s50, s2, 9\ns_add_u32 s50, s50, s44\ns_lshl_b32 s50, s50, 6\ns_add_u32 s50, s50, {DBGA}\nv_mov_b32 v24, 0\ns_mov_b64 exec, 1")
        for i in range(0, 16, 4):
            for k in range(4): e(f"v_mov_b32 v{28+k}, s{80+i+k}")
            e(f"buffer_store_dwordx4 v[28:31], v24, s[36:39], s50 offen offset:{4*i}\ns_nop 1")
    def xreduce(r, tmp, op):
        for sw in ("v_permlane32_swap_b32", "v_permlane16_swap_b32"):
            e(f"v_mov_b32 v{tmp}, v{r}\ns_nop 1\n{sw} v{r}, v{tmp}\ns_nop 0\n{op} v{r}, v{r}, v{tmp}")
    e("""
    s_cmp_ge_u32 s2, 256
    s_cbranch_scc1 L_done
    s_load_dwordx16 s[64:79], s[0:1], 0
    v_and_b32 v1, 63, v0
    v_lshrrev_b32 v12, 6, v0
    v_and_b32 v2, 15, v0
    v_bfe_u32 v3, v0, 4, 2
    v_readfirstlane_b32 s44, v12
    s_and_b32 s40, s2, 7
    s_lshr_b32 s41, s2, 3
    s_lshr_b32 s42, s41, 2
    s_and_b32 s43, s41, 3
    s_lshl_b32 s45, s42, 3
    s_add_u32 s45, s45, s40
    s_lshl_b32 s46, s45, 2
    s_add_u32 s46, s46, s43
    s_lshl_b32 s46, s46, 17
    s_lshl_b32 s47, s44, 14
    s_add_u32 s46, s46, s47
    s_add_u32 s48, s41, s40
    s_lshr_b32 s50, s44, 2
    s_add_u32 s49, s44, s50
    s_lshr_b32 s50, s41, 2
    s_add_u32 s49, s49, s50
    s_lshl_b32 s51, s40, 2
    s_add_u32 s51, s51, s43
    s_lshl_b32 s63, s51, 8
    """)
    e(f"s_lshl_b32 s95, s2, 7\ns_add_u32 s95, s95, {GOW}")
    for t in range(4):
        e(f"s_add_u32 s50, s48, {t}\ns_and_b32 s50, s50, 3\ns_lshl_b32 s{52+t}, s50, 12")
        e(f"s_add_u32 s50, s49, {t}\ns_and_b32 s50, s50, 3\ns_lshl_b32 s{56+t}, s50, 10")
    e("s_waitcnt lgkmcnt(0)")
    def srd(d, p, size):
        e(f"s_mov_b32 s{d}, s{p}\ns_mov_b32 s{d+1}, s{p+1}\ns_mov_b32 s{d+2}, {size}\ns_mov_b32 s{d+3}, 0x00020000")
    srd(8, 64, 32768); srd(12, 66, 0x2000000); srd(16, 68, 0x2000000); srd(20, 70, 0x400000)
    srd(24, 72, 0x400000); srd(28, 74, 32768); srd(32, 76, 256); srd(36, 78, 0x10000000)
    e("s_add_u32 s94, s55, 114688")
    e("s_cmp_eq_u32 s44, 8\ns_cbranch_scc1 L_aux")
    stamp()
    e("""
    v_lshrrev_b32 v14, 1, v1
    v_lshlrev_b32 v14, 13, v14
    v_and_b32 v15, 1, v1
    v_lshl_add_u32 v14, v15, 4, v14
    s_lshl_b32 s50, s44, 19
    s_lshl_b32 s51, s40, 10
    s_add_u32 s50, s50, s51
    s_lshl_b32 s51, s41, 5
    s_add_u32 s50, s50, s51
    s_lshl_b32 s51, s44, 11
    """)
    e(f"s_add_u32 s62, s51, {AUX1}\ns_mov_b32 m0, s62\ns_nop 0")
    g.vm(f"buffer_load_dwordx4 v14, s[20:23], s50 offen {wqpol} lds", "wq0")
    e(f"s_add_u32 s50, s50, 0x40000\ns_add_u32 m0, s62, 1024\ns_nop 0")
    g.vm(f"buffer_load_dwordx4 v14, s[20:23], s50 offen {wqpol} lds", "wq1")
    e("""
    v_lshlrev_b32 v15, 10, v2
    v_lshl_add_u32 v15, v3, 4, v15
    s_lshl_b32 s50, s44, 7
    s_add_u32 s51, s50, 16384
    """)
    XF = 80
    for rt in range(2):
        for d in range(2):
            r = XF + (rt * 2 + d) * 4
            g.vm(f"buffer_load_dwordx4 v[{r}:{r+3}], v15, s[8:11], s{50+rt} offen offset:{d*64} {wqpol}", f"x{rt}{d}")
    e("""
    v_xor_b32 v12, v2, v3
    v_lshlrev_b32 v12, 4, v12
    v_lshl_add_u32 v12, v3, 8, v12
    v_lshlrev_b32 v13, 1, v3
    v_xor_b32 v13, v2, v13
    v_lshlrev_b32 v13, 4, v13
    v_lshl_add_u32 v13, v3, 8, v13
    """)
    for k in range(4):
        e(f"""
        s_lshr_b32 s50, s{56+k}, 4
        v_xor_b32 v{4+k}, s50, v12
        v_add_u32 v{4+k}, s{56+k}, v{4+k}
        s_lshr_b32 s50, s{56+k}, 3
        s_and_b32 s50, s50, 128
        v_xor_b32 v{8+k}, s50, v13
        v_add_u32 v{8+k}, s{56+k}, v{8+k}
        """)
    e("s_barrier")
    stream = []
    def throttle():
        if len(stream) >= TH:
            g.wait(stream[-TH])
    QF = 80
    att = [0]
    def qloads():
        for j in range(4):
            e(f"buffer_load_dwordx4 v[{QF+4*j}:{QF+4*j+3}], v26, s[36:39], s96 offen offset:{64*j} sc1")
    def qtest(lfail):
        e(f"v_max3_u32 v20, v{QF}, v{QF+1}, v{QF+2}")
        for i in range(3, 15, 2):
            e(f"v_max3_u32 v20, v20, v{QF+i}, v{QF+i+1}")
        e(f"""
        v_max_u32 v20, v20, v{QF+15}
        v_cmp_ne_u32 vcc, -1, v20
        s_nop 3
        s_cmp_eq_u64 vcc, -1
        s_cbranch_scc0 {lfail}
        """)
    def attempt_point():
        a = att[0]; att[0] += 1
        ldone = g.newlabel("Lad"); lnew = g.newlabel("Lan")
        if a > 0:
            e(f"s_cmp_eq_u32 s60, 1\ns_cbranch_scc1 {ldone}")
            g.wait(f"att{a-1}")
            qtest(lnew)
            e(f"s_mov_b32 s60, 1\ns_branch {ldone}")
        g.label(lnew)
        qloads()
        g.label(ldone)
        g.mark(f"att{a}")
    def after(kind, i):
        if (kind, i) in attempts: attempt_point()
    def kload(i):
        throttle()
        t, k = i // 4, i % 4
        e(f"s_add_u32 s50, s46, s{52+t}\ns_add_u32 s51, s47, s{52+t}\ns_add_u32 m0, s51, s{56+k}\ns_nop 0")
        g.vm(f"buffer_load_dwordx4 v{4+k}, s[12:15], s50 offen nt lds", f"k{i}")
        stream.append(f"k{i}")
        after("k", i)
    VST = 32
    WOB = 80
    wo_i = [0]
    def woload(n):
        for _ in range(n):
            i = wo_i[0]
            if i >= 32: return
            wo_i[0] += 1
            j, ee = i // 8, i % 8
            r = WOB + 16 * (j + 1) + 2 * ee
            off = (32 * j + ee) * 1024
            e(f"s_add_u32 s50, s97, {off & ~4095}")
            g.vm(f"buffer_load_dwordx2 v[{r}:{r+1}], v19, s[24:27], s50 offen offset:{off & 4095} {wopol}", f"wo{i}")
    def vload(i, nwo=0):
        throttle()
        t, k = i // 4, i % 4
        e(f"s_add_u32 s50, s46, s{52+t}")
        if i < 12:
            r = VST + 4 * i
            g.vm(f"buffer_load_dwordx4 v[{r}:{r+3}], v{8+k}, s[16:19], s50 offen nt", f"v{i}")
        else:
            e(f"s_add_u32 s51, s47, s{52+t}\ns_add_u32 m0, s51, s{56+k}\ns_nop 0")
            g.vm(f"buffer_load_dwordx4 v{8+k}, s[16:19], s50 offen nt lds", f"v{i}")
        stream.append(f"v{i}")
        woload(nwo)
        after("v", i)

    for i in range(4): kload(i)
    e("""
    v_lshrrev_b32 v24, 2, v2
    v_lshl_add_u32 v24, v3, 3, v24
    v_lshlrev_b32 v24, 5, v24
    v_and_b32 v25, 3, v1
    v_lshl_add_u32 v24, v25, 3, v24
    v_add_u32 v24, s62, v24
    """)
    e(f"v_lshlrev_b32 v25, 4, v1\ns_lshl_b32 s50, s44, 11\ns_add_u32 s50, s50, {AUX2}\nv_add_u32 v25, s50, v25")
    e("v_mov_b32 v20, s94\nv_mov_b32 v21, 1")
    e(f"""
    v_lshlrev_b32 v16, 13, v3
    v_lshl_add_u32 v16, v2, 4, v16
    s_lshl_b32 s50, s45, 15
    s_lshl_b32 s51, s43, 11
    s_add_u32 s50, s50, s51
    s_lshl_b32 s51, s44, 8
    s_add_u32 s50, s50, s51
    s_add_u32 s50, s50, {MSG1}
    v_add_u32 v16, s50, v16
    v_lshrrev_b32 v17, 2, v2
    v_lshlrev_b32 v17, 13, v17
    v_and_b32 v18, 3, v2
    v_lshl_add_u32 v17, v18, 6, v17
    v_lshl_add_u32 v17, v3, 4, v17
    s_lshl_b32 s50, s42, 18
    s_lshl_b32 s51, s44, 15
    s_add_u32 s50, s50, s51
    s_add_u32 s50, s50, s63
    s_add_u32 s50, s50, {MSG2}
    v_add_u32 v17, s50, v17
    v_mov_b32 v18, 0
    v_lshlrev_b32 v19, 13, v3
    v_lshl_add_u32 v19, v2, 3, v19
    s_lshl_b32 s97, s63, 9
    s_lshl_b32 s50, s44, 7
    s_add_u32 s97, s97, s50
    v_lshlrev_b32 v26, 8, v2
    v_lshl_add_u32 v26, v3, 4, v26
    s_lshl_b32 s96, s42, 15
    s_lshl_b32 s50, s40, 12
    s_add_u32 s96, s96, s50
    s_mov_b32 s60, 0
    """)
    g.wait("x11")
    stamp()
    WF = 96; QA = 104
    for d in range(2):
        e(f"ds_read_b64_tr_b16 v[{WF+4*d}:{WF+4*d+1}], v24 offset:{1024*d}")
        e(f"ds_read_b64_tr_b16 v[{WF+4*d+2}:{WF+4*d+3}], v24 offset:{1024*d+128}")
    e("s_waitcnt lgkmcnt(0)")
    for rt in range(2):
        e(f"v_mfma_f32_16x16x32_bf16 v[{QA+4*rt}:{QA+4*rt+3}], v[{WF}:{WF+3}], v[{XF+8*rt}:{XF+8*rt+3}], 0")
    for rt in range(2):
        e(f"v_mfma_f32_16x16x32_bf16 v[{QA+4*rt}:{QA+4*rt+3}], v[{WF+4}:{WF+7}], v[{XF+8*rt+4}:{XF+8*rt+7}], v[{QA+4*rt}:{QA+4*rt+3}]")
    g.nop(8)
    e(f"ds_write_b128 v25, v[{QA}:{QA+3}]\nds_write_b128 v25, v[{QA+4}:{QA+7}] offset:1024")
    e("s_waitcnt lgkmcnt(0)\ns_mov_b64 exec, 1\nds_add_u32 v20, v21\ns_mov_b64 exec, -1")
    stamp()
    for i in range(4, 12): kload(i)
    lw = g.newlabel("Lw7"); lw2 = g.newlabel("Lw7l")
    e(f"s_cmp_lg_u32 s44, 7\ns_cbranch_scc1 {lw}\ns_mov_b32 s61, 0")
    g.label(lw2)
    e(f"""
    ds_read_b32 v21, v20
    s_waitcnt lgkmcnt(0)
    v_readfirstlane_b32 s50, v21
    s_nop 3
    s_cmp_eq_u32 s50, 0x100
    s_cbranch_scc1 {lw}
    s_sleep 1
    s_add_u32 s61, s61, 1
    s_cmp_lt_u32 s61, {spin_limit}
    s_cbranch_scc1 {lw2}
    """)
    g.label(lw)
    for i in range(12, 16): kload(i)
    g.mark("kall")
    for i in range(0, 8): vload(i)
    ld, ll = g.newlabel("Lqd"), g.newlabel("Lql")
    e(f"s_cmp_eq_u32 s60, 1\ns_cbranch_scc1 {ld}\ns_mov_b32 s61, 0")
    g.wait(f"att{att[0]-1}")
    lret = g.newlabel("Lqr")
    g.label(ll)
    qtest(lret)
    e(f"s_branch {ld}")
    g.label(lret)
    qloads()
    e(f"""
    s_waitcnt vmcnt(0)
    s_add_u32 s61, s61, 1
    s_cmp_lt_u32 s61, {spin_limit}
    s_cbranch_scc1 {ll}
    """)
    g.label(ld)
    e("""
    v_xor_b32 v12, v2, v3
    v_lshlrev_b32 v12, 4, v12
    v_lshlrev_b32 v13, 8, v2
    v_add_u32 v13, s47, v13
    v_add_u32 v28, v13, v12
    v_xor_b32 v29, 64, v12
    v_add_u32 v29, v13, v29
    v_xor_b32 v30, 0x80, v12
    v_add_u32 v30, v13, v30
    v_xor_b32 v31, 0xc0, v12
    v_add_u32 v31, v13, v31
    """)
    g.wait("kall")
    stamp()
    KF = 96; SA = 128; T = 144
    for t in range(2):
        for j in range(4):
            r = KF + (t % 2) * 16 + 4 * j
            e(f"ds_read_b128 v[{r}:{r+3}], v{28+j} offset:{4096*t}")
    for t in range(4):
        e(f"s_waitcnt lgkmcnt({4 if t < 3 else 0})")
        for j in range(4):
            r = KF + (t % 2) * 16 + 4 * j
            c = "0" if j == 0 else f"v[{SA+4*t}:{SA+4*t+3}]"
            e(f"v_mfma_f32_16x16x32_bf16 v[{SA+4*t}:{SA+4*t+3}], v[{r}:{r+3}], v[{QF+4*j}:{QF+4*j+3}], {c}")
        if t + 2 < 4:
            for j in range(4):
                r = KF + (t % 2) * 16 + 4 * j
                e(f"ds_read_b128 v[{r}:{r+3}], v{28+j} offset:{4096*(t+2)}")
    vload(8)
    e("s_mov_b32 s50, 0x3db504f3\ns_mov_b32 s51, 0xffff0000\ns_mov_b32 s99, 0x3fb8aa3b")
    g.nop(6)
    for p in range(8):
        a = SA + 2 * p
        e(f"""
        v_cvt_pk_bf16_f32 v{T}, v{a}, v{a+1}
        v_lshlrev_b32 v{a}, 16, v{T}
        v_and_b32 v{a+1}, s51, v{T}
        v_mul_f32 v{a}, s50, v{a}
        v_mul_f32 v{a+1}, s50, v{a+1}
        v_cvt_pk_bf16_f32 v{T}, v{a}, v{a+1}
        v_lshlrev_b32 v{a}, 16, v{T}
        v_and_b32 v{a+1}, s51, v{T}
        """)
    e(f"v_max3_f32 v{T}, v{SA}, v{SA+1}, v{SA+2}")
    for i in range(3, 15, 2):
        e(f"v_max3_f32 v{T}, v{T}, v{SA+i}, v{SA+i+1}")
    e(f"v_max_f32 v{T}, v{T}, v{SA+15}")
    xreduce(T, T + 1, "v_max_f32")
    e(f"""
    v_lshlrev_b32 v12, 5, v2
    v_add_u32 v12, {MX}, v12
    s_lshl_b32 s50, s44, 2
    v_add_u32 v13, s50, v12
    ds_write_b32 v13, v{T}
    """)
    vload(9)
    e("s_waitcnt lgkmcnt(0)\ns_barrier")
    e(f"ds_read_b128 v[{T+4}:{T+7}], v12\nds_read_b128 v[{T+8}:{T+11}], v12 offset:16\ns_waitcnt lgkmcnt(0)")
    e(f"""
    v_max3_f32 v{T}, v{T+4}, v{T+5}, v{T+6}
    v_max3_f32 v{T}, v{T}, v{T+7}, v{T+8}
    v_max3_f32 v{T}, v{T}, v{T+9}, v{T+10}
    v_max_f32 v{T}, v{T}, v{T+11}
    v_mul_f32 v21, s99, v{T}
    """)
    for i in range(16):
        e(f"v_fma_f32 v{SA+i}, v{SA+i}, s99, -v21")
    for i in range(16):
        e(f"v_exp_f32 v{SA+i}, v{SA+i}")
    e("s_nop 0")
    e(f"v_lshlrev_b32 v14, 3, v1\nv_add_u32 v14, s62, v14")
    for t in range(4):
        a = SA + 4 * t
        e(f"v_cvt_pk_bf16_f32 v{T+2*t}, v{a}, v{a+1}\nv_cvt_pk_bf16_f32 v{T+2*t+1}, v{a+2}, v{a+3}")
        e(f"ds_write_b64 v14, v[{T+2*t}:{T+2*t+1}] offset:{512*t}")
    for st in (8, 4, 2):
        for i in range(0, st, 2):
            a = SA + i; b = SA + i + st
            e(f"v_pk_add_f32 v[{a}:{a+1}], v[{a}:{a+1}], v[{b}:{b+1}]")
    e(f"v_add_f32 v{SA}, v{SA}, v{SA+1}")
    xreduce(SA, SA + 1, "v_add_f32")
    e(f"ds_write_b32 v13, v{SA} offset:512")
    e("v_lshlrev_b32 v15, 4, v1\nv_add_u32 v15, s47, v15\ns_waitcnt lgkmcnt(0)")
    vload(10, 6)
    def vstore(i):
        t, k = i // 4, i % 4
        g.wait(f"v{i}")
        e(f"s_add_u32 s50, s{52+t}, s{56+k}\nv_add_u32 v24, s50, v15")
        e(f"ds_write_b128 v24, v[{VST+4*i}:{VST+4*i+3}]")
    for i in range(0, 4): vstore(i)
    vload(11, 6)
    for i in range(4, 8): vstore(i)
    vload(12, 6)
    e("s_waitcnt lgkmcnt(0)\ns_barrier")
    stamp()
    lskip = g.newlabel("Lst")
    e(f"s_cmp_lg_u32 s44, 0\ns_cbranch_scc1 {lskip}")
    e(f"""
    ds_read_b128 v[48:51], v12 offset:512
    ds_read_b128 v[52:55], v12 offset:528
    s_lshl_b32 s50, s45, 9
    s_lshl_b32 s51, s43, 7
    s_add_u32 s50, s50, s51
    s_add_u32 s50, s50, {STATS}
    v_lshlrev_b32 v24, 3, v2
    s_waitcnt lgkmcnt(0)
    v_pk_add_f32 v[48:49], v[48:49], v[50:51]
    v_pk_add_f32 v[52:53], v[52:53], v[54:55]
    v_pk_add_f32 v[48:49], v[48:49], v[52:53]
    v_add_f32 v23, v48, v49
    v_min_u32 v22, -2, v21
    v_min_u32 v23, -2, v23
    s_mov_b64 exec, 0xffff
    buffer_store_dwordx2 v[22:23], v24, s[36:39], s50 offen sc1
    s_mov_b64 exec, -1
    s_nop 1
    """)
    g.label(lskip)
    PF = 32; BF = 48; PVA = 160; SC = 164
    e("""
    v_lshrrev_b32 v24, 2, v2
    v_lshl_add_u32 v24, v3, 2, v24
    v_and_b32 v25, 7, v24
    v_lshlrev_b32 v25, 1, v25
    v_bfe_u32 v27, v1, 1, 1
    s_lshl_b32 s50, s44, 1
    v_add_u32 v27, s50, v27
    v_xor_b32 v25, v25, v27
    v_lshlrev_b32 v25, 4, v25
    v_lshl_add_u32 v25, v24, 8, v25
    v_and_b32 v27, 1, v1
    v_lshl_add_u32 v25, v27, 3, v25
    """)
    e(f"v_lshlrev_b32 v27, 3, v1\nv_add_u32 v27, {AUX1}, v27")
    def pfrags(k):
        e(f"s_lshr_b32 s50, s{52+k}, 3\nv_add_u32 v24, s50, v27")
        for i in range(4):
            r = PF + 4 * i
            e(f"ds_read2st64_b64 v[{r}:{r+3}], v24 offset0:{8*i} offset1:{8*i+4}")
        e(f"v_add_u32 v28, s{52+k}, v25\nv_add_u32 v29, 0x10000, v28")
    first = [True]
    def pv_phase(k):
        for i in range(4):
            for hf in range(2):
                u = 2 * i + hf
                r = BF + 4 * i + 2 * hf
                e(f"ds_read_b64_tr_b16 v[{r}:{r+1}], v{28 + (u >= 4)} offset:{(u % 4) * 16384}")
        for i in range(4):
            e(f"s_waitcnt lgkmcnt({6 - 2*i})")
            c = "0" if first[0] else f"v[{PVA}:{PVA+3}]"
            first[0] = False
            e(f"v_mfma_f32_16x16x32_bf16 v[{PVA}:{PVA+3}], v[{PF+4*i}:{PF+4*i+3}], v[{BF+4*i}:{BF+4*i+3}], {c}")
    g.vm("buffer_load_dword v20, v18, s[36:39], s95 offen offset:4 sc1", "go2")
    vload(13, 7)
    pfrags(0); pv_phase(0)
    vload(14, 7)
    pfrags(1); pv_phase(1)
    assert wo_i[0] == 32
    e(f"""
    v_lshlrev_b32 v30, 3, v2
    v_lshl_add_u32 v30, v3, 7, v30
    s_lshl_b32 s96, s45, 9
    s_add_u32 s96, s96, {STATS}
    """)
    g.wait("go2")
    l2, l2g = g.newlabel("Lg2l"), g.newlabel("Lg2g")
    e("s_mov_b32 s61, 0")
    g.label(l2)
    e(f"""
    v_cmp_eq_u32 vcc, 1, v20
    s_nop 3
    s_cmp_eq_u64 vcc, -1
    s_cbranch_scc1 {l2g}
    buffer_load_dword v20, v18, s[36:39], s95 offen offset:4 sc1
    s_waitcnt vmcnt(0)
    s_add_u32 s61, s61, 1
    s_cmp_lt_u32 s61, {spin_limit}
    s_cbranch_scc1 {l2}
    """)
    g.label(l2g)
    throttle()
    g.vm("buffer_load_dwordx2 v[22:23], v30, s[36:39], s96 offen sc1", "sa")
    vload(15)
    for i in range(8, 12): vstore(i)
    e("s_waitcnt lgkmcnt(0)\ns_barrier")
    stamp()
    pfrags(2); pv_phase(2)
    e("s_mov_b32 s50, 0x05040100\ns_mov_b32 s51, 0x07060302")
    for j in range(4):
        g.wait(f"wo{8*j+7}")
        src = WOB + 16 * (j + 1); dst = WOB + 16 * j
        for jc in range(4):
            for p in range(4):
                a = src + 2 * (2 * p) + (jc >> 1); b = src + 2 * (2 * p + 1) + (jc >> 1)
                e(f"v_perm_b32 v{dst+4*jc+p}, v{b}, v{a}, s{50 + (jc & 1)}")
    pfrags(3)
    g.wait("sa")
    ll, lg = g.newlabel("Lsl"), g.newlabel("Lsg")
    e("s_mov_b32 s61, 0")
    g.label(ll)
    e(f"""
    v_max_u32 v31, v22, v23
    v_cmp_ne_u32 vcc, -1, v31
    s_nop 3
    s_cmp_eq_u64 vcc, -1
    s_cbranch_scc1 {lg}
    buffer_load_dwordx2 v[22:23], v30, s[36:39], s96 offen sc1
    s_waitcnt vmcnt(0)
    s_add_u32 s61, s61, 1
    s_cmp_lt_u32 s61, {spin_limit}
    s_cbranch_scc1 {ll}
    """)
    g.label(lg)
    e("v_mov_b32 v31, v22")
    xreduce(31, 24, "v_max_f32")
    e("""
    v_sub_f32 v22, v22, v31
    v_sub_f32 v24, v21, v31
    v_exp_f32 v22, v22
    v_exp_f32 v24, v24
    s_nop 0
    v_mul_f32 v22, v22, v23
    """)
    xreduce(22, 23, "v_add_f32")
    e(f"""
    v_rcp_f32 v22, v22
    s_lshl_b32 s50, s44, 6
    s_add_u32 s50, s50, {SCL}
    v_lshlrev_b32 v31, 2, v2
    v_add_u32 v31, s50, v31
    v_mul_f32 v24, v24, v22
    v_lshlrev_b32 v30, 4, v3
    v_add_u32 v30, s50, v30
    ds_write_b32 v31, v24
    s_waitcnt lgkmcnt(0)
    ds_read_b128 v[{SC}:{SC+3}], v30
    """)
    e(f"""
    v_lshlrev_b32 v24, 11, v3
    v_lshl_add_u32 v24, v2, 4, v24
    s_lshl_b32 s50, s45, 15
    s_lshl_b32 s51, s43, 13
    s_add_u32 s50, s50, s51
    s_lshl_b32 s51, s44, 8
    s_add_u32 s50, s50, s51
    s_add_u32 s96, s50, {MSG1}
    v_and_b32 v30, 1, v3
    v_cmp_eq_u32 s[4:5], 1, v30
    v_lshlrev_b32 v30, 4, v30
    v_cmp_le_u32 s[6:7], 2, v3
    v_lshlrev_b32 v31, 8, v3
    v_lshl_add_u32 v31, v2, 1, v31
    s_lshl_b32 s50, s44, 5
    s_add_u32 s50, s50, {OB}
    v_add_u32 v31, s50, v31
    v_and_b32 v27, 3, v2
    v_lshlrev_b32 v27, 8, v27
    v_lshl_add_u32 v27, v3, 4, v27
    v_add_u32 v27, {OB}, v27
    """)
    g.wait("v15")
    e("s_waitcnt lgkmcnt(0)\ns_barrier")
    stamp()
    pv_phase(3)
    g.nop(8)
    for i in range(4):
        e(f"v_mul_f32 v{PVA+i}, v{PVA+i}, v{SC+i}")
    for i in range(4):
        e(f"v_min_u32 v{PVA+i}, -2, v{PVA+i}")
    g.vm(f"buffer_store_dwordx4 v[{PVA}:{PVA+3}], v16, s[36:39], 0 offen sc1", "m1")
    stamp()
    ll, lg = g.newlabel("Lm1l"), g.newlabel("Lm1g")
    R = 48; R2 = 52
    e("s_mov_b32 s61, 0")
    g.label(ll)
    e(f"""
    buffer_load_dwordx4 v[{R}:{R+3}], v24, s[36:39], s96 offen sc1
    s_waitcnt vmcnt(0)
    v_max3_u32 v28, v{R}, v{R+1}, v{R+2}
    v_max_u32 v28, v28, v{R+3}
    v_cmp_ne_u32 vcc, -1, v28
    s_nop 3
    s_cmp_eq_u64 vcc, -1
    s_cbranch_scc1 {lg}
    s_add_u32 s61, s61, 1
    s_cmp_lt_u32 s61, {spin_limit}
    s_cbranch_scc1 {ll}
    """)
    g.label(lg)
    stamp()
    def xsum4(a, t):
        for sw in ("v_permlane32_swap_b32", "v_permlane16_swap_b32"):
            for i in range(4): e(f"v_mov_b32 v{t+i}, v{a+i}")
            e("s_nop 0")
            for i in range(4): e(f"{sw} v{a+i}, v{t+i}")
            e("s_nop 0")
            e(f"v_pk_add_f32 v[{a}:{a+1}], v[{a}:{a+1}], v[{t}:{t+1}]\nv_pk_add_f32 v[{a+2}:{a+3}], v[{a+2}:{a+3}], v[{t+2}:{t+3}]")
    xsum4(R, R2)
    e(f"""
    v_cvt_pk_bf16_f32 v28, v{R}, v{R+1}
    v_cvt_pk_bf16_f32 v29, v{R+2}, v{R+3}
    s_nop 0
    v_cndmask_b32 v28, v28, v29, s[6:7]
    v_lshrrev_b32 v28, v30, v28
    ds_write_b16 v31, v28
    s_waitcnt lgkmcnt(0)
    s_barrier
    """)
    AF = 32; OA = 64
    for j in range(4):
        e(f"ds_read_b128 v[{AF+4*j}:{AF+4*j+3}], v27 offset:{64*j}")
    for j in range(4):
        e(f"s_waitcnt lgkmcnt({3-j})")
        for jc in range(4):
            c = "0" if j == 0 else f"v[{OA+4*jc}:{OA+4*jc+3}]"
            b = WOB + 16 * j + 4 * jc
            e(f"v_mfma_f32_16x16x32_bf16 v[{OA+4*jc}:{OA+4*jc+3}], v[{AF+4*j}:{AF+4*j+3}], v[{b}:{b+3}], {c}")
    g.nop(8)
    for r in range(4):
        e(f"""
        v_cndmask_b32 v{48+r}, v{OA+r}, v{OA+4+r}, s[4:5]
        v_cndmask_b32 v{52+r}, v{OA+8+r}, v{OA+12+r}, s[4:5]
        """)
    for r in range(4):
        e(f"v_cndmask_b32 v{48+r}, v{48+r}, v{52+r}, s[6:7]")
    for r in range(4):
        e(f"v_min_u32 v{48+r}, -2, v{48+r}")
    g.vm("buffer_store_dwordx4 v[48:51], v17, s[36:39], 0 offen sc1", "m2")
    stamp()
    lend = g.newlabel("Lend")
    e(f"s_cmp_lg_u32 s44, 0\ns_cbranch_scc1 {lend}")
    e(f"""
    v_lshlrev_b32 v24, 4, v1
    s_lshl_b32 s50, s42, 18
    s_lshl_b32 s51, s63, 5
    s_add_u32 s50, s50, s51
    s_add_u32 s50, s50, {MSG2}
    s_add_u32 s51, s50, 4096
    s_mov_b32 s61, 0
    v_lshlrev_b32 v25, 10, v3
    v_lshl_add_u32 v25, v2, 1, v25
    s_lshl_b32 s96, s42, 12
    s_lshr_b32 s97, s63, 3
    s_add_u32 s96, s96, s97
    """)
    ll, lg = g.newlabel("Lm2l"), g.newlabel("Lm2g")
    g.label(ll)
    FB = 80
    for i in range(8):
        e(f"buffer_load_dwordx4 v[{FB+4*i}:{FB+4*i+3}], v24, s[36:39], s{50 + i // 4} offen offset:{(i % 4) * 1024} sc1")
    e("s_waitcnt vmcnt(0)")
    e(f"v_max3_u32 v28, v{FB}, v{FB+1}, v{FB+2}")
    for i in range(3, 31, 2):
        e(f"v_max3_u32 v28, v28, v{FB+i}, v{FB+i+1}")
    e(f"""
    v_max_u32 v28, v28, v{FB+31}
    v_cmp_ne_u32 vcc, -1, v28
    s_nop 3
    s_cmp_eq_u64 vcc, -1
    s_cbranch_scc1 {lg}
    s_add_u32 s61, s61, 1
    s_cmp_lt_u32 s61, {spin_limit}
    s_cbranch_scc1 {ll}
    """)
    g.label(lg)
    stamp()
    for st in (4, 2, 1):
        for w in range(st):
            a = FB + 4 * w; b = FB + 4 * (w + st)
            e(f"v_pk_add_f32 v[{a}:{a+1}], v[{a}:{a+1}], v[{b}:{b+1}]\nv_pk_add_f32 v[{a+2}:{a+3}], v[{a+2}:{a+3}], v[{b+2}:{b+3}]")
    xsum4(FB, FB + 4)
    e(f"""
    v_cvt_pk_bf16_f32 v28, v{FB}, v{FB+1}
    v_cvt_pk_bf16_f32 v29, v{FB+2}, v{FB+3}
    s_nop 0
    v_cndmask_b32 v28, v28, v29, s[6:7]
    v_lshrrev_b32 v28, v30, v28
    buffer_store_short v28, v25, s[28:31], s96 offen
    """)
    g.label(lend)
    stamp()
    stamp_store()
    e("s_endpgm")

    g.label("L_aux")
    stamp(0)
    e(f"""
    s_setprio 3
    v_mov_b32 v20, -1
    v_mov_b32 v21, -1
    v_mov_b32 v22, -1
    v_mov_b32 v23, -1
    v_lshlrev_b32 v4, 4, v1
    s_lshl_b32 s50, s42, 15
    s_lshl_b32 s51, s40, 12
    s_add_u32 s50, s50, s51
    s_lshl_b32 s51, s43, 10
    s_add_u32 s50, s50, s51
    v_mov_b32 v5, 0
    v_mov_b32 v6, s94
    buffer_store_dwordx4 v[20:23], v4, s[36:39], s50 offen sc1
    buffer_store_dwordx4 v[20:23], v5, s[36:39], s95 offen sc1
    ds_write_b32 v6, v5
    s_lshl_b32 s50, s40, 5
    v_mov_b32 v7, s50
    v_mov_b32 v8, 1
    s_waitcnt lgkmcnt(0)
    s_barrier
    s_waitcnt vmcnt(0)
    """)
    stamp(1)
    e(f"""
    s_mov_b64 exec, 1
    buffer_atomic_add v8, v7, s[32:35], 0 offen sc0 sc1
    s_mov_b64 exec, -1
    v_lshlrev_b32 v9, 10, v1
    s_lshl_b32 s50, s40, 7
    s_add_u32 s50, s50, {GOW}
    v_mov_b32 v10, 1
    s_waitcnt vmcnt(0)
    v_readfirstlane_b32 s51, v8
    s_nop 3
    s_cmp_lg_u32 s51, 31
    s_cbranch_scc1 L_aux1
    s_mov_b32 exec_lo, -1
    s_mov_b32 exec_hi, 0
    buffer_store_dword v10, v9, s[36:39], s50 offen sc1
    s_mov_b64 exec, -1
    """)
    g.label("L_aux1")
    stamp(2)
    e("s_mov_b32 s61, 0")
    g.label("L_aux2")
    e(f"""
    ds_read_b32 v11, v6
    s_waitcnt lgkmcnt(0)
    v_readfirstlane_b32 s50, v11
    s_nop 3
    s_cmp_eq_u32 s50, 8
    s_cbranch_scc1 L_aux3
    s_sleep 1
    s_add_u32 s61, s61, 1
    s_cmp_lt_u32 s61, {spin_limit}
    s_cbranch_scc1 L_aux2
    """)
    g.label("L_aux3")
    stamp(3)
    e(f"""
    v_mov_b32 v11, 0x100
    ds_write_b32 v6, v11
    buffer_load_dword v12, v5, s[36:39], s95 offen sc1
    v_add_u32 v26, {AUX2}, v4
    v_lshrrev_b32 v27, 2, v2
    v_lshlrev_b32 v27, 15, v27
    v_and_b32 v28, 3, v2
    v_lshl_add_u32 v27, v28, 8, v27
    v_lshl_add_u32 v27, v3, 3, v27
    s_lshl_b32 s50, s40, 2
    s_lshr_b32 s51, s41, 3
    s_add_u32 s50, s50, s51
    s_lshl_b32 s50, s50, 10
    s_and_b32 s51, s41, 7
    s_lshl_b32 s51, s51, 5
    s_add_u32 s50, s50, s51
    s_add_u32 s51, s50, 0x20000
    """)
    RT = 32
    for rt in range(2):
        for w in range(8):
            r = RT + 32 * rt + 4 * w
            e(f"ds_read_b128 v[{r}:{r+3}], v26 offset:{w*2048+rt*1024}")
        e("s_waitcnt lgkmcnt(0)")
    for rt in range(2):
        for st in (4, 2, 1):
            for w in range(st):
                a = RT + 32 * rt + 4 * w; b = a + 4 * st
                e(f"v_pk_add_f32 v[{a}:{a+1}], v[{a}:{a+1}], v[{b}:{b+1}]\nv_pk_add_f32 v[{a+2}:{a+3}], v[{a+2}:{a+3}], v[{b+2}:{b+3}]")
        a = RT + 32 * rt
        e(f"v_cvt_pk_bf16_f32 v{28+2*rt}, v{a}, v{a+1}\nv_cvt_pk_bf16_f32 v{29+2*rt}, v{a+2}, v{a+3}")
        e(f"v_min_u32 v{28+2*rt}, -2, v{28+2*rt}\nv_min_u32 v{29+2*rt}, -2, v{29+2*rt}")
    e("s_mov_b32 s61, 0")
    g.label("L_aux4")
    e(f"""
    s_waitcnt vmcnt(0)
    v_readfirstlane_b32 s52, v12
    s_nop 3
    s_cmp_eq_u32 s52, 1
    s_cbranch_scc1 L_aux5
    buffer_load_dword v12, v5, s[36:39], s95 offen sc1
    s_add_u32 s61, s61, 1
    s_cmp_lt_u32 s61, {spin_limit}
    s_cbranch_scc1 L_aux4
    """)
    g.label("L_aux5")
    e("""
    buffer_store_dwordx2 v[28:29], v27, s[36:39], s50 offen sc1
    buffer_store_dwordx2 v[30:31], v27, s[36:39], s51 offen sc1
    """)
    stamp(4)
    e(f"""
    v_lshlrev_b32 v16, 13, v3
    v_lshl_add_u32 v16, v2, 4, v16
    s_lshl_b32 s50, s45, 15
    s_lshl_b32 s51, s43, 11
    s_add_u32 s50, s50, s51
    s_add_u32 s50, s50, {MSG1}
    v_lshrrev_b32 v17, 2, v2
    v_lshlrev_b32 v17, 13, v17
    v_and_b32 v18, 3, v2
    v_lshl_add_u32 v17, v18, 6, v17
    v_lshl_add_u32 v17, v3, 4, v17
    s_lshl_b32 s51, s42, 18
    s_add_u32 s51, s51, s63
    s_add_u32 s51, s51, {MSG2}
    v_and_b32 v18, 7, v1
    v_lshlrev_b32 v18, 4, v18
    s_lshl_b32 s52, s45, 9
    s_lshl_b32 s53, s43, 7
    s_add_u32 s52, s52, s53
    s_add_u32 s52, s52, {STATS}
    buffer_store_dwordx4 v[20:23], v18, s[36:39], s52 offen sc1
    """)
    for w in range(8):
        e(f"buffer_store_dwordx4 v[20:23], v16, s[36:39], s50 offen offset:{256*w} sc1")
    for w in range(8):
        e(f"buffer_store_dwordx4 v[20:23], v17, s[36:39], s51 offen sc1\ns_add_u32 s51, s51, 32768")
    e(f"""
    v_mov_b32 v7, 16
    v_mov_b32 v8, 1
    v_lshlrev_b32 v9, 7, v1
    s_waitcnt vmcnt(0)
    """)
    stamp(5)
    e(f"""
    s_mov_b64 exec, 1
    buffer_atomic_add v8, v7, s[32:35], 0 offen sc0 sc1
    s_mov_b64 exec, -1
    s_waitcnt vmcnt(0)
    v_readfirstlane_b32 s51, v8
    s_nop 3
    s_cmp_lg_u32 s51, 255
    s_cbranch_scc1 L_aux6
    s_mov_b32 s50, {GOW}
    buffer_store_dword v10, v9, s[36:39], s50 offen offset:4 sc1
    s_add_u32 s50, s50, 8192
    buffer_store_dword v10, v9, s[36:39], s50 offen offset:4 sc1
    s_add_u32 s50, s50, 8192
    buffer_store_dword v10, v9, s[36:39], s50 offen offset:4 sc1
    s_add_u32 s50, s50, 8192
    buffer_store_dword v10, v9, s[36:39], s50 offen offset:4 sc1
    """)
    g.label("L_aux6")
    stamp(6)
    stamp_store()

    hdr = f"""; fused GQA decode block: q-proj -> split-KV attention -> out-proj, one launch, in-kernel hand-offs
; @launch grid=(256,1,1) block=(576,1,1) lds={LDS_TOTAL}
.amdgcn_target "amdgcn-amd-amdhsa--gfx950"
.text
.globl {KNAME}
.p2align 8
.type {KNAME},@function
{KNAME}:
"""
    ftr = f"""L_done:
    s_endpgm
.section .rodata,"a"
.p2align 6
.amdhsa_kernel {KNAME}
  .amdhsa_next_free_vgpr 168
  .amdhsa_next_free_sgpr 102
  .amdhsa_accum_offset 168
  .amdhsa_group_segment_fixed_size 0
  .amdhsa_kernarg_size 64
  .amdhsa_user_sgpr_count 2
  .amdhsa_user_sgpr_kernarg_segment_ptr 1
  .amdhsa_system_sgpr_workgroup_id_x 1
  .amdhsa_float_denorm_mode_32 3
.end_amdhsa_kernel
"""
    return hdr + g.text() + ftr

if __name__ == "__main__":
    open("g2.s", "w").write(gen())
    open("g2_st.s", "w").write(gen(stamps=True))
    open("g2_th3_st.s", "w").write(gen(stamps=True, TH=3))
```

```python
import sys
from gen1 import G, KNAME

QWS = 0
STATS = 0x80000
MSG1 = 0x100000
MSG2 = 0x300000
DBGA = 0x800000
FAST = 0x1000000
AUX1 = 131072
AUX2 = 147456
MX = AUX2
LS = AUX2 + 512
SCL = AUX2 + 1024
NON = AUX2 + 1536
SYN = AUX2 + 1600
PROG = 0
C_PART, F_PD, F_Q, C_M, C_L, F_N, F_SCL = [8 + 4 * i for i in range(7)]
C_KR = 40
C_M2 = 56
OB = AUX2 + 2048
QL = AUX2 + 4096
LDS_TOTAL = 163840
TAGB = 11
TMASK = (1 << TAGB) - 1
NW = 12

def gen(W=16, stamps=False, pol="nt", spin_limit=20000, THW=6, dual=True, fastpol="", slowmask=15, ldprio=3, wo_start=1, W0=None, xfirst=False, dbgwq=False, xpol="", wqpol="nt", forceslow=False, pretouch=True, m2wait=True, pt_at=6, ptpol="sc1 nt", ld_early=0, ashift=0, pt0=True, pt0q=True):
    g = G()
    e = g.e
    nst = [0]
    def stamp(idx=None):
        if not stamps: return
        i = nst[0] if idx is None else idx
        if idx is None: nst[0] += 1
        assert i < 14
        e(f"s_memrealtime s[100:101]\ns_waitcnt lgkmcnt(0)\ns_mov_b32 s{80+i}, s100")
    def stamp_store():
        if not stamps: return
        e(f"s_mul_i32 s50, s2, {NW}\ns_add_u32 s50, s50, s44\ns_lshl_b32 s50, s50, 6\ns_add_u32 s50, s50, {DBGA}\nv_mov_b32 v24, 0\ns_mov_b64 exec, 1")
        for i in range(0, 16, 4):
            for k in range(4): e(f"v_mov_b32 v{28+k}, s{80+i+k}")
            e(f"buffer_store_dwordx4 v[28:31], v24, s[36:39], s50 offen offset:{4*i}\ns_nop 1")
    def xreduce(r, tmp, op):
        for sw in ("v_permlane32_swap_b32", "v_permlane16_swap_b32"):
            e(f"v_mov_b32 v{tmp}, v{r}\ns_nop 1\n{sw} v{r}, v{tmp}\ns_nop 0\n{op} v{r}, v{r}, v{tmp}")
    def xsum4(a, t):
        for sw in ("v_permlane32_swap_b32", "v_permlane16_swap_b32"):
            for i in range(4): e(f"v_mov_b32 v{t+i}, v{a+i}")
            e("s_nop 0")
            for i in range(4): e(f"{sw} v{a+i}, v{t+i}")
            e("s_nop 0")
            e(f"v_pk_add_f32 v[{a}:{a+1}], v[{a}:{a+1}], v[{t}:{t+1}]\nv_pk_add_f32 v[{a+2}:{a+3}], v[{a+2}:{a+3}], v[{t+2}:{t+3}]")
    def spin(word, val, vsyn, vtmp, sleep=1):
        l1, l2 = g.newlabel("Lsp"), g.newlabel("Lspd")
        e("s_mov_b32 s61, 0")
        g.label(l1)
        e(f"""
        ds_read_b32 v{vtmp}, v{vsyn} offset:{word}
        s_waitcnt lgkmcnt(0)
        v_readfirstlane_b32 s60, v{vtmp}
        s_nop 3
        s_cmp_ge_u32 s60, {val}
        s_cbranch_scc1 {l2}
        {f's_sleep {sleep}' if sleep else ''}
        s_add_u32 s61, s61, 1
        s_cmp_lt_u32 s61, {spin_limit * 20}
        s_cbranch_scc1 {l1}
        """)
        g.label(l2)
    def spin2(val, vsyn, vtmp, sleep=1):
        l1, l2 = g.newlabel("Lsp"), g.newlabel("Lspd")
        e("s_mov_b32 s61, 0")
        g.label(l1)
        e(f"""
        ds_read_b64 v[{vtmp}:{vtmp+1}], v{vsyn} offset:{PROG}
        s_waitcnt lgkmcnt(0)
        v_min_u32 v{vtmp}, v{vtmp}, v{vtmp+1}
        s_nop 0
        v_readfirstlane_b32 s60, v{vtmp}
        s_nop 3
        s_cmp_ge_u32 s60, {val}
        s_cbranch_scc1 {l2}
        {f's_sleep {sleep}' if sleep else ''}
        s_add_u32 s61, s61, 1
        s_cmp_lt_u32 s61, {spin_limit * 20}
        s_cbranch_scc1 {l1}
        """)
        g.label(l2)
    def arrive(word, vsyn, vone):
        e(f"s_waitcnt lgkmcnt(0)\ns_mov_b64 exec, 1\nds_add_u32 v{vsyn}, v{vone} offset:{word}\ns_mov_b64 exec, -1")
    def srd(d, p, size):
        e(f"s_mov_b32 s{d}, s{p}\ns_mov_b32 s{d+1}, s{p+1}\ns_mov_b32 s{d+2}, {size}\ns_mov_b32 s{d+3}, 0x00020000")
    e(f"""
    s_cmp_ge_u32 s2, 256
    s_cbranch_scc1 L_done
    s_load_dwordx16 s[64:79], s[0:1], 0
    s_memrealtime s[98:99]
    v_and_b32 v1, 63, v0
    v_lshrrev_b32 v4, 6, v0
    v_and_b32 v2, 15, v0
    v_bfe_u32 v3, v0, 4, 2
    v_readfirstlane_b32 s44, v4
    s_and_b32 s40, s2, 7
    s_lshr_b32 s41, s2, 3
    s_lshr_b32 s42, s41, 2
    s_and_b32 s43, s41, 3
    s_lshl_b32 s45, s42, 3
    s_add_u32 s45, s45, s40
    s_lshl_b32 s51, s40, 2
    s_add_u32 s51, s51, s43
    s_lshl_b32 s63, s51, 8
    s_add_u32 s50, s42, {ashift}
    s_and_b32 s50, s50, 7
    s_lshl_b32 s95, s40, 3
    s_add_u32 s95, s95, s50
    s_lshl_b32 s47, s44, 14
    s_mov_b32 s3, {FAST}
    s_waitcnt lgkmcnt(0)
    """)
    srd(36, 78, 0x10000000)
    e("s_cmp_ge_u32 s44, 8\ns_cbranch_scc1 L_op")
    srd(20, 70, 0x400000); srd(8, 64, 32768); srd(28, 74, 32768)
    stamp()
    def ld_wq():
        e("""
        v_lshrrev_b32 v14, 1, v1
        v_lshlrev_b32 v14, 13, v14
        v_and_b32 v15, 1, v1
        v_lshl_add_u32 v14, v15, 4, v14
        s_lshl_b32 s50, s44, 19
        s_lshl_b32 s51, s95, 7
        s_add_u32 s50, s50, s51
        s_lshl_b32 s51, s43, 5
        s_add_u32 s50, s50, s51
        s_lshl_b32 s51, s44, 11
        """)
        e(f"s_add_u32 s62, s51, {AUX1}\ns_mov_b32 m0, s62\ns_nop 0")
        e(f"buffer_load_dwordx4 v14, s[20:23], s50 offen {wqpol} lds")
        e(f"s_add_u32 s50, s50, 0x40000\ns_add_u32 m0, s62, 1024\ns_nop 0")
        e(f"buffer_load_dwordx4 v14, s[20:23], s50 offen {wqpol} lds")
    def ld_x():
        e("""
        v_lshrrev_b32 v15, 3, v1
        v_and_b32 v16, 7, v1
        v_xor_b32 v16, v16, v15
        v_lshlrev_b32 v16, 4, v16
        v_lshl_add_u32 v15, v15, 10, v16
        s_lshl_b32 s50, s44, 7
        """)
        for i in range(4):
            e(f"s_add_u32 m0, s47, {12288 + 1024*i}\ns_add_u32 s51, s50, {8192*i}")
            e(f"buffer_load_dwordx4 v15, s[8:11], s51 offen {xpol if xpol is not None else pol} lds")
    if xfirst:
        ld_x(); ld_wq()
    else:
        ld_wq(); ld_x()
    e(f"""
    s_barrier
    v_lshrrev_b32 v24, 2, v2
    v_lshl_add_u32 v24, v3, 3, v24
    v_lshlrev_b32 v24, 5, v24
    v_and_b32 v25, 3, v1
    v_lshl_add_u32 v24, v25, 3, v24
    v_add_u32 v24, s62, v24
    v_and_b32 v25, 7, v2
    v_xor_b32 v25, v25, v3
    v_lshlrev_b32 v25, 4, v25
    v_lshl_add_u32 v25, v2, 7, v25
    v_add_u32 v25, s47, v25
    v_xor_b32 v26, 64, v25
    v_lshlrev_b32 v27, 4, v1
    v_add_u32 v27, s47, v27
    v_mov_b32 v20, {SYN}
    v_mov_b32 v21, 1
    s_lshr_b32 s50, s44, 2
    s_lshl_b32 s50, s50, 2
    v_add_u32 v19, s50, v20
    v_lshlrev_b32 v16, 13, v3
    v_lshl_add_u32 v16, v2, 4, v16
    s_lshl_b32 s50, s45, 15
    s_lshl_b32 s51, s43, 11
    s_add_u32 s50, s50, s51
    s_lshl_b32 s51, s44, 8
    s_add_u32 s50, s50, s51
    s_add_u32 s50, s50, {MSG1}
    v_add_u32 v16, s50, v16
    v_lshlrev_b32 v17, 8, v2
    v_lshl_add_u32 v17, v3, 4, v17
    v_add_u32 v17, {QL}, v17
    v_mov_b32 v18, {NON}
    v_xor_b32 v12, v2, v3
    v_lshlrev_b32 v12, 4, v12
    v_lshlrev_b32 v13, 8, v2
    v_add_u32 v13, s47, v13
    v_add_u32 v28, v13, v12
    v_xor_b32 v29, 64, v12
    v_add_u32 v29, v13, v29
    v_xor_b32 v30, 0x80, v12
    v_add_u32 v30, v13, v30
    v_xor_b32 v31, 0xc0, v12
    v_add_u32 v31, v13, v31
    """)
    if dbgwq:
        e(f"s_waitcnt vmcnt({2 if xfirst else 4})")
        stamp(10)
    e("s_waitcnt vmcnt(0)")
    stamp()
    XF = 96; WF = 112; QA = 120
    for d in range(2):
        e(f"ds_read_b64_tr_b16 v[{WF+4*d}:{WF+4*d+1}], v24 offset:{1024*d}")
        e(f"ds_read_b64_tr_b16 v[{WF+4*d+2}:{WF+4*d+3}], v24 offset:{1024*d+128}")
    for rt in range(2):
        for d in range(2):
            r = XF + 8 * rt + 4 * d
            e(f"ds_read_b128 v[{r}:{r+3}], v{25+d} offset:{12288 + 2048*rt}")
    e("s_waitcnt lgkmcnt(0)")
    for rt in range(2):
        e(f"v_mfma_f32_16x16x32_bf16 v[{QA+4*rt}:{QA+4*rt+3}], v[{WF}:{WF+3}], v[{XF+8*rt}:{XF+8*rt+3}], 0")
    for rt in range(2):
        e(f"v_mfma_f32_16x16x32_bf16 v[{QA+4*rt}:{QA+4*rt+3}], v[{WF+4}:{WF+7}], v[{XF+8*rt+4}:{XF+8*rt+7}], v[{QA+4*rt}:{QA+4*rt+3}]")
    g.nop(8)
    e(f"ds_write_b128 v27, v[{QA}:{QA+3}] offset:12288\nds_write_b128 v27, v[{QA+4}:{QA+7}] offset:13312")
    arrive(C_PART, 20, 21)
    stamp()
    KF = 32
    for t in range(4):
        spin(PROG, t + 1, 19, 22, sleep=2)
        for j in range(4):
            r = KF + 16 * t + 4 * j
            e(f"ds_read_b128 v[{r}:{r+3}], v{28+j} offset:{4096*t}")
        arrive(C_KR + 4 * t, 20, 21)
    stamp()
    spin(F_Q, 1, 20, 22, sleep=2)
    stamp()
    QF = 96; SA = 112; T = 128
    for j in range(4):
        e(f"ds_read_b128 v[{QF+4*j}:{QF+4*j+3}], v17 offset:{64*j}")
    e("ds_read_b64 v[22:23], v18")
    for j in range(4):
        e(f"s_waitcnt lgkmcnt({4-j})")
        for t in range(4):
            r = KF + 16 * t + 4 * j
            c = "0" if j == 0 else f"v[{SA+4*t}:{SA+4*t+3}]"
            e(f"v_mfma_f32_16x16x32_bf16 v[{SA+4*t}:{SA+4*t+3}], v[{r}:{r+3}], v[{QF+4*j}:{QF+4*j+3}], {c}")
    e(f"""
    s_waitcnt lgkmcnt(0)
    v_and_b32 v4, {TMASK}, v22
    v_bfe_u32 v5, v22, {TAGB}, {TAGB}
    v_alignbit_b32 v6, v23, v22, {2*TAGB}
    v_and_b32 v6, {TMASK}, v6
    v_bfe_u32 v7, v23, {3*TAGB-32}, {TAGB}
    """)
    e("s_mov_b32 s50, 0x3db504f3\ns_mov_b32 s51, 0xffff0000\ns_mov_b32 s99, 0x3fb8aa3b")
    g.nop(2)
    for p in range(8):
        a = SA + 2 * p
        e(f"""
        v_cvt_pk_bf16_f32 v{T}, v{a}, v{a+1}
        v_lshlrev_b32 v{a}, 16, v{T}
        v_and_b32 v{a+1}, s51, v{T}
        v_mul_f32 v{a}, s50, v{a}
        v_mul_f32 v{a+1}, s50, v{a+1}
        v_cvt_pk_bf16_f32 v{T}, v{a}, v{a+1}
        v_lshlrev_b32 v{a}, 16, v{T}
        v_and_b32 v{a+1}, s51, v{T}
        """)
    e(f"v_max3_f32 v{T}, v{SA}, v{SA+1}, v{SA+2}")
    for i in range(3, 15, 2):
        e(f"v_max3_f32 v{T}, v{T}, v{SA+i}, v{SA+i+1}")
    e(f"v_max_f32 v{T}, v{T}, v{SA+15}")
    xreduce(T, T + 1, "v_max_f32")
    e(f"""
    v_lshlrev_b32 v12, 5, v2
    v_add_u32 v12, {MX}, v12
    s_lshl_b32 s50, s44, 2
    v_add_u32 v13, s50, v12
    ds_write_b32 v13, v{T}
    """)
    arrive(C_M, 20, 21)
    spin(C_M, 8, 20, 22)
    e(f"ds_read_b128 v[{T+4}:{T+7}], v12\nds_read_b128 v[{T+8}:{T+11}], v12 offset:16\ns_waitcnt lgkmcnt(0)")
    e(f"""
    v_max3_f32 v{T}, v{T+4}, v{T+5}, v{T+6}
    v_max3_f32 v{T}, v{T}, v{T+7}, v{T+8}
    v_max3_f32 v{T}, v{T}, v{T+9}, v{T+10}
    v_max_f32 v{T}, v{T}, v{T+11}
    v_mul_f32 v23, s99, v{T}
    """)
    for i in range(16):
        e(f"v_fma_f32 v{SA+i}, v{SA+i}, s99, -v23")
    for i in range(16):
        e(f"v_exp_f32 v{SA+i}, v{SA+i}")
    e("s_nop 0")
    e(f"v_lshlrev_b32 v14, 3, v1\nv_add_u32 v14, s62, v14")
    for t in range(4):
        a = SA + 4 * t
        e(f"v_cvt_pk_bf16_f32 v{T+2*t}, v{a}, v{a+1}\nv_cvt_pk_bf16_f32 v{T+2*t+1}, v{a+2}, v{a+3}")
        e(f"ds_write_b64 v14, v[{T+2*t}:{T+2*t+1}] offset:{512*t}")
    for st in (8, 4, 2):
        for i in range(0, st, 2):
            a = SA + i; b = SA + i + st
            e(f"v_pk_add_f32 v[{a}:{a+1}], v[{a}:{a+1}], v[{b}:{b+1}]")
    e(f"v_add_f32 v{SA}, v{SA}, v{SA+1}")
    xreduce(SA, SA + 1, "v_add_f32")
    e(f"ds_write_b32 v13, v{SA} offset:512")
    arrive(C_L, 20, 21)
    PF = 32; BF = 112; PVA = 160; SC = 164
    e(f"""
    v_lshrrev_b32 v24, 2, v2
    v_lshl_add_u32 v24, v3, 2, v24
    v_and_b32 v25, 7, v24
    v_lshlrev_b32 v25, 1, v25
    v_bfe_u32 v27, v1, 1, 1
    s_lshl_b32 s50, s44, 1
    v_add_u32 v27, s50, v27
    v_xor_b32 v25, v25, v27
    v_lshlrev_b32 v25, 4, v25
    v_lshl_add_u32 v25, v24, 8, v25
    v_and_b32 v27, 1, v1
    v_lshl_add_u32 v25, v27, 3, v25
    v_add_u32 v26, 0x10000, v25
    v_lshlrev_b32 v27, 3, v1
    v_add_u32 v27, {AUX1}, v27
    v_and_b32 v30, 1, v3
    v_lshlrev_b32 v30, 4, v30
    v_cmp_le_u32 s[6:7], 2, v3
    v_lshlrev_b32 v19, 4, v3
    v_add_u32 v19, {SCL}, v19
    s_mov_b32 s98, {(~TMASK) & 0xffffffff}
    """)
    spin(C_L, 8, 20, 22)
    stamp()
    lnp = g.newlabel("Lnp")
    A = 128
    e(f"""
    s_cmp_lg_u32 s44, 1
    s_cbranch_scc1 {lnp}
    ds_read_b128 v[{A+8}:{A+11}], v12 offset:512
    ds_read_b128 v[{A+12}:{A+15}], v12 offset:528
    ds_read_b64 v[{A+18}:{A+19}], v18
    v_lshlrev_b32 v{A+21}, 4, v2
    s_lshl_b32 s50, s45, 10
    s_add_u32 s50, s50, {STATS}
    s_lshl_b32 s51, s43, 8
    s_add_u32 s51, s51, s50
    s_getreg_b32 s55, hwreg(HW_REG_XCC_ID)
    s_and_b32 s55, s55, 15
    v_mov_b32 v{A+16}, v23
    s_waitcnt lgkmcnt(0)
    v_pk_add_f32 v[{A+8}:{A+9}], v[{A+8}:{A+9}], v[{A+10}:{A+11}]
    v_pk_add_f32 v[{A+12}:{A+13}], v[{A+12}:{A+13}], v[{A+14}:{A+15}]
    v_pk_add_f32 v[{A+8}:{A+9}], v[{A+8}:{A+9}], v[{A+12}:{A+13}]
    v_add_f32 v{A+17}, v{A+8}, v{A+9}
    v_and_b32 v{A+17}, -16, v{A+17}
    v_or_b32 v{A+17}, s55, v{A+17}
    s_mov_b64 exec, 0xffff
    """)
    if dual: e(f"s_add_u32 s55, s51, s3\nbuffer_store_dwordx4 v[{A+16}:{A+19}], v{A+21}, s[36:39], s55 offen {fastpol}")
    e(f"""
    buffer_store_dwordx4 v[{A+16}:{A+19}], v{A+21}, s[36:39], s51 offen sc1
    s_mov_b64 exec, -1
    """)
    g.label(lnp)
    for k in range(4):
        for i in range(4):
            r = PF + 16 * k + 4 * i
            e(f"ds_read2st64_b64 v[{r}:{r+3}], v27 offset0:{8*i+k} offset1:{8*i+4+k}")
        if k == 1: e("s_waitcnt lgkmcnt(0)")
    first = [True]
    def pv_phase(k):
        for i in range(4):
            for hf in range(2):
                u = 2 * i + hf
                r = BF + 4 * i + 2 * hf
                e(f"ds_read_b64_tr_b16 v[{r}:{r+1}], v{25 if u < 4 else 26} offset:{(u % 4) * 16384 + 4096 * k}")
        for i in range(4):
            e(f"s_waitcnt lgkmcnt({6 - 2*i})")
            c = "0" if first[0] else f"v[{PVA}:{PVA+3}]"
            first[0] = False
            e(f"v_mfma_f32_16x16x32_bf16 v[{PVA}:{PVA+3}], v[{PF+16*k+4*i}:{PF+16*k+4*i+3}], v[{BF+4*i}:{BF+4*i+3}], {c}")
    for k in range(3):
        spin2(5 + k, 20, 22, sleep=2)
        pv_phase(k)
    stamp()
    spin(F_SCL, 1, 20, 22, sleep=1)
    e("s_mov_b32 s94, s60")
    e(f"ds_read_b128 v[{SC}:{SC+3}], v19")
    stamp()
    spin2(8, 20, 22, sleep=0)
    stamp()
    pv_phase(3)
    g.nop(8)
    for i in range(4):
        e(f"v_mul_f32 v{PVA+i}, v{PVA+i}, v{SC+i}")
    for i in range(4):
        e(f"v_and_or_b32 v{PVA+i}, v{PVA+i}, s98, v{4+i}")
    lsl, lsd = g.newlabel("Lsl"), g.newlabel("Lsd")
    e(f"""
    s_cmp_eq_u32 s94, 2
    s_cbranch_scc0 {lsl}
    buffer_store_dwordx4 v[{PVA}:{PVA+3}], v16, s[36:39], 0 offen {fastpol}
    s_branch {lsd}
    """)
    g.label(lsl)
    e(f"buffer_store_dwordx4 v[{PVA}:{PVA+3}], v16, s[36:39], 0 offen sc1")
    g.label(lsd)
    stamp()
    nst[0] = 12
    lend = g.newlabel("Lend")
    e(f"s_cmp_lg_u32 s44, 0\ns_cbranch_scc1 {lend}")
    e(f"""
    v_lshlrev_b32 v24, 4, v1
    s_lshl_b32 s50, s42, 18
    s_lshl_b32 s51, s63, 5
    s_add_u32 s50, s50, s51
    s_add_u32 s50, s50, {MSG2}
    s_add_u32 s51, s50, 4096
    s_mov_b32 s61, 0
    v_lshlrev_b32 v25, 10, v3
    v_and_b32 v26, 3, v2
    v_lshl_add_u32 v25, v26, 1, v25
    v_bfe_u32 v26, v2, 2, 1
    v_lshl_add_u32 v25, v26, 4, v25
    v_lshrrev_b32 v26, 3, v2
    v_lshl_add_u32 v25, v26, 3, v25
    s_lshl_b32 s96, s42, 12
    s_lshr_b32 s97, s63, 3
    s_add_u32 s96, s96, s97
    s_barrier
    """)
    if m2wait:
        spin(C_M2, 4, 20, 22, sleep=1)
        e("s_mov_b32 s61, 0")
    ll, lg = g.newlabel("Lm2l"), g.newlabel("Lm2g")
    g.label(ll)
    FB = 32
    for i in range(8):
        e(f"buffer_load_dwordx4 v[{FB+4*i}:{FB+4*i+3}], v24, s[36:39], s{50 + i // 4} offen offset:{(i % 4) * 1024} sc1")
    e("s_waitcnt vmcnt(0)")
    for i in range(32):
        e(f"v_xor_b32 v{FB+i}, v{FB+i}, v{4 + i % 4}")
    e(f"v_or3_b32 v28, v{FB}, v{FB+1}, v{FB+2}")
    for i in range(3, 31, 2):
        e(f"v_or3_b32 v28, v28, v{FB+i}, v{FB+i+1}")
    e(f"""
    v_or_b32 v28, v28, v{FB+31}
    v_and_b32 v28, {TMASK}, v28
    v_cmp_eq_u32 vcc, 0, v28
    s_nop 3
    s_cmp_eq_u64 vcc, -1
    s_cbranch_scc1 {lg}
    s_add_u32 s61, s61, 1
    s_cmp_lt_u32 s61, {spin_limit}
    s_cbranch_scc1 {ll}
    """)
    g.label(lg)
    stamp()
    for st in (4, 2, 1):
        for w in range(st):
            a = FB + 4 * w; b = FB + 4 * (w + st)
            e(f"v_pk_add_f32 v[{a}:{a+1}], v[{a}:{a+1}], v[{b}:{b+1}]\nv_pk_add_f32 v[{a+2}:{a+3}], v[{a+2}:{a+3}], v[{b+2}:{b+3}]")
    xsum4(FB, FB + 4)
    e(f"""
    v_cvt_pk_bf16_f32 v28, v{FB}, v{FB+1}
    v_cvt_pk_bf16_f32 v29, v{FB+2}, v{FB+3}
    s_nop 0
    v_cndmask_b32 v28, v28, v29, s[6:7]
    v_lshrrev_b32 v28, v30, v28
    buffer_store_short v28, v25, s[28:31], s96 offen
    """)
    g.label(lend)
    stamp()
    stamp_store()
    e("s_endpgm")

    WB = 8
    g.label("L_op")
    srd(24, 72, 0x400000)
    stamp(0)
    e(f"""
    v_mov_b32 v6, {SYN}
    v_mov_b32 v5, 0
    v_mov_b32 v21, 1
    v_mov_b32 v17, {NON}
    v_lshlrev_b32 v4, 13, v3
    v_lshl_add_u32 v4, v2, 4, v4
    s_sub_u32 s48, s44, 8
    s_lshl_b32 s97, s63, 9
    s_lshl_b32 s50, s48, 8
    s_add_u32 s97, s97, s50
    s_bitcmp1_b32 s44, 0
    s_cbranch_scc1 L_ld
    v_lshlrev_b32 v24, 4, v1
    s_setprio 3
    s_cmp_lg_u32 s44, 8
    s_cbranch_scc1 L_w10
    """)
    g.label("L_aux0")
    e(f"""
    v_lshlrev_b32 v7, 2, v2
    v_add_u32 v7, {SYN}, v7
    ds_write_b32 v7, v5
    """)
    if pt0:
        e(f"""
        s_lshl_b32 s50, s42, 16
        s_lshl_b32 s51, s40, 13
        s_add_u32 s50, s50, s51
        s_lshl_b32 s51, s43, 11
        s_add_u32 s50, s50, s51
        s_add_u32 s50, s50, s3
        """)
        if pt0q:
            e("buffer_load_dwordx4 v[32:35], v24, s[36:39], s50 offen sc1\nbuffer_load_dwordx4 v[32:35], v24, s[36:39], s50 offen offset:1024 sc1")
        e(f"""
        s_lshl_b32 s52, s45, 10
        s_add_u32 s52, s52, {STATS + FAST}
        buffer_load_dwordx4 v[32:35], v24, s[36:39], s52 offen sc1
        s_lshl_b32 s50, s45, 15
        s_lshl_b32 s51, s43, 13
        s_add_u32 s50, s50, s51
        s_add_u32 s50, s50, {MSG1}
        s_add_u32 s51, s50, 4096
        """)
        for i in range(8):
            e(f"buffer_load_dwordx4 v[32:35], v24, s[36:39], s{50 + i // 4} offen offset:{(i % 4) * 1024} sc1")
    e(f"""
    s_waitcnt lgkmcnt(0)
    s_barrier
    v_add_u32 v26, 12288, v24
    v_add_u32 v25, 0x10000, v26
    v_lshrrev_b32 v27, 2, v2
    v_lshlrev_b32 v27, 16, v27
    v_and_b32 v28, 3, v2
    v_lshl_add_u32 v27, v28, 9, v27
    v_lshl_add_u32 v27, v3, 4, v27
    s_lshr_b32 s52, s95, 1
    s_lshl_b32 s52, s52, 11
    s_and_b32 s53, s95, 1
    s_lshl_b32 s53, s53, 8
    s_add_u32 s52, s52, s53
    s_lshl_b32 s53, s43, 6
    s_add_u32 s52, s52, s53
    s_add_u32 s53, s52, 0x40000
    """)
    spin(C_PART, 8, 6, 7)
    if pt0: e("s_waitcnt vmcnt(0)")
    stamp(2)
    RT = 32
    for rt in range(2):
        for w in range(8):
            r = RT + 32 * rt + 4 * w
            e(f"ds_read_b128 v[{r}:{r+3}], v{26 if w < 4 else 25} offset:{(w % 4)*16384+rt*1024}")
        e("s_waitcnt lgkmcnt(0)")
    e(f"ds_write_b32 v6, v21 offset:{F_PD}")
    for rt in range(2):
        for st in (4, 2, 1):
            for w in range(st):
                a = RT + 32 * rt + 4 * w; b = a + 4 * st
                e(f"v_pk_add_f32 v[{a}:{a+1}], v[{a}:{a+1}], v[{b}:{b+1}]\nv_pk_add_f32 v[{a+2}:{a+3}], v[{a+2}:{a+3}], v[{b+2}:{b+3}]")
        a = RT + 32 * rt
        e(f"v_cvt_pk_bf16_f32 v{8+4*rt}, v{a}, v{a+1}\nv_cvt_pk_bf16_f32 v{9+4*rt}, v{a+2}, v{a+3}")
    spin(F_N, 1, 6, 7)
    e(f"""
    ds_read_b64 v[10:11], v17
    ds_read_b64 v[14:15], v17
    s_waitcnt lgkmcnt(0)
    v_readfirstlane_b32 s98, v10
    v_readfirstlane_b32 s99, v11
    """)
    stamp(1)
    for rt in range(2):
        if dual: e(f"s_add_u32 s54, s{52+rt}, s3\nbuffer_store_dwordx4 v[{8+4*rt}:{11+4*rt}], v27, s[36:39], s54 offen {fastpol}")
    for rt in range(2):
        e(f"buffer_store_dwordx4 v[{8+4*rt}:{11+4*rt}], v27, s[36:39], s{52+rt} offen sc1")
    stamp(3)
    e("s_branch L_wo")
    g.label("L_w10")
    srd(32, 76, 256)
    e(f"""
    s_or_b32 s99, s99, 0x80000000
    s_cmp_lg_u32 s2, 0
    s_cbranch_scc1 L_n0
    v_mov_b32 v22, s98
    v_mov_b32 v23, s99
    s_mov_b64 exec, 1
    buffer_store_dwordx2 v[22:23], v5, s[32:35], 0 offen sc0 sc1
    s_mov_b64 exec, -1
    s_barrier
    s_branch L_n1
    """)
    g.label("L_n0")
    e("buffer_load_dwordx2 v[22:23], v5, s[32:35], 0 offen sc1\ns_barrier\ns_mov_b32 s61, 0")
    g.label("L_auxn")
    e(f"""
    s_waitcnt vmcnt(0)
    v_readfirstlane_b32 s98, v22
    v_readfirstlane_b32 s99, v23
    s_nop 3
    s_cmp_lt_i32 s99, 0
    s_cbranch_scc1 L_n1
    buffer_load_dwordx2 v[22:23], v5, s[32:35], 0 offen sc1
    s_add_u32 s61, s61, 1
    s_cmp_lt_u32 s61, {spin_limit}
    s_cbranch_scc1 L_auxn
    """)
    g.label("L_n1")
    stamp(1)
    e(f"""
    v_mov_b32 v22, s98
    v_mov_b32 v23, s99
    ds_write_b64 v17, v[22:23]
    s_waitcnt lgkmcnt(0)
    ds_write_b32 v6, v21 offset:{F_N}
    s_lshl_b32 s50, s42, 16
    s_lshl_b32 s51, s40, 13
    s_add_u32 s50, s50, s51
    s_add_u32 s51, s50, 4096
    v_lshlrev_b32 v16, 3, v1
    v_add_u32 v16, {QL}, v16
    """)
    spin(F_PD, 1, 6, 7)
    e("s_mov_b32 s61, 0")
    stamp(3)
    g.label("L_aux4")
    if dual:
        e("s_and_b32 s54, s61, 7\ns_cmp_eq_u32 s54, 7\ns_cselect_b32 s54, 0, s3\ns_add_u32 s55, s51, s54\ns_add_u32 s54, s50, s54")
    else:
        e("s_mov_b32 s54, s50\ns_mov_b32 s55, s51")
    for i in range(8):
        e(f"buffer_load_dwordx4 v[{RT+4*i}:{RT+4*i+3}], v24, s[36:39], s{54 + i // 4} offen offset:{(i % 4) * 1024} sc1")
    e("s_waitcnt vmcnt(0)")
    for i in range(8):
        e(f"v_xor_b32 v{RT+4*i+2}, s98, v{RT+4*i+2}\nv_xor_b32 v{RT+4*i+3}, s99, v{RT+4*i+3}")
    e(f"v_or_b32 v7, v{RT+2}, v{RT+3}")
    for i in range(1, 8):
        e(f"v_or3_b32 v7, v7, v{RT+4*i+2}, v{RT+4*i+3}")
    e(f"""
    v_cmp_eq_u32 vcc, 0, v7
    s_nop 3
    s_cmp_eq_u64 vcc, -1
    s_cbranch_scc1 L_aux5
    s_add_u32 s61, s61, 1
    s_cmp_lt_u32 s61, {spin_limit}
    s_cbranch_scc1 L_aux4
    """)
    g.label("L_aux5")
    for i in range(8):
        e(f"ds_write_b64 v16, v[{RT+4*i}:{RT+4*i+1}] offset:{512*i}")
    e(f"s_waitcnt lgkmcnt(0)\nds_write_b32 v6, v21 offset:{F_Q}\ns_waitcnt lgkmcnt(0)")
    stamp(4)
    if pretouch and not pt0:
        e(f"""
        s_lshl_b32 s52, s45, 10
        s_add_u32 s52, s52, {STATS + FAST}
        buffer_load_dwordx4 v[{RT}:{RT+3}], v24, s[36:39], s52 offen sc1
        """)
    g.label("L_wo")
    e("s_setprio 1")
    def wo_issue(i, tagp):
        j, ee = i // 8, i % 8
        r = WB + 32 * (j + 1) + 4 * ee
        off = (32 * j + ee) * 1024
        e(f"s_add_u32 s50, s97, {off & ~4095}")
        g.vm(f"buffer_load_dwordx4 v[{r}:{r+3}], v4, s[24:27], s50 offen offset:{off & 4095} {pol}", f"{tagp}{i}")
    for i in range(32):
        if i >= THW: g.wait(f"wa{i-THW}")
        wo_issue(i, "wa")
    stamp(5)
    FR = WB; A = FR
    e(f"""
    v_mov_b32 v5, {NON}
    s_cmp_lg_u32 s44, 8
    s_cbranch_scc1 L_tr
    s_setprio 3
    v_lshlrev_b32 v{FR+21}, 4, v2
    s_lshl_b32 s50, s45, 10
    s_add_u32 s50, s50, {STATS}
    """)
    g.label("L_st10")
    e(f"""
    v_lshl_add_u32 v{FR+22}, v3, 8, v{FR+21}
    v_lshlrev_b32 v{FR+23}, 2, v2
    v_add_u32 v{FR+23}, {SCL}, v{FR+23}
    v_mov_b32 v{FR+24}, 1
    """)
    spin(C_L, 8, 6, 7)
    e("s_mov_b32 s61, 0")
    g.label("L_st6")
    if dual:
        e("s_and_b32 s55, s61, 7\ns_cmp_eq_u32 s55, 7\ns_cselect_b32 s55, 0, s3\ns_add_u32 s55, s55, s50")
    else:
        e("s_mov_b32 s55, s50")
    e(f"""
    buffer_load_dwordx4 v[{A}:{A+3}], v{FR+22}, s[36:39], s55 offen sc1
    s_waitcnt vmcnt(0)
    v_xor_b32 v{A+2}, s98, v{A+2}
    v_xor_b32 v{A+3}, s99, v{A+3}
    v_or_b32 v{A+2}, v{A+2}, v{A+3}
    v_cmp_eq_u32 vcc, 0, v{A+2}
    s_nop 3
    s_cmp_eq_u64 vcc, -1
    s_cbranch_scc1 L_st7
    s_add_u32 s61, s61, 1
    s_cmp_lt_u32 s61, {spin_limit}
    s_cbranch_scc1 L_st6
    """)
    g.label("L_st7")
    stamp(6)
    e(f"""
    s_getreg_b32 s55, hwreg(HW_REG_XCC_ID)
    s_and_b32 s55, s55, 15
    v_and_b32 v{A+6}, 15, v{A+1}
    v_and_b32 v{A+1}, -16, v{A+1}
    v_cmp_eq_u32 vcc, s55, v{A+6}
    s_nop 3
    s_cmp_eq_u64 vcc, -1
    s_cselect_b32 s55, {1 if forceslow else 2}, 1
    v_mov_b32 v{FR+24}, s55
    """)
    e(f"v_mov_b32 v{A+4}, v{A}")
    xreduce(A + 4, A + 5, "v_max_f32")
    e(f"""
    v_sub_f32 v{A}, v{A}, v{A+4}
    v_exp_f32 v{A+5}, v{A}
    s_nop 0
    v_mul_f32 v{A}, v{A+5}, v{A+1}
    """)
    xreduce(A, A + 1, "v_add_f32")
    e(f"""
    v_rcp_f32 v{A}, v{A}
    v_cmp_eq_u32 vcc, s43, v3
    v_mul_f32 v{A+5}, v{A+5}, v{A}
    s_nop 3
    s_mov_b64 exec, vcc
    ds_write_b32 v{FR+23}, v{A+5}
    s_mov_b64 exec, -1
    s_waitcnt lgkmcnt(0)
    ds_write_b32 v6, v{FR+24} offset:{F_SCL}
    s_waitcnt lgkmcnt(0)
    s_branch L_tr
    """)
    g.label("L_ld")
    srd(12, 66, 0x2000000); srd(16, 68, 0x2000000)
    e(f"""
    s_setprio {ldprio}
    s_lshr_b32 s49, s48, 1
    s_lshl_b32 s46, s45, 2
    s_add_u32 s46, s46, s43
    s_lshl_b32 s46, s46, 17
    s_lshl_b32 s47, s49, 16
    s_add_u32 s46, s46, s47
    s_lshl_b32 s50, s49, 2
    v_add_u32 v7, s50, v6
    s_add_u32 s94, s41, s40
    v_xor_b32 v8, v2, v3
    v_lshlrev_b32 v8, 4, v8
    v_lshl_add_u32 v8, v3, 8, v8
    v_lshlrev_b32 v12, 1, v3
    v_xor_b32 v12, v2, v12
    v_lshlrev_b32 v12, 4, v12
    v_lshl_add_u32 v12, v3, 8, v12
    v_xor_b32 v9, 64, v8
    v_xor_b32 v10, 0x80, v8
    v_xor_b32 v11, 0xc0, v8
    v_xor_b32 v13, 0x80, v12
    s_add_u32 s95, s42, s49
    """)
    for x in range(4):
        e(f"s_add_u32 s50, s94, {x}\ns_and_b32 s50, s50, 3\ns_lshl_b32 s50, s50, 12\ns_add_u32 s{52+x}, s50, s46")
        e(f"s_add_u32 s50, s95, {x}\ns_and_b32 s50, s50, 3\ns_lshl_b32 s{56+x}, s50, 10")
    if not ld_early: e("s_barrier")
    kv = []
    woi = [0]
    sig = [0]
    def signal_ready():
        Wc = W0 if (W0 and len(kv) <= 32) else W
        done = max(0, len(kv) - Wc)
        while sig[0] < 8 and done >= 16 * (sig[0] + 1):
            sig[0] += 1
            e(f"v_mov_b32 v14, {sig[0]}\nds_write_b32 v7, v14 offset:{PROG}")
    for ph in range(2):
        for t in range(4):
            if ph == 0 and t == 3: spin(F_PD, 1, 6, 15)
            if ph == 1: spin(C_KR + 4 * t, 8, 6, 15)
            for k in range(4):
                for u in range(4):
                    n = len(kv)
                    if ld_early and n == ld_early: e("s_barrier")
                    Wc = W0 if (W0 and n < 32) else W
                    if n >= Wc:
                        g.wait(kv[n - Wc])
                    e(f"s_add_u32 m0, s47, {16384*u + 4096*t + 1024*k}\ns_add_u32 s50, s{52 + (t+u)%4}, s{56 + (k+u)%4}\ns_add_u32 s50, s50, {16384*u}")
                    if ph == 0:
                        g.vm(f"buffer_load_dwordx4 v{8+k}, s[12:15], s50 offen nt lds", f"kv{n}")
                    else:
                        g.vm(f"buffer_load_dwordx4 v{12+(k&1)}, s[16:19], s50 offen nt lds", f"kv{n}")
                    kv.append(f"kv{n}")
                    signal_ready()
                    gi = ph * 4 + t
                    if gi >= wo_start and woi[0] < 32 and (n % 3 == 0 or gi >= 6):
                        wo_issue(woi[0], "wl"); woi[0] += 1
    assert woi[0] == 32, woi[0]
    stamp(4)
    g.wait("wl31")
    e("s_branch L_tr2")
    g.label("L_tr")
    e("s_setprio 0\ns_waitcnt vmcnt(0)")
    g.label("L_tr2")
    e("s_mov_b32 s52, 0x05040100\ns_mov_b32 s53, 0x07060302")
    for j in range(4):
        src = WB + 32 * (j + 1); dst = WB + 32 * j
        for jc in range(8):
            for p in range(4):
                a = src + 4 * (2 * p) + (jc >> 1); b = src + 4 * (2 * p + 1) + (jc >> 1)
                e(f"v_perm_b32 v{dst+4*jc+p}, v{b}, v{a}, s{52 + (jc & 1)}")
    FR = WB + 128
    e("s_bitcmp0_b32 s44, 0\ns_cbranch_scc1 L_nodrain")
    while sig[0] < 8:
        g.wait(kv[16 * (sig[0] + 1) - 1])
        sig[0] += 1
        e(f"v_mov_b32 v5, {sig[0]}\nds_write_b32 v7, v5 offset:{PROG}")
    stamp(5)
    e(f"s_setprio 0\nv_mov_b32 v5, {NON}")
    g.label("L_nodrain")
    e(f"""
    v_and_b32 v4, 3, v2
    v_lshlrev_b32 v4, 8, v4
    v_lshl_add_u32 v4, v3, 4, v4
    v_add_u32 v4, {OB}, v4
    ds_read_b64 v[{FR+26}:{FR+27}], v5
    v_lshrrev_b32 v5, 1, v2
    v_lshlrev_b32 v5, 13, v5
    v_and_b32 v0, 1, v2
    v_lshl_add_u32 v5, v0, 6, v5
    v_lshl_add_u32 v5, v3, 4, v5
    s_lshl_b32 s50, s42, 18
    s_lshl_b32 s51, s48, 16
    s_add_u32 s50, s50, s51
    s_add_u32 s50, s50, s63
    s_add_u32 s96, s50, {MSG2}
    v_and_b32 v0, 1, v3
    v_cmp_eq_u32 s[4:5], 1, v0
    v_cmp_le_u32 s[6:7], 2, v3
    v_lshlrev_b32 v0, 4, v0
    s_mov_b32 s98, {(~TMASK) & 0xffffffff}
    v_lshlrev_b32 v{FR+24}, 11, v3
    v_lshl_add_u32 v{FR+24}, v2, 4, v{FR+24}
    s_lshl_b32 s50, s45, 15
    s_lshl_b32 s51, s43, 13
    s_add_u32 s50, s50, s51
    s_lshl_b32 s51, s48, 9
    s_add_u32 s50, s50, s51
    s_add_u32 s54, s50, {MSG1}
    v_lshlrev_b32 v{FR+25}, 8, v3
    v_lshl_add_u32 v{FR+25}, v2, 1, v{FR+25}
    s_lshl_b32 s50, s48, 6
    s_add_u32 s50, s50, {OB}
    v_add_u32 v{FR+25}, s50, v{FR+25}
    s_waitcnt lgkmcnt(0)
    v_readfirstlane_b32 s50, v{FR+26}
    v_readfirstlane_b32 s51, v{FR+27}
    s_nop 3
    s_and_b32 s56, s50, {TMASK}
    s_bfe_u32 s57, s50, {TAGB | (TAGB << 16)}
    s_lshr_b64 s[58:59], s[50:51], {2*TAGB}
    s_and_b32 s58, s58, {TMASK}
    s_bfe_u32 s59, s51, {(3*TAGB-32) | (TAGB << 16)}
    """)
    if pretouch and not pt0:
        e("s_cmp_lg_u32 s44, 10\ns_cbranch_scc1 L_nopt")
        spin2(pt_at, 6, FR + 26, sleep=2)
        e(f"""
        s_lshl_b32 s50, s45, 15
        s_lshl_b32 s51, s43, 13
        s_add_u32 s50, s50, s51
        s_add_u32 s50, s50, {MSG1}
        s_add_u32 s51, s50, 4096
        v_lshlrev_b32 v{FR+26}, 4, v1
        """)
        for i in range(8):
            e(f"buffer_load_dwordx4 v[{FR}:{FR+3}], v{FR+26}, s[36:39], s{50 + i // 4} offen offset:{(i % 4) * 1024} {ptpol}")
        e("s_waitcnt vmcnt(0)")
        g.label("L_nopt")
    spin2(8, 6, FR + 26, sleep=2)
    e("s_mov_b32 s61, 0")
    stamp(7)
    R = FR
    g.label("L_m1l")
    e(f"""
    buffer_load_dwordx4 v[{R}:{R+3}], v{FR+24}, s[36:39], s54 offen sc1
    buffer_load_dwordx4 v[{R+4}:{R+7}], v{FR+24}, s[36:39], s54 offen offset:256 sc1
    s_waitcnt vmcnt(0)
    """)
    for i in range(8):
        e(f"v_xor_b32 v{R+i}, s{56 + i % 4}, v{R+i}")
    e(f"""
    v_or3_b32 v6, v{R}, v{R+1}, v{R+2}
    v_or3_b32 v6, v6, v{R+3}, v{R+4}
    v_or3_b32 v6, v6, v{R+5}, v{R+6}
    v_or_b32 v6, v6, v{R+7}
    v_and_b32 v6, {TMASK}, v6
    v_cmp_eq_u32 vcc, 0, v6
    s_nop 3
    s_cmp_eq_u64 vcc, -1
    s_cbranch_scc1 L_m1g
    s_add_u32 s61, s61, 1
    s_cmp_lt_u32 s61, {spin_limit}
    s_cbranch_scc1 L_m1l
    """)
    g.label("L_m1g")
    stamp(10)
    for sw in ("v_permlane32_swap_b32", "v_permlane16_swap_b32"):
        for i in range(8): e(f"v_mov_b32 v{R+8+i}, v{R+i}")
        for i in range(8): e(f"{sw} v{R+i}, v{R+8+i}")
        e("s_nop 0")
        for i in range(0, 8, 2): e(f"v_pk_add_f32 v[{R+i}:{R+i+1}], v[{R+i}:{R+i+1}], v[{R+8+i}:{R+8+i+1}]")
    e(f"""
    v_cvt_pk_bf16_f32 v{R+8}, v{R}, v{R+1}
    v_cvt_pk_bf16_f32 v{R+9}, v{R+2}, v{R+3}
    v_cvt_pk_bf16_f32 v{R+10}, v{R+4}, v{R+5}
    v_cvt_pk_bf16_f32 v{R+11}, v{R+6}, v{R+7}
    v_cndmask_b32 v{R+8}, v{R+8}, v{R+9}, s[6:7]
    v_cndmask_b32 v{R+10}, v{R+10}, v{R+11}, s[6:7]
    v_lshrrev_b32 v{R+8}, v0, v{R+8}
    v_lshrrev_b32 v{R+10}, v0, v{R+10}
    ds_write_b16 v{FR+25}, v{R+8}
    ds_write_b16 v{FR+25}, v{R+10} offset:32
    s_waitcnt lgkmcnt(0)
    s_barrier
    """)
    stamp(8)
    AF = FR; OA = FR + 16
    for j in range(4):
        e(f"ds_read_b128 v[{AF+4*j}:{AF+4*j+3}], v4 offset:{64*j}")
    for h in range(2):
        for j in range(4):
            if h == 0: e(f"s_waitcnt lgkmcnt({3-j})")
            for q in range(4):
                jc = 4 * h + q
                c = "0" if j == 0 else f"v[{OA+4*q}:{OA+4*q+3}]"
                b = WB + 32 * j + 4 * jc
                e(f"v_mfma_f32_16x16x32_bf16 v[{OA+4*q}:{OA+4*q+3}], v[{AF+4*j}:{AF+4*j+3}], v[{b}:{b+3}], {c}")
        g.nop(8)
        t0 = WB + 16 * h
        for r in range(4):
            e(f"""
            v_cndmask_b32 v{t0+r}, v{OA+r}, v{OA+4+r}, s[4:5]
            v_cndmask_b32 v{t0+4+r}, v{OA+8+r}, v{OA+12+r}, s[4:5]
            """)
        for r in range(4):
            e(f"v_cndmask_b32 v{t0+r}, v{t0+r}, v{t0+4+r}, s[6:7]")
        for r in range(4):
            e(f"v_and_b32 v{t0+r}, s98, v{t0+r}\nv_or_b32 v{t0+r}, s{56+r}, v{t0+r}")
        e(f"buffer_store_dwordx4 v[{t0}:{t0+3}], v5, s[36:39], s96 offen offset:{128*h} sc1")
    if m2wait:
        e(f"v_mov_b32 v6, {SYN}\nv_mov_b32 v7, 1\ns_mov_b64 exec, 1\nds_add_u32 v6, v7 offset:{C_M2}\ns_mov_b64 exec, -1")
    stamp(9)
    stamp_store()

    hdr = f"""; fused GQA decode block: q-proj -> split-KV attention -> out-proj, one launch, in-kernel hand-offs
; @launch grid=(256,1,1) block=({64*NW},1,1) lds={LDS_TOTAL}
.amdgcn_target "amdgcn-amd-amdhsa--gfx950"
.text
.globl {KNAME}
.p2align 8
.type {KNAME},@function
{KNAME}:
"""
    ftr = f"""L_done:
    s_endpgm
.section .rodata,"a"
.p2align 6
.amdhsa_kernel {KNAME}
  .amdhsa_next_free_vgpr 168
  .amdhsa_next_free_sgpr 102
  .amdhsa_accum_offset 168
  .amdhsa_group_segment_fixed_size 0
  .amdhsa_kernarg_size 64
  .amdhsa_user_sgpr_count 2
  .amdhsa_user_sgpr_kernarg_segment_ptr 1
  .amdhsa_system_sgpr_workgroup_id_x 1
  .amdhsa_float_denorm_mode_32 3
.end_amdhsa_kernel
"""
    return hdr + g.text() + ftr

if __name__ == "__main__":
    open("g16.s", "w").write(gen(THW=8))
    open("g16_st.s", "w").write(gen(stamps=True, THW=8))
    open("g16_nq_st.s", "w").write(gen(stamps=True, THW=8, pt0q=False))
    open("g16_e_st.s", "w").write(gen(stamps=True, THW=8, ld_early=16))
```

```python
import sys
from gen1 import G, KNAME

QWS = 0
STATS = 0x80000
MSG1 = 0x100000
MSG2 = 0x300000
DBGA = 0x800000
FAST = 0x1000000
AUX1 = 131072
AUX2 = 147456
MX = AUX2
LS = AUX2 + 512
SCL = AUX2 + 1024
NON = AUX2 + 1536
SYN = AUX2 + 1600
PROG = 0
C_PART, F_PD, F_Q, C_M, C_L, F_N, F_SCL = [8 + 4 * i for i in range(7)]
C_KR = 40
C_M2 = 56
C_ST = 60
OB = AUX2 + 2048
QL = AUX2 + 4096
LDS_TOTAL = 163840
TAGB = 11
TMASK = (1 << TAGB) - 1
NW = 12

def gen(W=16, stamps=False, pol="nt", spin_limit=20000, THW=6, dual=True, fastpol="", slowmask=15, ldprio=3, wo_start=1, W0=None, xfirst=False, dbgwq=False, xpol="", wqpol="nt", forceslow=False, pretouch=True, m2wait=True, pt_at=6, ptpol="sc1 nt", ld_early=0, ashift=0, pt0=True, pt0q=True, qlocal=True, ptm1=True, stwait=False, m2st="sc1", m2ld="sc1", WS=(20, 20, 20, 18, 16, 14, 12, 10), krot=1, kvpol="nt"):
    g = G()
    e = g.e
    nst = [0]
    def stamp(idx=None):
        if not stamps: return
        i = nst[0] if idx is None else idx
        if idx is None: nst[0] += 1
        assert i < 14
        e(f"s_memrealtime s[100:101]\ns_waitcnt lgkmcnt(0)\ns_mov_b32 s{80+i}, s100")
    def stamp_store():
        if not stamps: return
        e(f"s_mul_i32 s50, s2, {NW}\ns_add_u32 s50, s50, s44\ns_lshl_b32 s50, s50, 6\ns_add_u32 s50, s50, {DBGA}\nv_mov_b32 v24, 0\ns_mov_b64 exec, 1")
        for i in range(0, 16, 4):
            for k in range(4): e(f"v_mov_b32 v{28+k}, s{80+i+k}")
            e(f"buffer_store_dwordx4 v[28:31], v24, s[36:39], s50 offen offset:{4*i}\ns_nop 1")
    def xreduce(r, tmp, op):
        for sw in ("v_permlane32_swap_b32", "v_permlane16_swap_b32"):
            e(f"v_mov_b32 v{tmp}, v{r}\ns_nop 1\n{sw} v{r}, v{tmp}\ns_nop 0\n{op} v{r}, v{r}, v{tmp}")
    def xsum4(a, t):
        for sw in ("v_permlane32_swap_b32", "v_permlane16_swap_b32"):
            for i in range(4): e(f"v_mov_b32 v{t+i}, v{a+i}")
            e("s_nop 0")
            for i in range(4): e(f"{sw} v{a+i}, v{t+i}")
            e("s_nop 0")
            e(f"v_pk_add_f32 v[{a}:{a+1}], v[{a}:{a+1}], v[{t}:{t+1}]\nv_pk_add_f32 v[{a+2}:{a+3}], v[{a+2}:{a+3}], v[{t+2}:{t+3}]")
    def spin(word, val, vsyn, vtmp, sleep=1):
        l1, l2 = g.newlabel("Lsp"), g.newlabel("Lspd")
        e("s_mov_b32 s61, 0")
        g.label(l1)
        e(f"""
        ds_read_b32 v{vtmp}, v{vsyn} offset:{word}
        s_waitcnt lgkmcnt(0)
        v_readfirstlane_b32 s60, v{vtmp}
        s_nop 3
        s_cmp_ge_u32 s60, {val}
        s_cbranch_scc1 {l2}
        {f's_sleep {sleep}' if sleep else ''}
        s_add_u32 s61, s61, 1
        s_cmp_lt_u32 s61, {spin_limit * 20}
        s_cbranch_scc1 {l1}
        """)
        g.label(l2)
    def spin2(val, vsyn, vtmp, sleep=1):
        l1, l2 = g.newlabel("Lsp"), g.newlabel("Lspd")
        e("s_mov_b32 s61, 0")
        g.label(l1)
        e(f"""
        ds_read_b64 v[{vtmp}:{vtmp+1}], v{vsyn} offset:{PROG}
        s_waitcnt lgkmcnt(0)
        v_min_u32 v{vtmp}, v{vtmp}, v{vtmp+1}
        s_nop 0
        v_readfirstlane_b32 s60, v{vtmp}
        s_nop 3
        s_cmp_ge_u32 s60, {val}
        s_cbranch_scc1 {l2}
        {f's_sleep {sleep}' if sleep else ''}
        s_add_u32 s61, s61, 1
        s_cmp_lt_u32 s61, {spin_limit * 20}
        s_cbranch_scc1 {l1}
        """)
        g.label(l2)
    def arrive(word, vsyn, vone):
        e(f"s_waitcnt lgkmcnt(0)\ns_mov_b64 exec, 1\nds_add_u32 v{vsyn}, v{vone} offset:{word}\ns_mov_b64 exec, -1")
    def srd(d, p, size):
        e(f"s_mov_b32 s{d}, s{p}\ns_mov_b32 s{d+1}, s{p+1}\ns_mov_b32 s{d+2}, {size}\ns_mov_b32 s{d+3}, 0x00020000")
    e(f"""
    s_cmp_ge_u32 s2, 256
    s_cbranch_scc1 L_done
    s_load_dwordx16 s[64:79], s[0:1], 0
    s_memrealtime s[98:99]
    v_and_b32 v1, 63, v0
    v_lshrrev_b32 v4, 6, v0
    v_and_b32 v2, 15, v0
    v_bfe_u32 v3, v0, 4, 2
    v_readfirstlane_b32 s44, v4
    s_and_b32 s40, s2, 7
    s_lshr_b32 s41, s2, 3
    s_lshr_b32 s42, s41, 2
    s_and_b32 s43, s41, 3
    s_lshl_b32 s45, s42, 3
    s_add_u32 s45, s45, s40
    s_lshl_b32 s51, s40, 2
    s_add_u32 s51, s51, s43
    s_lshl_b32 s63, s51, 8
    {"s_lshl_b32 s95, s40, 3" if qlocal else "s_lshl_b32 s95, s42, 3"}
    {"s_mov_b32 s50, s42" if qlocal else "s_add_u32 s50, s42, s40"}
    s_and_b32 s50, s50, 7
    s_add_u32 s95, s95, s50
    s_lshl_b32 s47, s44, 14
    s_mov_b32 s3, {FAST}
    s_waitcnt lgkmcnt(0)
    """)
    srd(36, 78, 0x10000000)
    e("s_cmp_ge_u32 s44, 8\ns_cbranch_scc1 L_op")
    srd(20, 70, 0x400000); srd(8, 64, 32768); srd(28, 74, 32768)
    e(f"""
    s_lshl_b32 s46, s43, 1
    {"s_add_u32 s46, s46, s42" if krot == 2 else "s_nop 0"}
    {"s_mov_b32 s46, 0" if krot == 0 else "s_nop 0"}
    s_add_u32 s46, s46, s44
    s_and_b32 s46, s46, 7
    """)
    stamp()
    def ld_wq():
        e("""
        v_lshrrev_b32 v14, 1, v1
        v_lshlrev_b32 v14, 13, v14
        v_and_b32 v15, 1, v1
        v_lshl_add_u32 v14, v15, 4, v14
        s_lshl_b32 s50, s46, 19
        s_lshl_b32 s51, s95, 7
        s_add_u32 s50, s50, s51
        s_lshl_b32 s51, s43, 5
        s_add_u32 s50, s50, s51
        s_lshl_b32 s51, s44, 11
        """)
        e(f"s_add_u32 s62, s51, {AUX1}\ns_mov_b32 m0, s62\ns_nop 0")
        e(f"buffer_load_dwordx4 v14, s[20:23], s50 offen {wqpol} lds")
        e(f"s_add_u32 s50, s50, 0x40000\ns_add_u32 m0, s62, 1024\ns_nop 0")
        e(f"buffer_load_dwordx4 v14, s[20:23], s50 offen {wqpol} lds")
    def ld_x():
        e("""
        v_lshrrev_b32 v15, 3, v1
        v_and_b32 v16, 7, v1
        v_xor_b32 v16, v16, v15
        v_lshlrev_b32 v16, 4, v16
        v_lshl_add_u32 v15, v15, 10, v16
        s_lshl_b32 s50, s46, 7
        """)
        for i in range(4):
            e(f"s_add_u32 m0, s47, {12288 + 1024*i}\ns_add_u32 s51, s50, {8192*i}")
            e(f"buffer_load_dwordx4 v15, s[8:11], s51 offen {xpol if xpol is not None else pol} lds")
    if xfirst:
        ld_x(); ld_wq()
    else:
        ld_wq(); ld_x()
    e(f"""
    s_barrier
    v_lshrrev_b32 v24, 2, v2
    v_lshl_add_u32 v24, v3, 3, v24
    v_lshlrev_b32 v24, 5, v24
    v_and_b32 v25, 3, v1
    v_lshl_add_u32 v24, v25, 3, v24
    v_add_u32 v24, s62, v24
    v_and_b32 v25, 7, v2
    v_xor_b32 v25, v25, v3
    v_lshlrev_b32 v25, 4, v25
    v_lshl_add_u32 v25, v2, 7, v25
    v_add_u32 v25, s47, v25
    v_xor_b32 v26, 64, v25
    v_lshlrev_b32 v27, 4, v1
    v_add_u32 v27, s47, v27
    v_mov_b32 v20, {SYN}
    v_mov_b32 v21, 1
    s_lshr_b32 s50, s44, 2
    s_lshl_b32 s50, s50, 2
    v_add_u32 v19, s50, v20
    v_lshlrev_b32 v16, 13, v3
    v_lshl_add_u32 v16, v2, 4, v16
    s_lshl_b32 s50, s45, 15
    s_lshl_b32 s51, s43, 11
    s_add_u32 s50, s50, s51
    s_lshl_b32 s51, s44, 8
    s_add_u32 s50, s50, s51
    s_add_u32 s50, s50, {MSG1}
    v_add_u32 v16, s50, v16
    v_lshlrev_b32 v17, 8, v2
    v_lshl_add_u32 v17, v3, 4, v17
    v_add_u32 v17, {QL}, v17
    v_mov_b32 v18, {NON}
    v_xor_b32 v12, v2, v3
    v_lshlrev_b32 v12, 4, v12
    v_lshlrev_b32 v13, 8, v2
    v_add_u32 v13, s47, v13
    v_add_u32 v28, v13, v12
    v_xor_b32 v29, 64, v12
    v_add_u32 v29, v13, v29
    v_xor_b32 v30, 0x80, v12
    v_add_u32 v30, v13, v30
    v_xor_b32 v31, 0xc0, v12
    v_add_u32 v31, v13, v31
    """)
    if dbgwq:
        e(f"s_waitcnt vmcnt({2 if xfirst else 4})")
        stamp(10)
    e("s_waitcnt vmcnt(0)")
    stamp()
    XF = 96; WF = 112; QA = 120
    for d in range(2):
        e(f"ds_read_b64_tr_b16 v[{WF+4*d}:{WF+4*d+1}], v24 offset:{1024*d}")
        e(f"ds_read_b64_tr_b16 v[{WF+4*d+2}:{WF+4*d+3}], v24 offset:{1024*d+128}")
    for rt in range(2):
        for d in range(2):
            r = XF + 8 * rt + 4 * d
            e(f"ds_read_b128 v[{r}:{r+3}], v{25+d} offset:{12288 + 2048*rt}")
    e("s_waitcnt lgkmcnt(0)")
    for rt in range(2):
        e(f"v_mfma_f32_16x16x32_bf16 v[{QA+4*rt}:{QA+4*rt+3}], v[{WF}:{WF+3}], v[{XF+8*rt}:{XF+8*rt+3}], 0")
    for rt in range(2):
        e(f"v_mfma_f32_16x16x32_bf16 v[{QA+4*rt}:{QA+4*rt+3}], v[{WF+4}:{WF+7}], v[{XF+8*rt+4}:{XF+8*rt+7}], v[{QA+4*rt}:{QA+4*rt+3}]")
    g.nop(8)
    e(f"ds_write_b128 v27, v[{QA}:{QA+3}] offset:12288\nds_write_b128 v27, v[{QA+4}:{QA+7}] offset:13312")
    arrive(C_PART, 20, 21)
    stamp()
    KF = 32
    for t in range(4):
        spin(PROG, t + 1, 19, 22, sleep=2)
        for j in range(4):
            r = KF + 16 * t + 4 * j
            e(f"ds_read_b128 v[{r}:{r+3}], v{28+j} offset:{4096*t}")
        arrive(C_KR + 4 * t, 20, 21)
    stamp()
    spin(F_Q, 1, 20, 22, sleep=2)
    stamp()
    QF = 96; SA = 112; T = 128
    for j in range(4):
        e(f"ds_read_b128 v[{QF+4*j}:{QF+4*j+3}], v17 offset:{64*j}")
    e("ds_read_b64 v[22:23], v18")
    for j in range(4):
        e(f"s_waitcnt lgkmcnt({4-j})")
        for t in range(4):
            r = KF + 16 * t + 4 * j
            c = "0" if j == 0 else f"v[{SA+4*t}:{SA+4*t+3}]"
            e(f"v_mfma_f32_16x16x32_bf16 v[{SA+4*t}:{SA+4*t+3}], v[{r}:{r+3}], v[{QF+4*j}:{QF+4*j+3}], {c}")
    e(f"""
    s_waitcnt lgkmcnt(0)
    v_and_b32 v4, {TMASK}, v22
    v_bfe_u32 v5, v22, {TAGB}, {TAGB}
    v_alignbit_b32 v6, v23, v22, {2*TAGB}
    v_and_b32 v6, {TMASK}, v6
    v_bfe_u32 v7, v23, {3*TAGB-32}, {TAGB}
    """)
    e("s_mov_b32 s50, 0x3db504f3\ns_mov_b32 s51, 0xffff0000\ns_mov_b32 s99, 0x3fb8aa3b")
    g.nop(2)
    for p in range(8):
        a = SA + 2 * p
        e(f"""
        v_cvt_pk_bf16_f32 v{T}, v{a}, v{a+1}
        v_lshlrev_b32 v{a}, 16, v{T}
        v_and_b32 v{a+1}, s51, v{T}
        v_mul_f32 v{a}, s50, v{a}
        v_mul_f32 v{a+1}, s50, v{a+1}
        v_cvt_pk_bf16_f32 v{T}, v{a}, v{a+1}
        v_lshlrev_b32 v{a}, 16, v{T}
        v_and_b32 v{a+1}, s51, v{T}
        """)
    e(f"v_max3_f32 v{T}, v{SA}, v{SA+1}, v{SA+2}")
    for i in range(3, 15, 2):
        e(f"v_max3_f32 v{T}, v{T}, v{SA+i}, v{SA+i+1}")
    e(f"v_max_f32 v{T}, v{T}, v{SA+15}")
    xreduce(T, T + 1, "v_max_f32")
    e(f"""
    v_lshlrev_b32 v12, 5, v2
    v_add_u32 v12, {MX}, v12
    s_lshl_b32 s50, s44, 2
    v_add_u32 v13, s50, v12
    ds_write_b32 v13, v{T}
    """)
    arrive(C_M, 20, 21)
    spin(C_M, 8, 20, 22)
    e(f"ds_read_b128 v[{T+4}:{T+7}], v12\nds_read_b128 v[{T+8}:{T+11}], v12 offset:16\ns_waitcnt lgkmcnt(0)")
    e(f"""
    v_max3_f32 v{T}, v{T+4}, v{T+5}, v{T+6}
    v_max3_f32 v{T}, v{T}, v{T+7}, v{T+8}
    v_max3_f32 v{T}, v{T}, v{T+9}, v{T+10}
    v_max_f32 v{T}, v{T}, v{T+11}
    v_mul_f32 v23, s99, v{T}
    """)
    for i in range(16):
        e(f"v_fma_f32 v{SA+i}, v{SA+i}, s99, -v23")
    for i in range(16):
        e(f"v_exp_f32 v{SA+i}, v{SA+i}")
    e("s_nop 0")
    e(f"v_lshlrev_b32 v14, 3, v1\nv_add_u32 v14, s62, v14")
    for t in range(4):
        a = SA + 4 * t
        e(f"v_cvt_pk_bf16_f32 v{T+2*t}, v{a}, v{a+1}\nv_cvt_pk_bf16_f32 v{T+2*t+1}, v{a+2}, v{a+3}")
        e(f"ds_write_b64 v14, v[{T+2*t}:{T+2*t+1}] offset:{512*t}")
    for st in (8, 4, 2):
        for i in range(0, st, 2):
            a = SA + i; b = SA + i + st
            e(f"v_pk_add_f32 v[{a}:{a+1}], v[{a}:{a+1}], v[{b}:{b+1}]")
    e(f"v_add_f32 v{SA}, v{SA}, v{SA+1}")
    xreduce(SA, SA + 1, "v_add_f32")
    e(f"ds_write_b32 v13, v{SA} offset:512")
    arrive(C_L, 20, 21)
    PF = 32; BF = 112; PVA = 160; SC = 164
    e(f"""
    v_lshrrev_b32 v24, 2, v2
    v_lshl_add_u32 v24, v3, 2, v24
    v_and_b32 v25, 7, v24
    v_lshlrev_b32 v25, 1, v25
    v_bfe_u32 v27, v1, 1, 1
    s_lshl_b32 s50, s44, 1
    v_add_u32 v27, s50, v27
    v_xor_b32 v25, v25, v27
    v_lshlrev_b32 v25, 4, v25
    v_lshl_add_u32 v25, v24, 8, v25
    v_and_b32 v27, 1, v1
    v_lshl_add_u32 v25, v27, 3, v25
    v_add_u32 v26, 0x10000, v25
    v_lshlrev_b32 v27, 3, v1
    v_add_u32 v27, {AUX1}, v27
    v_and_b32 v30, 1, v3
    v_lshlrev_b32 v30, 4, v30
    v_cmp_le_u32 s[6:7], 2, v3
    v_lshlrev_b32 v19, 4, v3
    v_add_u32 v19, {SCL}, v19
    s_mov_b32 s98, {(~TMASK) & 0xffffffff}
    """)
    spin(C_L, 8, 20, 22)
    stamp()
    lnp = g.newlabel("Lnp")
    A = 128
    e(f"""
    s_cmp_lg_u32 s44, 1
    s_cbranch_scc1 {lnp}
    ds_read_b128 v[{A+8}:{A+11}], v12 offset:512
    ds_read_b128 v[{A+12}:{A+15}], v12 offset:528
    ds_read_b64 v[{A+18}:{A+19}], v18
    v_lshlrev_b32 v{A+21}, 4, v2
    s_lshl_b32 s50, s45, 10
    s_add_u32 s50, s50, {STATS}
    s_lshl_b32 s51, s43, 8
    s_add_u32 s51, s51, s50
    s_getreg_b32 s55, hwreg(HW_REG_XCC_ID)
    s_and_b32 s55, s55, 15
    v_mov_b32 v{A+16}, v23
    s_waitcnt lgkmcnt(0)
    v_pk_add_f32 v[{A+8}:{A+9}], v[{A+8}:{A+9}], v[{A+10}:{A+11}]
    v_pk_add_f32 v[{A+12}:{A+13}], v[{A+12}:{A+13}], v[{A+14}:{A+15}]
    v_pk_add_f32 v[{A+8}:{A+9}], v[{A+8}:{A+9}], v[{A+12}:{A+13}]
    v_add_f32 v{A+17}, v{A+8}, v{A+9}
    v_and_b32 v{A+17}, -16, v{A+17}
    v_or_b32 v{A+17}, s55, v{A+17}
    s_mov_b64 exec, 0xffff
    """)
    if dual: e(f"s_add_u32 s55, s51, s3\nbuffer_store_dwordx4 v[{A+16}:{A+19}], v{A+21}, s[36:39], s55 offen {fastpol}")
    e(f"""
    buffer_store_dwordx4 v[{A+16}:{A+19}], v{A+21}, s[36:39], s51 offen sc1
    s_mov_b64 exec, -1
    """)
    g.label(lnp)
    for k in range(4):
        for i in range(4):
            r = PF + 16 * k + 4 * i
            e(f"ds_read2st64_b64 v[{r}:{r+3}], v27 offset0:{8*i+k} offset1:{8*i+4+k}")
        if k == 1: e("s_waitcnt lgkmcnt(0)")
    first = [True]
    def pv_phase(k):
        for i in range(4):
            for hf in range(2):
                u = 2 * i + hf
                r = BF + 4 * i + 2 * hf
                e(f"ds_read_b64_tr_b16 v[{r}:{r+1}], v{25 if u < 4 else 26} offset:{(u % 4) * 16384 + 4096 * k}")
        for i in range(4):
            e(f"s_waitcnt lgkmcnt({6 - 2*i})")
            c = "0" if first[0] else f"v[{PVA}:{PVA+3}]"
            first[0] = False
            e(f"v_mfma_f32_16x16x32_bf16 v[{PVA}:{PVA+3}], v[{PF+16*k+4*i}:{PF+16*k+4*i+3}], v[{BF+4*i}:{BF+4*i+3}], {c}")
    for k in range(3):
        spin2(5 + k, 20, 22, sleep=2)
        pv_phase(k)
    stamp()
    spin(F_SCL, 1, 20, 22, sleep=1)
    e("s_mov_b32 s94, s60")
    e(f"ds_read_b128 v[{SC}:{SC+3}], v19")
    stamp()
    spin2(8, 20, 22, sleep=0)
    stamp()
    pv_phase(3)
    g.nop(8)
    for i in range(4):
        e(f"v_mul_f32 v{PVA+i}, v{PVA+i}, v{SC+i}")
    for i in range(4):
        e(f"v_and_or_b32 v{PVA+i}, v{PVA+i}, s98, v{4+i}")
    lsl, lsd = g.newlabel("Lsl"), g.newlabel("Lsd")
    e(f"""
    s_cmp_eq_u32 s94, 2
    s_cbranch_scc0 {lsl}
    buffer_store_dwordx4 v[{PVA}:{PVA+3}], v16, s[36:39], 0 offen {fastpol}
    s_branch {lsd}
    """)
    g.label(lsl)
    e(f"buffer_store_dwordx4 v[{PVA}:{PVA+3}], v16, s[36:39], 0 offen sc1")
    g.label(lsd)
    stamp()
    if stwait:
        e("s_waitcnt vmcnt(0)")
        arrive(C_ST, 20, 21)
    nst[0] = 12
    lend = g.newlabel("Lend")
    e(f"s_cmp_lg_u32 s44, 0\ns_cbranch_scc1 {lend}")
    e(f"""
    v_lshlrev_b32 v24, 4, v1
    s_lshl_b32 s50, s42, 18
    s_lshl_b32 s51, s63, 5
    s_add_u32 s50, s50, s51
    s_add_u32 s50, s50, {MSG2}
    s_add_u32 s51, s50, 4096
    s_mov_b32 s61, 0
    v_lshlrev_b32 v25, 10, v3
    v_and_b32 v26, 3, v2
    v_lshl_add_u32 v25, v26, 1, v25
    v_bfe_u32 v26, v2, 2, 1
    v_lshl_add_u32 v25, v26, 4, v25
    v_lshrrev_b32 v26, 3, v2
    v_lshl_add_u32 v25, v26, 3, v25
    s_lshl_b32 s96, s42, 12
    s_lshr_b32 s97, s63, 3
    s_add_u32 s96, s96, s97
    s_barrier
    """)
    if m2wait:
        spin(C_M2, 4, 20, 22, sleep=1)
        e("s_mov_b32 s61, 0")
    ll, lg = g.newlabel("Lm2l"), g.newlabel("Lm2g")
    g.label(ll)
    FB = 32
    for i in range(8):
        e(f"buffer_load_dwordx4 v[{FB+4*i}:{FB+4*i+3}], v24, s[36:39], s{50 + i // 4} offen offset:{(i % 4) * 1024} {m2ld}")
    e("s_waitcnt vmcnt(0)")
    for i in range(32):
        e(f"v_xor_b32 v{FB+i}, v{FB+i}, v{4 + i % 4}")
    e(f"v_or3_b32 v28, v{FB}, v{FB+1}, v{FB+2}")
    for i in range(3, 31, 2):
        e(f"v_or3_b32 v28, v28, v{FB+i}, v{FB+i+1}")
    e(f"""
    v_or_b32 v28, v28, v{FB+31}
    v_and_b32 v28, {TMASK}, v28
    v_cmp_eq_u32 vcc, 0, v28
    s_nop 3
    s_cmp_eq_u64 vcc, -1
    s_cbranch_scc1 {lg}
    s_add_u32 s61, s61, 1
    s_cmp_lt_u32 s61, {spin_limit}
    s_cbranch_scc1 {ll}
    """)
    g.label(lg)
    stamp()
    for st in (4, 2, 1):
        for w in range(st):
            a = FB + 4 * w; b = FB + 4 * (w + st)
            e(f"v_pk_add_f32 v[{a}:{a+1}], v[{a}:{a+1}], v[{b}:{b+1}]\nv_pk_add_f32 v[{a+2}:{a+3}], v[{a+2}:{a+3}], v[{b+2}:{b+3}]")
    xsum4(FB, FB + 4)
    e(f"""
    v_cvt_pk_bf16_f32 v28, v{FB}, v{FB+1}
    v_cvt_pk_bf16_f32 v29, v{FB+2}, v{FB+3}
    s_nop 0
    v_cndmask_b32 v28, v28, v29, s[6:7]
    v_lshrrev_b32 v28, v30, v28
    buffer_store_short v28, v25, s[28:31], s96 offen
    """)
    g.label(lend)
    stamp()
    stamp_store()
    e("s_endpgm")

    WB = 8
    g.label("L_op")
    srd(24, 72, 0x400000)
    stamp(0)
    e(f"""
    v_mov_b32 v6, {SYN}
    v_mov_b32 v5, 0
    v_mov_b32 v21, 1
    v_mov_b32 v17, {NON}
    v_lshlrev_b32 v4, 13, v3
    v_lshl_add_u32 v4, v2, 4, v4
    s_sub_u32 s48, s44, 8
    s_lshl_b32 s97, s63, 9
    s_lshl_b32 s50, s48, 8
    s_add_u32 s97, s97, s50
    s_bitcmp1_b32 s44, 0
    s_cbranch_scc1 L_ld
    v_lshlrev_b32 v24, 4, v1
    s_setprio 3
    s_cmp_lg_u32 s44, 8
    s_cbranch_scc1 L_w10
    """)
    g.label("L_aux0")
    e(f"""
    v_lshlrev_b32 v7, 2, v2
    v_add_u32 v7, {SYN}, v7
    ds_write_b32 v7, v5
    """)
    if pt0:
        e(f"""
        s_lshl_b32 s50, s42, 16
        s_lshl_b32 s51, s40, 13
        s_add_u32 s50, s50, s51
        s_lshl_b32 s51, s43, 11
        s_add_u32 s50, s50, s51
        s_add_u32 s50, s50, s3
        """)
        if pt0q and qlocal:
            e("buffer_load_dwordx4 v[32:35], v24, s[36:39], s50 offen sc1\nbuffer_load_dwordx4 v[32:35], v24, s[36:39], s50 offen offset:1024 sc1")
        e(f"""
        s_lshl_b32 s52, s45, 10
        s_add_u32 s52, s52, {STATS + FAST}
        buffer_load_dwordx4 v[32:35], v24, s[36:39], s52 offen sc1
        s_lshl_b32 s50, s45, 15
        s_lshl_b32 s51, s43, 13
        s_add_u32 s50, s50, s51
        s_add_u32 s50, s50, {MSG1}
        s_add_u32 s51, s50, 4096
        """)
        for i in range(8 if ptm1 else 0):
            e(f"buffer_load_dwordx4 v[32:35], v24, s[36:39], s{50 + i // 4} offen offset:{(i % 4) * 1024} sc1")
    e(f"""
    s_waitcnt lgkmcnt(0)
    s_barrier
    v_add_u32 v26, 12288, v24
    v_add_u32 v25, 0x10000, v26
    v_lshrrev_b32 v27, 2, v2
    v_lshlrev_b32 v27, 16, v27
    v_and_b32 v28, 3, v2
    v_lshl_add_u32 v27, v28, 9, v27
    v_lshl_add_u32 v27, v3, 4, v27
    s_lshr_b32 s52, s95, 1
    s_lshl_b32 s52, s52, 11
    s_and_b32 s53, s95, 1
    s_lshl_b32 s53, s53, 8
    s_add_u32 s52, s52, s53
    s_lshl_b32 s53, s43, 6
    s_add_u32 s52, s52, s53
    s_add_u32 s53, s52, 0x40000
    """)
    spin(C_PART, 8, 6, 7)
    if pt0: e("s_waitcnt vmcnt(0)")
    stamp(2)
    RT = 32
    for rt in range(2):
        for w in range(8):
            r = RT + 32 * rt + 4 * w
            e(f"ds_read_b128 v[{r}:{r+3}], v{26 if w < 4 else 25} offset:{(w % 4)*16384+rt*1024}")
        e("s_waitcnt lgkmcnt(0)")
    e(f"ds_write_b32 v6, v21 offset:{F_PD}")
    for rt in range(2):
        for st in (4, 2, 1):
            for w in range(st):
                a = RT + 32 * rt + 4 * w; b = a + 4 * st
                e(f"v_pk_add_f32 v[{a}:{a+1}], v[{a}:{a+1}], v[{b}:{b+1}]\nv_pk_add_f32 v[{a+2}:{a+3}], v[{a+2}:{a+3}], v[{b+2}:{b+3}]")
        a = RT + 32 * rt
        e(f"v_cvt_pk_bf16_f32 v{8+4*rt}, v{a}, v{a+1}\nv_cvt_pk_bf16_f32 v{9+4*rt}, v{a+2}, v{a+3}")
    spin(F_N, 1, 6, 7)
    e(f"""
    ds_read_b64 v[10:11], v17
    ds_read_b64 v[14:15], v17
    s_waitcnt lgkmcnt(0)
    v_readfirstlane_b32 s98, v10
    v_readfirstlane_b32 s99, v11
    """)
    stamp(1)
    for rt in range(2):
        if dual and qlocal: e(f"s_add_u32 s54, s{52+rt}, s3\nbuffer_store_dwordx4 v[{8+4*rt}:{11+4*rt}], v27, s[36:39], s54 offen {fastpol}")
    for rt in range(2):
        e(f"buffer_store_dwordx4 v[{8+4*rt}:{11+4*rt}], v27, s[36:39], s{52+rt} offen sc1")
    stamp(3)
    e("s_branch L_wo")
    g.label("L_w10")
    srd(32, 76, 256)
    e(f"""
    s_or_b32 s99, s99, 0x80000000
    s_cmp_lg_u32 s2, 0
    s_cbranch_scc1 L_n0
    v_mov_b32 v22, s98
    v_mov_b32 v23, s99
    s_mov_b64 exec, 1
    buffer_store_dwordx2 v[22:23], v5, s[32:35], 0 offen sc0 sc1
    s_mov_b64 exec, -1
    s_barrier
    s_branch L_n1
    """)
    g.label("L_n0")
    e("buffer_load_dwordx2 v[22:23], v5, s[32:35], 0 offen sc1\ns_barrier\ns_mov_b32 s61, 0")
    g.label("L_auxn")
    e(f"""
    s_waitcnt vmcnt(0)
    v_readfirstlane_b32 s98, v22
    v_readfirstlane_b32 s99, v23
    s_nop 3
    s_cmp_lt_i32 s99, 0
    s_cbranch_scc1 L_n1
    buffer_load_dwordx2 v[22:23], v5, s[32:35], 0 offen sc1
    s_add_u32 s61, s61, 1
    s_cmp_lt_u32 s61, {spin_limit}
    s_cbranch_scc1 L_auxn
    """)
    g.label("L_n1")
    stamp(1)
    e(f"""
    v_mov_b32 v22, s98
    v_mov_b32 v23, s99
    ds_write_b64 v17, v[22:23]
    s_waitcnt lgkmcnt(0)
    ds_write_b32 v6, v21 offset:{F_N}
    s_lshl_b32 s50, s42, 16
    s_lshl_b32 s51, s40, 13
    s_add_u32 s50, s50, s51
    s_add_u32 s51, s50, 4096
    v_lshlrev_b32 v16, 3, v1
    v_add_u32 v16, {QL}, v16
    """)
    spin(F_PD, 1, 6, 7)
    e("s_mov_b32 s61, 0")
    stamp(3)
    g.label("L_aux4")
    if dual and qlocal:
        e("s_and_b32 s54, s61, 7\ns_cmp_eq_u32 s54, 7\ns_cselect_b32 s54, 0, s3\ns_add_u32 s55, s51, s54\ns_add_u32 s54, s50, s54")
    else:
        e("s_mov_b32 s54, s50\ns_mov_b32 s55, s51")
    for i in range(8):
        e(f"buffer_load_dwordx4 v[{RT+4*i}:{RT+4*i+3}], v24, s[36:39], s{54 + i // 4} offen offset:{(i % 4) * 1024} sc1")
    e("s_waitcnt vmcnt(0)")
    for i in range(8):
        e(f"v_xor_b32 v{RT+4*i+2}, s98, v{RT+4*i+2}\nv_xor_b32 v{RT+4*i+3}, s99, v{RT+4*i+3}")
    e(f"v_or_b32 v7, v{RT+2}, v{RT+3}")
    for i in range(1, 8):
        e(f"v_or3_b32 v7, v7, v{RT+4*i+2}, v{RT+4*i+3}")
    e(f"""
    v_cmp_eq_u32 vcc, 0, v7
    s_nop 3
    s_cmp_eq_u64 vcc, -1
    s_cbranch_scc1 L_aux5
    s_add_u32 s61, s61, 1
    s_cmp_lt_u32 s61, {spin_limit}
    s_cbranch_scc1 L_aux4
    """)
    g.label("L_aux5")
    for i in range(8):
        e(f"ds_write_b64 v16, v[{RT+4*i}:{RT+4*i+1}] offset:{512*i}")
    e(f"s_waitcnt lgkmcnt(0)\nds_write_b32 v6, v21 offset:{F_Q}\ns_waitcnt lgkmcnt(0)")
    stamp(4)
    if pretouch and not pt0:
        e(f"""
        s_lshl_b32 s52, s45, 10
        s_add_u32 s52, s52, {STATS + FAST}
        buffer_load_dwordx4 v[{RT}:{RT+3}], v24, s[36:39], s52 offen sc1
        """)
    g.label("L_wo")
    e("s_setprio 1")
    def wo_issue(i, tagp):
        j, ee = i // 8, i % 8
        r = WB + 32 * (j + 1) + 4 * ee
        off = (32 * j + ee) * 1024
        e(f"s_add_u32 s50, s97, {off & ~4095}")
        g.vm(f"buffer_load_dwordx4 v[{r}:{r+3}], v4, s[24:27], s50 offen offset:{off & 4095} {pol}", f"{tagp}{i}")
    for i in range(32):
        if i >= THW: g.wait(f"wa{i-THW}")
        wo_issue(i, "wa")
    stamp(5)
    FR = WB; A = FR
    e(f"""
    v_mov_b32 v5, {NON}
    s_cmp_lg_u32 s44, 8
    s_cbranch_scc1 L_tr
    s_setprio 3
    v_lshlrev_b32 v{FR+21}, 4, v2
    s_lshl_b32 s50, s45, 10
    s_add_u32 s50, s50, {STATS}
    """)
    g.label("L_st10")
    e(f"""
    v_lshl_add_u32 v{FR+22}, v3, 8, v{FR+21}
    v_lshlrev_b32 v{FR+23}, 2, v2
    v_add_u32 v{FR+23}, {SCL}, v{FR+23}
    v_mov_b32 v{FR+24}, 1
    """)
    spin(C_L, 8, 6, 7)
    e("s_mov_b32 s61, 0")
    g.label("L_st6")
    if dual:
        e("s_and_b32 s55, s61, 7\ns_cmp_eq_u32 s55, 7\ns_cselect_b32 s55, 0, s3\ns_add_u32 s55, s55, s50")
    else:
        e("s_mov_b32 s55, s50")
    e(f"""
    buffer_load_dwordx4 v[{A}:{A+3}], v{FR+22}, s[36:39], s55 offen sc1
    s_waitcnt vmcnt(0)
    v_xor_b32 v{A+2}, s98, v{A+2}
    v_xor_b32 v{A+3}, s99, v{A+3}
    v_or_b32 v{A+2}, v{A+2}, v{A+3}
    v_cmp_eq_u32 vcc, 0, v{A+2}
    s_nop 3
    s_cmp_eq_u64 vcc, -1
    s_cbranch_scc1 L_st7
    s_add_u32 s61, s61, 1
    s_cmp_lt_u32 s61, {spin_limit}
    s_cbranch_scc1 L_st6
    """)
    g.label("L_st7")
    stamp(6)
    e(f"""
    s_getreg_b32 s55, hwreg(HW_REG_XCC_ID)
    s_and_b32 s55, s55, 15
    v_and_b32 v{A+6}, 15, v{A+1}
    v_and_b32 v{A+1}, -16, v{A+1}
    v_cmp_eq_u32 vcc, s55, v{A+6}
    s_nop 3
    s_cmp_eq_u64 vcc, -1
    s_cselect_b32 s55, {1 if forceslow else 2}, 1
    v_mov_b32 v{FR+24}, s55
    """)
    e(f"v_mov_b32 v{A+4}, v{A}")
    xreduce(A + 4, A + 5, "v_max_f32")
    e(f"""
    v_sub_f32 v{A}, v{A}, v{A+4}
    v_exp_f32 v{A+5}, v{A}
    s_nop 0
    v_mul_f32 v{A}, v{A+5}, v{A+1}
    """)
    xreduce(A, A + 1, "v_add_f32")
    e(f"""
    v_rcp_f32 v{A}, v{A}
    v_cmp_eq_u32 vcc, s43, v3
    v_mul_f32 v{A+5}, v{A+5}, v{A}
    s_nop 3
    s_mov_b64 exec, vcc
    ds_write_b32 v{FR+23}, v{A+5}
    s_mov_b64 exec, -1
    s_waitcnt lgkmcnt(0)
    ds_write_b32 v6, v{FR+24} offset:{F_SCL}
    s_waitcnt lgkmcnt(0)
    s_branch L_tr
    """)
    g.label("L_ld")
    srd(12, 66, 0x2000000); srd(16, 68, 0x2000000)
    e(f"""
    s_setprio {ldprio}
    s_lshr_b32 s49, s48, 1
    s_lshl_b32 s46, s45, 2
    s_add_u32 s46, s46, s43
    s_lshl_b32 s46, s46, 17
    s_lshl_b32 s47, s49, 16
    s_add_u32 s46, s46, s47
    s_lshl_b32 s50, s49, 2
    v_add_u32 v7, s50, v6
    s_add_u32 s94, s41, s40
    v_xor_b32 v8, v2, v3
    v_lshlrev_b32 v8, 4, v8
    v_lshl_add_u32 v8, v3, 8, v8
    v_lshlrev_b32 v12, 1, v3
    v_xor_b32 v12, v2, v12
    v_lshlrev_b32 v12, 4, v12
    v_lshl_add_u32 v12, v3, 8, v12
    v_xor_b32 v9, 64, v8
    v_xor_b32 v10, 0x80, v8
    v_xor_b32 v11, 0xc0, v8
    v_xor_b32 v13, 0x80, v12
    s_add_u32 s95, s42, s49
    """)
    for x in range(4):
        e(f"s_add_u32 s50, s94, {x}\ns_and_b32 s50, s50, 3\ns_lshl_b32 s50, s50, 12\ns_add_u32 s{52+x}, s50, s46")
        e(f"s_add_u32 s50, s95, {x}\ns_and_b32 s50, s50, 3\ns_lshl_b32 s{56+x}, s50, 10")
    if not ld_early: e("s_barrier")
    kv = []
    woi = [0]
    sig = [0]
    known = [0]
    def signal_ready():
        done = known[0]
        while sig[0] < 8 and done >= 16 * (sig[0] + 1):
            sig[0] += 1
            e(f"v_mov_b32 v14, {sig[0]}\nds_write_b32 v7, v14 offset:{PROG}")
    for ph in range(2):
        for t in range(4):
            if ph == 0 and t == 3: spin(F_PD, 1, 6, 15)
            if ph == 1: spin(C_KR + 4 * t, 8, 6, 15)
            for k in range(4):
                for u in range(4):
                    n = len(kv)
                    if ld_early and n == ld_early: e("s_barrier")
                    Wc = WS[n // 16] if WS else W
                    if n >= Wc and n - Wc + 1 > known[0]:
                        g.wait(kv[n - Wc])
                        known[0] = n - Wc + 1
                    e(f"s_add_u32 m0, s47, {16384*u + 4096*t + 1024*k}\ns_add_u32 s50, s{52 + (t+u)%4}, s{56 + (k+u)%4}\ns_add_u32 s50, s50, {16384*u}")
                    if ph == 0:
                        g.vm(f"buffer_load_dwordx4 v{8+k}, s[12:15], s50 offen {kvpol} lds", f"kv{n}")
                    else:
                        g.vm(f"buffer_load_dwordx4 v{12+(k&1)}, s[16:19], s50 offen {kvpol} lds", f"kv{n}")
                    kv.append(f"kv{n}")
                    signal_ready()
                    gi = ph * 4 + t
                    if gi >= wo_start and woi[0] < 32 and (n % 3 == 0 or gi >= 6):
                        wo_issue(woi[0], "wl"); woi[0] += 1
    assert woi[0] == 32, woi[0]
    stamp(4)
    g.wait("wl31")
    e("s_branch L_tr2")
    g.label("L_tr")
    e("s_setprio 0\ns_waitcnt vmcnt(0)")
    g.label("L_tr2")
    e("s_mov_b32 s52, 0x05040100\ns_mov_b32 s53, 0x07060302")
    for j in range(4):
        src = WB + 32 * (j + 1); dst = WB + 32 * j
        for jc in range(8):
            for p in range(4):
                a = src + 4 * (2 * p) + (jc >> 1); b = src + 4 * (2 * p + 1) + (jc >> 1)
                e(f"v_perm_b32 v{dst+4*jc+p}, v{b}, v{a}, s{52 + (jc & 1)}")
    FR = WB + 128
    e("s_bitcmp0_b32 s44, 0\ns_cbranch_scc1 L_nodrain")
    while sig[0] < 8:
        g.wait(kv[16 * (sig[0] + 1) - 1])
        sig[0] += 1
        e(f"v_mov_b32 v5, {sig[0]}\nds_write_b32 v7, v5 offset:{PROG}")
    stamp(5)
    e(f"s_setprio 0\nv_mov_b32 v5, {NON}")
    g.label("L_nodrain")
    e(f"""
    v_and_b32 v4, 3, v2
    v_lshlrev_b32 v4, 8, v4
    v_lshl_add_u32 v4, v3, 4, v4
    v_add_u32 v4, {OB}, v4
    ds_read_b64 v[{FR+26}:{FR+27}], v5
    v_lshrrev_b32 v5, 1, v2
    v_lshlrev_b32 v5, 13, v5
    v_and_b32 v0, 1, v2
    v_lshl_add_u32 v5, v0, 6, v5
    v_lshl_add_u32 v5, v3, 4, v5
    s_lshl_b32 s50, s42, 18
    s_lshl_b32 s51, s48, 16
    s_add_u32 s50, s50, s51
    s_add_u32 s50, s50, s63
    s_add_u32 s96, s50, {MSG2}
    v_and_b32 v0, 1, v3
    v_cmp_eq_u32 s[4:5], 1, v0
    v_cmp_le_u32 s[6:7], 2, v3
    v_lshlrev_b32 v0, 4, v0
    s_mov_b32 s98, {(~TMASK) & 0xffffffff}
    v_lshlrev_b32 v{FR+24}, 11, v3
    v_lshl_add_u32 v{FR+24}, v2, 4, v{FR+24}
    s_lshl_b32 s50, s45, 15
    s_lshl_b32 s51, s43, 13
    s_add_u32 s50, s50, s51
    s_lshl_b32 s51, s48, 9
    s_add_u32 s50, s50, s51
    s_add_u32 s54, s50, {MSG1}
    v_lshlrev_b32 v{FR+25}, 8, v3
    v_lshl_add_u32 v{FR+25}, v2, 1, v{FR+25}
    s_lshl_b32 s50, s48, 6
    s_add_u32 s50, s50, {OB}
    v_add_u32 v{FR+25}, s50, v{FR+25}
    s_waitcnt lgkmcnt(0)
    v_readfirstlane_b32 s50, v{FR+26}
    v_readfirstlane_b32 s51, v{FR+27}
    s_nop 3
    s_and_b32 s56, s50, {TMASK}
    s_bfe_u32 s57, s50, {TAGB | (TAGB << 16)}
    s_lshr_b64 s[58:59], s[50:51], {2*TAGB}
    s_and_b32 s58, s58, {TMASK}
    s_bfe_u32 s59, s51, {(3*TAGB-32) | (TAGB << 16)}
    """)
    if pretouch and not pt0:
        e("s_cmp_lg_u32 s44, 10\ns_cbranch_scc1 L_nopt")
        spin2(pt_at, 6, FR + 26, sleep=2)
        e(f"""
        s_lshl_b32 s50, s45, 15
        s_lshl_b32 s51, s43, 13
        s_add_u32 s50, s50, s51
        s_add_u32 s50, s50, {MSG1}
        s_add_u32 s51, s50, 4096
        v_lshlrev_b32 v{FR+26}, 4, v1
        """)
        for i in range(8):
            e(f"buffer_load_dwordx4 v[{FR}:{FR+3}], v{FR+26}, s[36:39], s{50 + i // 4} offen offset:{(i % 4) * 1024} {ptpol}")
        e("s_waitcnt vmcnt(0)")
        g.label("L_nopt")
    if stwait:
        spin(C_ST, 8, 6, FR + 26, sleep=1)
    else:
        spin2(8, 6, FR + 26, sleep=2)
    e("s_mov_b32 s61, 0")
    stamp(7)
    R = FR
    g.label("L_m1l")
    e(f"""
    buffer_load_dwordx4 v[{R}:{R+3}], v{FR+24}, s[36:39], s54 offen sc1
    buffer_load_dwordx4 v[{R+4}:{R+7}], v{FR+24}, s[36:39], s54 offen offset:256 sc1
    s_waitcnt vmcnt(0)
    """)
    for i in range(8):
        e(f"v_xor_b32 v{R+i}, s{56 + i % 4}, v{R+i}")
    e(f"""
    v_or3_b32 v6, v{R}, v{R+1}, v{R+2}
    v_or3_b32 v6, v6, v{R+3}, v{R+4}
    v_or3_b32 v6, v6, v{R+5}, v{R+6}
    v_or_b32 v6, v6, v{R+7}
    v_and_b32 v6, {TMASK}, v6
    v_cmp_eq_u32 vcc, 0, v6
    s_nop 3
    s_cmp_eq_u64 vcc, -1
    s_cbranch_scc1 L_m1g
    s_add_u32 s61, s61, 1
    s_cmp_lt_u32 s61, {spin_limit}
    s_cbranch_scc1 L_m1l
    """)
    g.label("L_m1g")
    stamp(10)
    for sw in ("v_permlane32_swap_b32", "v_permlane16_swap_b32"):
        for i in range(8): e(f"v_mov_b32 v{R+8+i}, v{R+i}")
        for i in range(8): e(f"{sw} v{R+i}, v{R+8+i}")
        e("s_nop 0")
        for i in range(0, 8, 2): e(f"v_pk_add_f32 v[{R+i}:{R+i+1}], v[{R+i}:{R+i+1}], v[{R+8+i}:{R+8+i+1}]")
    e(f"""
    v_cvt_pk_bf16_f32 v{R+8}, v{R}, v{R+1}
    v_cvt_pk_bf16_f32 v{R+9}, v{R+2}, v{R+3}
    v_cvt_pk_bf16_f32 v{R+10}, v{R+4}, v{R+5}
    v_cvt_pk_bf16_f32 v{R+11}, v{R+6}, v{R+7}
    v_cndmask_b32 v{R+8}, v{R+8}, v{R+9}, s[6:7]
    v_cndmask_b32 v{R+10}, v{R+10}, v{R+11}, s[6:7]
    v_lshrrev_b32 v{R+8}, v0, v{R+8}
    v_lshrrev_b32 v{R+10}, v0, v{R+10}
    ds_write_b16 v{FR+25}, v{R+8}
    ds_write_b16 v{FR+25}, v{R+10} offset:32
    s_waitcnt lgkmcnt(0)
    s_barrier
    """)
    stamp(8)
    AF = FR; OA = FR + 16
    for j in range(4):
        e(f"ds_read_b128 v[{AF+4*j}:{AF+4*j+3}], v4 offset:{64*j}")
    for h in range(2):
        for j in range(4):
            if h == 0: e(f"s_waitcnt lgkmcnt({3-j})")
            for q in range(4):
                jc = 4 * h + q
                c = "0" if j == 0 else f"v[{OA+4*q}:{OA+4*q+3}]"
                b = WB + 32 * j + 4 * jc
                e(f"v_mfma_f32_16x16x32_bf16 v[{OA+4*q}:{OA+4*q+3}], v[{AF+4*j}:{AF+4*j+3}], v[{b}:{b+3}], {c}")
        g.nop(8)
        t0 = WB + 16 * h
        for r in range(4):
            e(f"""
            v_cndmask_b32 v{t0+r}, v{OA+r}, v{OA+4+r}, s[4:5]
            v_cndmask_b32 v{t0+4+r}, v{OA+8+r}, v{OA+12+r}, s[4:5]
            """)
        for r in range(4):
            e(f"v_cndmask_b32 v{t0+r}, v{t0+r}, v{t0+4+r}, s[6:7]")
        for r in range(4):
            e(f"v_and_b32 v{t0+r}, s98, v{t0+r}\nv_or_b32 v{t0+r}, s{56+r}, v{t0+r}")
        e(f"buffer_store_dwordx4 v[{t0}:{t0+3}], v5, s[36:39], s96 offen offset:{128*h} {m2st}")
    if m2wait:
        e(f"v_mov_b32 v6, {SYN}\nv_mov_b32 v7, 1\ns_mov_b64 exec, 1\nds_add_u32 v6, v7 offset:{C_M2}\ns_mov_b64 exec, -1")
    stamp(9)
    stamp_store()

    hdr = f"""; fused GQA decode block: q-proj -> split-KV attention -> out-proj, one launch, in-kernel hand-offs
; @launch grid=(256,1,1) block=({64*NW},1,1) lds={LDS_TOTAL}
.amdgcn_target "amdgcn-amd-amdhsa--gfx950"
.text
.globl {KNAME}
.p2align 8
.type {KNAME},@function
{KNAME}:
"""
    ftr = f"""L_done:
    s_endpgm
.section .rodata,"a"
.p2align 6
.amdhsa_kernel {KNAME}
  .amdhsa_next_free_vgpr 168
  .amdhsa_next_free_sgpr 102
  .amdhsa_accum_offset 168
  .amdhsa_group_segment_fixed_size 0
  .amdhsa_kernarg_size 64
  .amdhsa_user_sgpr_count 2
  .amdhsa_user_sgpr_kernarg_segment_ptr 1
  .amdhsa_system_sgpr_workgroup_id_x 1
  .amdhsa_float_denorm_mode_32 3
.end_amdhsa_kernel
"""
    return hdr + g.text() + ftr

if __name__ == "__main__":
    B = (32, 32, 20, 18, 16, 14, 12, 10)
    open("z_nt.s", "w").write(gen(THW=8, WS=B))
    open("z_def.s", "w").write(gen(THW=8, WS=B, kvpol="", pol="", wqpol=""))
    open("z_kvdef.s", "w").write(gen(THW=8, WS=B, kvpol=""))
    open("z_sc1.s", "w").write(gen(THW=8, WS=B, kvpol="sc1", pol="", wqpol=""))
    open("z_def_st.s", "w").write(gen(THW=8, WS=B, kvpol="", pol="", wqpol="", stamps=True))
```

```python
import sys
from gen1 import G, KNAME

STATS = 0x80000
MSG1 = 0x100000
MSG2 = 0x300000
QWS = 0x600000
DBGA = 0x800000
FAST = 0x1000000
AUX1 = 131072
AUX2 = 147456
MX = AUX2
LS = AUX2 + 512
SCL = AUX2 + 1024
NON = AUX2 + 1536
SYN = AUX2 + 1600
PROG = 0
C_PART, F_PD, F_Q, C_M, C_L, F_N, F_SCL = [8 + 4 * i for i in range(7)]
C_KR = 40
C_M2 = 56
OB = AUX2 + 2048
QL = AUX2 + 4096
RED = AUX2 + 8192
LDS_TOTAL = 163840
TAGB = 11
TMASK = (1 << TAGB) - 1
NW = 12

def gen(stamps=False, spin_limit=20000, THW=8, WS=(32, 32, 20, 18, 16, 14, 12, 10), wo_start=1, wopol="", wqpol="", xpol="",
        kvpol="nt", ldprio=3, ld_early=0, forceslow=False, probe=False, qsm=15, ssm=15):
    g = G()
    e = g.e
    nst = [0]
    def stamp(idx=None):
        if not stamps: return
        i = nst[0] if idx is None else idx
        if idx is None: nst[0] += 1
        assert i < 14
        e(f"s_memrealtime s[100:101]\ns_waitcnt lgkmcnt(0)\ns_mov_b32 s{80+i}, s100")
    def stamp_store():
        if not stamps: return
        e(f"s_mul_i32 s50, s2, {NW}\ns_add_u32 s50, s50, s44\ns_lshl_b32 s50, s50, 6\ns_add_u32 s50, s50, {DBGA}\nv_mov_b32 v24, 0\ns_mov_b64 exec, 1")
        for i in range(0, 16, 4):
            for k in range(4): e(f"v_mov_b32 v{28+k}, s{80+i+k}")
            e(f"buffer_store_dwordx4 v[28:31], v24, s[36:39], s50 offen offset:{4*i}\ns_nop 1")
    def xreduce(r, tmp, op):
        for sw in ("v_permlane32_swap_b32", "v_permlane16_swap_b32"):
            e(f"v_mov_b32 v{tmp}, v{r}\ns_nop 1\n{sw} v{r}, v{tmp}\ns_nop 0\n{op} v{r}, v{r}, v{tmp}")
    def xsum4(a, t, sws=("v_permlane32_swap_b32", "v_permlane16_swap_b32")):
        for sw in sws:
            for i in range(4): e(f"v_mov_b32 v{t+i}, v{a+i}")
            e("s_nop 0")
            for i in range(4): e(f"{sw} v{a+i}, v{t+i}")
            e("s_nop 0")
            e(f"v_pk_add_f32 v[{a}:{a+1}], v[{a}:{a+1}], v[{t}:{t+1}]\nv_pk_add_f32 v[{a+2}:{a+3}], v[{a+2}:{a+3}], v[{t+2}:{t+3}]")
    def spin(word, val, vsyn, vtmp, sleep=1, two=False):
        l1, l2 = g.newlabel("Lsp"), g.newlabel("Lspd")
        e("s_mov_b32 s61, 0")
        g.label(l1)
        if two:
            e(f"ds_read_b64 v[{vtmp}:{vtmp+1}], v{vsyn} offset:{word}\ns_waitcnt lgkmcnt(0)\nv_min_u32 v{vtmp}, v{vtmp}, v{vtmp+1}\ns_nop 0")
        else:
            e(f"ds_read_b32 v{vtmp}, v{vsyn} offset:{word}\ns_waitcnt lgkmcnt(0)")
        e(f"""
        v_readfirstlane_b32 s60, v{vtmp}
        s_nop 3
        s_cmp_ge_u32 s60, {val}
        s_cbranch_scc1 {l2}
        {f's_sleep {sleep}' if sleep else ''}
        s_add_u32 s61, s61, 1
        s_cmp_lt_u32 s61, {spin_limit * 20}
        s_cbranch_scc1 {l1}
        """)
        g.label(l2)
    def arrive(word, vsyn, vone):
        e(f"s_waitcnt lgkmcnt(0)\ns_mov_b64 exec, 1\nds_add_u32 v{vsyn}, v{vone} offset:{word}\ns_mov_b64 exec, -1")
    def srd(d, p, size):
        e(f"s_mov_b32 s{d}, s{p}\ns_mov_b32 s{d+1}, s{p+1}\ns_mov_b32 s{d+2}, {size}\ns_mov_b32 s{d+3}, 0x00020000")
    def stags(lo, hi):
        e(f"""
        s_and_b32 s56, s{lo}, {TMASK}
        s_bfe_u32 s57, s{lo}, {TAGB | (TAGB << 16)}
        s_lshr_b64 s[58:59], s[{lo}:{hi}], {2*TAGB}
        s_and_b32 s58, s58, {TMASK}
        s_bfe_u32 s59, s{hi}, {(3*TAGB-32) | (TAGB << 16)}
        """)
    def check(vreg, lok, lloop, lim):
        e(f"""
        v_and_b32 v{vreg}, {TMASK}, v{vreg}
        v_cmp_eq_u32 vcc, 0, v{vreg}
        s_nop 3
        s_cmp_eq_u64 vcc, -1
        s_cbranch_scc1 {lok}
        s_add_u32 s61, s61, 1
        s_cmp_lt_u32 s61, {lim}
        s_cbranch_scc1 {lloop}
        """)
    WB = 8
    def wo_issue(i, tagp):
        j, ee = i // 8, i % 8
        r = WB + 32 * (j + 1) + 4 * ee
        off = (32 * j + ee) * 1024
        e(f"s_add_u32 s50, s97, {off & ~4095}")
        g.vm(f"buffer_load_dwordx4 v[{r}:{r+3}], v4, s[24:27], s50 offen offset:{off & 4095} {wopol}", f"{tagp}{i}")
    e(f"""
    s_cmp_ge_u32 s2, 256
    s_cbranch_scc1 L_done
    s_load_dwordx16 s[64:79], s[0:1], 0
    s_memrealtime s[98:99]
    v_and_b32 v1, 63, v0
    v_lshrrev_b32 v4, 6, v0
    v_and_b32 v2, 15, v0
    v_bfe_u32 v3, v0, 4, 2
    v_readfirstlane_b32 s44, v4
    s_and_b32 s40, s2, 7
    s_lshr_b32 s41, s2, 3
    s_lshr_b32 s42, s41, 2
    s_and_b32 s43, s41, 3
    s_lshl_b32 s45, s42, 3
    s_add_u32 s45, s45, s40
    s_lshl_b32 s51, s40, 2
    s_add_u32 s51, s51, s43
    s_lshl_b32 s63, s51, 8
    s_mov_b32 s3, {FAST}
    v_mov_b32 v6, {SYN}
    s_cmp_lt_u32 s44, 8
    s_cbranch_scc1 L_cw
    s_sub_u32 s48, s44, 8
    v_lshlrev_b32 v4, 13, v3
    v_lshl_add_u32 v4, v2, 4, v4
    s_lshl_b32 s97, s63, 9
    s_lshl_b32 s50, s48, 8
    s_add_u32 s97, s97, s50
    s_bitcmp0_b32 s44, 0
    s_cbranch_scc1 L_op
    """)
    e(f"""
    s_setprio {ldprio}
    s_lshr_b32 s49, s48, 1
    s_lshl_b32 s46, s45, 2
    s_add_u32 s46, s46, s43
    s_lshl_b32 s46, s46, 17
    s_lshl_b32 s47, s49, 16
    s_add_u32 s46, s46, s47
    s_lshl_b32 s50, s49, 2
    v_add_u32 v7, s50, v6
    s_add_u32 s94, s41, s40
    v_xor_b32 v8, v2, v3
    v_lshlrev_b32 v8, 4, v8
    v_lshl_add_u32 v8, v3, 8, v8
    v_lshlrev_b32 v12, 1, v3
    v_xor_b32 v12, v2, v12
    v_lshlrev_b32 v12, 4, v12
    v_lshl_add_u32 v12, v3, 8, v12
    v_xor_b32 v9, 64, v8
    v_xor_b32 v10, 0x80, v8
    v_xor_b32 v11, 0xc0, v8
    v_xor_b32 v13, 0x80, v12
    s_add_u32 s95, s42, s49
    """)
    for x in range(4):
        e(f"s_add_u32 s50, s94, {x}\ns_and_b32 s50, s50, 3\ns_lshl_b32 s50, s50, 12\ns_add_u32 s{52+x}, s50, s46")
        e(f"s_add_u32 s50, s95, {x}\ns_and_b32 s50, s50, 3\ns_lshl_b32 s{56+x}, s50, 10")
    e("s_waitcnt lgkmcnt(0)")
    srd(12, 66, 0x2000000); srd(16, 68, 0x2000000); srd(24, 72, 0x400000); srd(36, 78, 0x10000000)
    stamp(0)
    if not ld_early: e("s_barrier")
    kv = []; woi = [0]; sig = [0]; known = [0]
    for ph in range(2):
        for t in range(4):
            if ph == 0 and t == 3: spin(F_PD, 1, 6, 15)
            if ph == 1: spin(C_KR + 4 * t, 8, 6, 15)
            for k in range(4):
                for u in range(4):
                    n = len(kv)
                    if ld_early and n == ld_early: e("s_barrier")
                    Wc = WS[n // 16]
                    if n >= Wc and n - Wc + 1 > known[0]:
                        g.wait(kv[n - Wc]); known[0] = n - Wc + 1
                    e(f"s_add_u32 m0, s47, {16384*u + 4096*t + 1024*k}\ns_add_u32 s50, s{52 + (t+u)%4}, s{56 + (k+u)%4}\ns_add_u32 s50, s50, {16384*u}")
                    if ph == 0:
                        g.vm(f"buffer_load_dwordx4 v{8+k}, s[12:15], s50 offen {kvpol} lds", f"kv{n}")
                    else:
                        g.vm(f"buffer_load_dwordx4 v{12+(k&1)}, s[16:19], s50 offen {kvpol} lds", f"kv{n}")
                    kv.append(f"kv{n}")
                    while sig[0] < 8 and known[0] >= 16 * (sig[0] + 1):
                        sig[0] += 1
                        e(f"v_mov_b32 v14, {sig[0]}\nds_write_b32 v7, v14 offset:{PROG}")
                    gi = ph * 4 + t
                    if gi >= wo_start and woi[0] < 32 and (n % (3 if wo_start <= 1 else 2) == 0 or gi >= 6):
                        wo_issue(woi[0], "wl"); woi[0] += 1
    assert woi[0] == 32, woi[0]
    stamp(4)
    g.wait("wl31")
    e("s_branch L_tr2")
    drain = []
    while sig[0] < 8:
        drain.append((g.nvm - g.pos[kv[16 * (sig[0] + 1) - 1]], sig[0] + 1))
        sig[0] += 1

    g.label("L_cw")
    e(f"""
    s_lshl_b32 s47, s44, 14
    s_and_b32 s52, s43, 1
    s_lshr_b32 s53, s43, 1
    s_lshl_b32 s46, s52, 2
    s_add_u32 s46, s46, s44
    s_and_b32 s46, s46, 7
    s_lshl_b32 s50, s53, 3
    s_add_u32 s46, s46, s50
    v_lshrrev_b32 v14, 2, v1
    v_and_b32 v15, 3, v1
    v_lshlrev_b32 v15, 4, v15
    v_lshl_add_u32 v16, v14, 10, v15
    v_lshl_add_u32 v14, v14, 13, v15
    s_lshl_b32 s50, s46, 18
    s_lshl_b32 s51, s40, 10
    s_add_u32 s50, s50, s51
    s_lshl_b32 s51, s42, 7
    s_add_u32 s50, s50, s51
    s_lshl_b32 s51, s52, 6
    s_add_u32 s50, s50, s51
    s_lshl_b32 s51, s44, 11
    s_add_u32 s62, s51, {AUX1}
    s_lshl_b32 s51, s46, 6
    s_waitcnt lgkmcnt(0)
    """)
    srd(20, 70, 0x400000); srd(8, 64, 32768)
    stamp()
    e(f"""
    s_mov_b32 m0, s62
    s_add_u32 s54, s50, 0x20000
    buffer_load_dwordx4 v14, s[20:23], s50 offen {wqpol} lds
    s_add_u32 m0, s62, 1024
    s_add_u32 s55, s51, 16384
    buffer_load_dwordx4 v14, s[20:23], s54 offen {wqpol} lds
    s_add_u32 m0, s47, 12288
    s_nop 0
    buffer_load_dwordx4 v16, s[8:11], s51 offen {xpol} lds
    s_add_u32 m0, s47, 13312
    s_nop 0
    buffer_load_dwordx4 v16, s[8:11], s55 offen {xpol} lds
    s_barrier
    """)
    srd(28, 74, 32768); srd(36, 78, 0x10000000)
    e(f"""
    v_lshrrev_b32 v24, 2, v2
    v_lshl_add_u32 v24, v3, 3, v24
    v_lshlrev_b32 v24, 6, v24
    v_and_b32 v25, 3, v1
    v_lshl_add_u32 v24, v25, 3, v24
    v_add_u32 v24, s62, v24
    v_lshlrev_b32 v25, 6, v2
    v_lshl_add_u32 v25, v3, 4, v25
    v_add_u32 v25, s47, v25
    v_lshlrev_b32 v27, 4, v1
    v_add_u32 v27, s47, v27
    v_mov_b32 v20, {SYN}
    v_mov_b32 v21, 1
    s_lshr_b32 s50, s44, 2
    s_lshl_b32 s50, s50, 2
    v_add_u32 v19, s50, v20
    v_lshlrev_b32 v16, 13, v3
    v_lshl_add_u32 v16, v2, 4, v16
    s_lshl_b32 s50, s45, 15
    s_lshl_b32 s51, s43, 11
    s_add_u32 s50, s50, s51
    s_lshl_b32 s51, s44, 8
    s_add_u32 s50, s50, s51
    s_add_u32 s50, s50, {MSG1}
    v_add_u32 v16, s50, v16
    v_lshlrev_b32 v17, 8, v2
    v_lshl_add_u32 v17, v3, 4, v17
    v_add_u32 v17, {QL}, v17
    v_mov_b32 v18, {NON}
    v_xor_b32 v12, v2, v3
    v_lshlrev_b32 v12, 4, v12
    v_lshlrev_b32 v13, 8, v2
    v_add_u32 v13, s47, v13
    v_add_u32 v28, v13, v12
    v_xor_b32 v29, 64, v12
    v_add_u32 v29, v13, v29
    v_xor_b32 v30, 0x80, v12
    v_add_u32 v30, v13, v30
    v_xor_b32 v31, 0xc0, v12
    v_add_u32 v31, v13, v31
    s_waitcnt vmcnt(0)
    """)
    stamp()
    XF = 96; WF = 104; QA = 112
    for ct in range(2):
        e(f"ds_read_b64_tr_b16 v[{WF+4*ct}:{WF+4*ct+1}], v24 offset:{32*ct}")
        e(f"ds_read_b64_tr_b16 v[{WF+4*ct+2}:{WF+4*ct+3}], v24 offset:{32*ct+256}")
    for rt in range(2):
        e(f"ds_read_b128 v[{XF+4*rt}:{XF+4*rt+3}], v25 offset:{12288 + 1024*rt}")
    e("s_waitcnt lgkmcnt(0)")
    for ct in range(2):
        for rt in range(2):
            q = QA + 4 * (2 * ct + rt)
            e(f"v_mfma_f32_16x16x32_bf16 v[{q}:{q+3}], v[{WF+4*ct}:{WF+4*ct+3}], v[{XF+4*rt}:{XF+4*rt+3}], 0")
    g.nop(8)
    for i in range(4):
        e(f"ds_write_b128 v27, v[{QA+4*i}:{QA+4*i+3}] offset:{12288 + 1024*i}")
    arrive(C_PART, 20, 21)
    stamp()
    KF = 32
    for t in range(4):
        spin(PROG, t + 1, 19, 22, sleep=2)
        for j in range(4):
            r = KF + 16 * t + 4 * j
            e(f"ds_read_b128 v[{r}:{r+3}], v{28+j} offset:{4096*t}")
        arrive(C_KR + 4 * t, 20, 21)
    stamp()
    spin(F_Q, 1, 20, 22, sleep=2)
    e("s_mov_b32 s94, s60")
    stamp()
    QF = 96; SA = 112; T = 128
    for j in range(4):
        e(f"ds_read_b128 v[{QF+4*j}:{QF+4*j+3}], v17 offset:{64*j}")
    e("ds_read_b64 v[22:23], v18")
    for j in range(4):
        e(f"s_waitcnt lgkmcnt({4-j})")
        for t in range(4):
            r = KF + 16 * t + 4 * j
            c = "0" if j == 0 else f"v[{SA+4*t}:{SA+4*t+3}]"
            e(f"v_mfma_f32_16x16x32_bf16 v[{SA+4*t}:{SA+4*t+3}], v[{r}:{r+3}], v[{QF+4*j}:{QF+4*j+3}], {c}")
    e(f"""
    s_waitcnt lgkmcnt(0)
    v_and_b32 v4, {TMASK}, v22
    v_bfe_u32 v5, v22, {TAGB}, {TAGB}
    v_alignbit_b32 v6, v23, v22, {2*TAGB}
    v_and_b32 v6, {TMASK}, v6
    v_bfe_u32 v7, v23, {3*TAGB-32}, {TAGB}
    s_mov_b32 s50, 0x3db504f3
    s_mov_b32 s51, 0xffff0000
    s_mov_b32 s99, 0x3fb8aa3b
    s_nop 1
    """)
    for p in range(8):
        a = SA + 2 * p
        e(f"""
        v_cvt_pk_bf16_f32 v{T}, v{a}, v{a+1}
        v_lshlrev_b32 v{a}, 16, v{T}
        v_and_b32 v{a+1}, s51, v{T}
        v_mul_f32 v{a}, s50, v{a}
        v_mul_f32 v{a+1}, s50, v{a+1}
        v_cvt_pk_bf16_f32 v{T}, v{a}, v{a+1}
        v_lshlrev_b32 v{a}, 16, v{T}
        v_and_b32 v{a+1}, s51, v{T}
        """)
    e(f"v_max3_f32 v{T}, v{SA}, v{SA+1}, v{SA+2}")
    for i in range(3, 15, 2):
        e(f"v_max3_f32 v{T}, v{T}, v{SA+i}, v{SA+i+1}")
    e(f"v_max_f32 v{T}, v{T}, v{SA+15}")
    xreduce(T, T + 1, "v_max_f32")
    e(f"""
    v_lshlrev_b32 v12, 5, v2
    v_add_u32 v12, {MX}, v12
    s_lshl_b32 s50, s44, 2
    v_add_u32 v13, s50, v12
    ds_write_b32 v13, v{T}
    """)
    arrive(C_M, 20, 21)
    spin(C_M, 8, 20, 22)
    e(f"ds_read_b128 v[{T+4}:{T+7}], v12\nds_read_b128 v[{T+8}:{T+11}], v12 offset:16\ns_waitcnt lgkmcnt(0)")
    e(f"""
    v_max3_f32 v{T}, v{T+4}, v{T+5}, v{T+6}
    v_max3_f32 v{T}, v{T}, v{T+7}, v{T+8}
    v_max3_f32 v{T}, v{T}, v{T+9}, v{T+10}
    v_max_f32 v{T}, v{T}, v{T+11}
    v_mul_f32 v23, s99, v{T}
    """)
    for i in range(16):
        e(f"v_fma_f32 v{SA+i}, v{SA+i}, s99, -v23")
    for i in range(16):
        e(f"v_exp_f32 v{SA+i}, v{SA+i}")
    e("s_nop 0")
    e(f"v_lshlrev_b32 v14, 3, v1\nv_add_u32 v14, s62, v14")
    for t in range(4):
        a = SA + 4 * t
        e(f"v_cvt_pk_bf16_f32 v{T+2*t}, v{a}, v{a+1}\nv_cvt_pk_bf16_f32 v{T+2*t+1}, v{a+2}, v{a+3}")
        e(f"ds_write_b64 v14, v[{T+2*t}:{T+2*t+1}] offset:{512*t}")
    for st in (8, 4, 2):
        for i in range(0, st, 2):
            a = SA + i; b = SA + i + st
            e(f"v_pk_add_f32 v[{a}:{a+1}], v[{a}:{a+1}], v[{b}:{b+1}]")
    e(f"v_add_f32 v{SA}, v{SA}, v{SA+1}")
    xreduce(SA, SA + 1, "v_add_f32")
    e(f"ds_write_b32 v13, v{SA} offset:512")
    arrive(C_L, 20, 21)
    PF = 32; BF = 112; PVA = 160; SC = 164
    e(f"""
    v_lshrrev_b32 v24, 2, v2
    v_lshl_add_u32 v24, v3, 2, v24
    v_and_b32 v25, 7, v24
    v_lshlrev_b32 v25, 1, v25
    v_bfe_u32 v27, v1, 1, 1
    s_lshl_b32 s50, s44, 1
    v_add_u32 v27, s50, v27
    v_xor_b32 v25, v25, v27
    v_lshlrev_b32 v25, 4, v25
    v_lshl_add_u32 v25, v24, 8, v25
    v_and_b32 v27, 1, v1
    v_lshl_add_u32 v25, v27, 3, v25
    v_add_u32 v26, 0x10000, v25
    v_lshlrev_b32 v27, 3, v1
    v_add_u32 v27, {AUX1}, v27
    v_and_b32 v30, 1, v3
    v_lshlrev_b32 v30, 4, v30
    v_cmp_le_u32 s[6:7], 2, v3
    v_lshlrev_b32 v19, 4, v3
    v_add_u32 v19, {SCL}, v19
    s_mov_b32 s98, {(~TMASK) & 0xffffffff}
    """)
    spin(C_L, 8, 20, 22)
    stamp()
    lnp = g.newlabel("Lnp")
    A = 128
    e(f"""
    s_cmp_lg_u32 s44, 1
    s_cbranch_scc1 {lnp}
    ds_read_b128 v[{A+8}:{A+11}], v12 offset:512
    ds_read_b128 v[{A+12}:{A+15}], v12 offset:528
    ds_read_b64 v[{A+18}:{A+19}], v18
    v_lshlrev_b32 v{A+21}, 4, v2
    s_lshl_b32 s50, s45, 10
    s_add_u32 s50, s50, {STATS}
    s_lshl_b32 s51, s43, 8
    s_add_u32 s51, s51, s50
    v_mov_b32 v{A+16}, v23
    s_waitcnt lgkmcnt(0)
    v_pk_add_f32 v[{A+8}:{A+9}], v[{A+8}:{A+9}], v[{A+10}:{A+11}]
    v_pk_add_f32 v[{A+12}:{A+13}], v[{A+12}:{A+13}], v[{A+14}:{A+15}]
    v_pk_add_f32 v[{A+8}:{A+9}], v[{A+8}:{A+9}], v[{A+12}:{A+13}]
    v_add_f32 v{A+17}, v{A+8}, v{A+9}
    s_mov_b64 exec, 0xffff
    s_cmp_eq_u32 s94, 2
    s_cbranch_scc0 L_sts
    buffer_store_dwordx4 v[{A+16}:{A+19}], v{A+21}, s[36:39], s51 offen
    s_branch L_std
    """)
    g.label("L_sts")
    e(f"buffer_store_dwordx4 v[{A+16}:{A+19}], v{A+21}, s[36:39], s51 offen sc1")
    g.label("L_std")
    e("s_mov_b64 exec, -1")
    g.label(lnp)
    for k in range(4):
        for i in range(4):
            r = PF + 16 * k + 4 * i
            e(f"ds_read2st64_b64 v[{r}:{r+3}], v27 offset0:{8*i+k} offset1:{8*i+4+k}")
        if k == 1: e("s_waitcnt lgkmcnt(0)")
    first = [True]
    def pv_phase(k):
        for i in range(4):
            for hf in range(2):
                u = 2 * i + hf
                r = BF + 4 * i + 2 * hf
                e(f"ds_read_b64_tr_b16 v[{r}:{r+1}], v{25 if u < 4 else 26} offset:{(u % 4) * 16384 + 4096 * k}")
        for i in range(4):
            e(f"s_waitcnt lgkmcnt({6 - 2*i})")
            c = "0" if first[0] else f"v[{PVA}:{PVA+3}]"
            first[0] = False
            e(f"v_mfma_f32_16x16x32_bf16 v[{PVA}:{PVA+3}], v[{PF+16*k+4*i}:{PF+16*k+4*i+3}], v[{BF+4*i}:{BF+4*i+3}], {c}")
    for k in range(3):
        spin(PROG, 5 + k, 20, 22, sleep=2, two=True)
        pv_phase(k)
    stamp()
    spin(F_SCL, 1, 20, 22, sleep=1)
    e(f"ds_read_b128 v[{SC}:{SC+3}], v19")
    stamp()
    spin(PROG, 8, 20, 22, sleep=0, two=True)
    stamp()
    pv_phase(3)
    g.nop(8)
    for i in range(4):
        e(f"v_mul_f32 v{PVA+i}, v{PVA+i}, v{SC+i}")
    for i in range(4):
        e(f"v_and_or_b32 v{PVA+i}, v{PVA+i}, s98, v{4+i}")
    lsl, lsd = g.newlabel("Lsl"), g.newlabel("Lsd")
    e(f"""
    s_cmp_eq_u32 s94, 2
    s_cbranch_scc0 {lsl}
    buffer_store_dwordx4 v[{PVA}:{PVA+3}], v16, s[36:39], 0 offen
    s_branch {lsd}
    """)
    g.label(lsl)
    e(f"buffer_store_dwordx4 v[{PVA}:{PVA+3}], v16, s[36:39], 0 offen sc1")
    g.label(lsd)
    stamp()
    nst[0] = 12
    lend = g.newlabel("Lend")
    e(f"s_cmp_lg_u32 s44, 0\ns_cbranch_scc1 {lend}")
    e(f"""
    v_lshlrev_b32 v24, 4, v1
    s_lshl_b32 s50, s42, 18
    s_lshl_b32 s51, s63, 5
    s_add_u32 s50, s50, s51
    s_add_u32 s50, s50, {MSG2}
    s_add_u32 s51, s50, 4096
    v_lshlrev_b32 v25, 10, v3
    v_and_b32 v26, 3, v2
    v_lshl_add_u32 v25, v26, 1, v25
    v_bfe_u32 v26, v2, 2, 1
    v_lshl_add_u32 v25, v26, 4, v25
    v_lshrrev_b32 v26, 3, v2
    v_lshl_add_u32 v25, v26, 3, v25
    s_lshl_b32 s96, s42, 12
    s_lshr_b32 s97, s63, 3
    s_add_u32 s96, s96, s97
    s_barrier
    """)
    spin(C_M2, 4, 20, 22, sleep=1)
    e("s_mov_b32 s61, 0")
    ll, lg = g.newlabel("Lm2l"), g.newlabel("Lm2g")
    g.label(ll)
    FB = 32
    for i in range(8):
        e(f"buffer_load_dwordx4 v[{FB+4*i}:{FB+4*i+3}], v24, s[36:39], s{50 + i // 4} offen offset:{(i % 4) * 1024} sc1")
    e("s_waitcnt vmcnt(0)")
    for i in range(32):
        e(f"v_xor_b32 v{FB+i}, v{FB+i}, v{4 + i % 4}")
    e(f"v_or3_b32 v28, v{FB}, v{FB+1}, v{FB+2}")
    for i in range(3, 31, 2):
        e(f"v_or3_b32 v28, v28, v{FB+i}, v{FB+i+1}")
    e(f"v_or_b32 v28, v28, v{FB+31}")
    check(28, lg, ll, spin_limit)
    g.label(lg)
    stamp()
    for st in (4, 2, 1):
        for w in range(st):
            a = FB + 4 * w; b = FB + 4 * (w + st)
            e(f"v_pk_add_f32 v[{a}:{a+1}], v[{a}:{a+1}], v[{b}:{b+1}]\nv_pk_add_f32 v[{a+2}:{a+3}], v[{a+2}:{a+3}], v[{b+2}:{b+3}]")
    xsum4(FB, FB + 4)
    e(f"""
    v_cvt_pk_bf16_f32 v28, v{FB}, v{FB+1}
    v_cvt_pk_bf16_f32 v29, v{FB+2}, v{FB+3}
    s_nop 0
    v_cndmask_b32 v28, v28, v29, s[6:7]
    v_lshrrev_b32 v28, v30, v28
    buffer_store_short v28, v25, s[28:31], s96 offen
    """)
    g.label(lend)
    stamp()
    stamp_store()
    e("s_endpgm")

    g.label("L_op")
    e(f"""
    s_setprio 3
    v_mov_b32 v5, 0
    v_mov_b32 v21, 1
    v_mov_b32 v17, {NON}
    v_lshlrev_b32 v24, 4, v1
    s_waitcnt lgkmcnt(0)
    """)
    srd(36, 78, 0x10000000); srd(24, 72, 0x400000)
    stamp(0)
    e("s_cmp_lg_u32 s44, 8\ns_cbranch_scc1 L_w10")
    e(f"""
    v_lshlrev_b32 v7, 2, v2
    v_add_u32 v7, {SYN}, v7
    ds_write_b32 v7, v5
    s_lshl_b32 s50, s45, 14
    s_lshl_b32 s51, s43, 12
    s_add_u32 s50, s50, s51
    s_add_u32 s50, s50, {QWS + FAST}
    buffer_load_dwordx4 v[32:35], v24, s[36:39], s50 offen sc1
    buffer_load_dwordx4 v[32:35], v24, s[36:39], s50 offen offset:1024 sc1
    buffer_load_dwordx4 v[32:35], v24, s[36:39], s50 offen offset:2048 sc1
    buffer_load_dwordx4 v[32:35], v24, s[36:39], s50 offen offset:3072 sc1
    s_waitcnt lgkmcnt(0)
    s_barrier
    s_lshl_b32 s52, s45, 10
    s_add_u32 s52, s52, {STATS}
    buffer_load_dwordx4 v[32:35], v24, s[36:39], s52 offen sc1
    s_lshl_b32 s50, s45, 15
    s_lshl_b32 s51, s43, 13
    s_add_u32 s50, s50, s51
    s_add_u32 s50, s50, {MSG1}
    s_add_u32 s51, s50, 4096
    """)
    for i in range(8):
        e(f"buffer_load_dwordx4 v[32:35], v24, s[36:39], s{50 + i // 4} offen offset:{(i % 4) * 1024} sc1")
    e(f"""
    v_add_u32 v26, 12288, v24
    v_add_u32 v25, 0x10000, v26
    v_lshrrev_b32 v27, 2, v2
    v_lshlrev_b32 v27, 17, v27
    v_and_b32 v28, 3, v2
    v_lshl_add_u32 v27, v28, 9, v27
    v_lshl_add_u32 v27, v3, 4, v27
    s_lshl_b32 s52, s40, 14
    s_lshr_b32 s53, s43, 1
    s_lshl_b32 s53, s53, 13
    s_add_u32 s52, s52, s53
    s_lshr_b32 s53, s42, 1
    s_lshl_b32 s53, s53, 11
    s_add_u32 s52, s52, s53
    s_and_b32 s53, s42, 1
    s_lshl_b32 s53, s53, 8
    s_add_u32 s52, s52, s53
    s_and_b32 s53, s43, 1
    s_lshl_b32 s53, s53, 7
    s_add_u32 s52, s52, s53
    s_add_u32 s52, s52, {QWS}
    s_add_u32 s53, s52, 0x80000
    s_add_u32 s54, s52, s3
    s_add_u32 s55, s53, s3
    s_mov_b32 s96, {(~TMASK) & 0xffffffff}
    """)
    spin(C_PART, 8, 6, 7)
    e("s_waitcnt vmcnt(0)")
    stamp(2)
    RT = 32
    for i in range(4):
        for w in range(8):
            r = RT + 32 * i + 4 * w
            e(f"ds_read_b128 v[{r}:{r+3}], v{26 if w < 4 else 25} offset:{(w % 4)*16384+i*1024}")
        e("s_waitcnt lgkmcnt(0)")
    e(f"ds_write_b32 v6, v21 offset:{F_PD}")
    for i in range(4):
        for st in (4, 2, 1):
            for w in range(st):
                a = RT + 32 * i + 4 * w; b = a + 4 * st
                e(f"v_pk_add_f32 v[{a}:{a+1}], v[{a}:{a+1}], v[{b}:{b+1}]\nv_pk_add_f32 v[{a+2}:{a+3}], v[{a+2}:{a+3}], v[{b+2}:{b+3}]")
        for r in range(4):
            a = RT + 32 * i + r
            e(f"v_add_u32 v{a}, {1 << (TAGB-1)}, v{a}\nv_and_b32 v{a}, s96, v{a}")
    spin(F_N, 1, 6, 7)
    e(f"""
    ds_read_b64 v[10:11], v17
    s_waitcnt lgkmcnt(0)
    v_readfirstlane_b32 s98, v10
    v_readfirstlane_b32 s99, v11
    s_nop 3
    """)
    stags(98, 99)
    stamp(1)
    e("s_getreg_b32 s51, hwreg(HW_REG_XCC_ID)\ns_and_b32 s51, s51, 15\ns_add_u32 s51, s51, 1\ns_xor_b32 s51, s51, s56")
    for i in range(4):
        for r in range(4):
            a = RT + 32 * i + r
            e(f"v_or_b32 v{8+4*i+r}, s{56+r}, v{a}")
            e(f"v_or_b32 v{a}, s{51 if r == 0 else 56+r}, v{a}")
    for ct in range(2):
        for rt in range(2):
            a = RT + 32 * (2 * ct + rt)
            e(f"buffer_store_dwordx4 v[{a}:{a+3}], v27, s[36:39], s{54 + rt} offen offset:{64*ct}")
    e("s_mov_b32 s46, s52\ns_mov_b32 s47, s53\ns_nop 1")
    stamp(3)
    e("s_branch L_wo")
    g.label("L_w10")
    srd(32, 76, 256)
    e(f"""
    s_or_b32 s99, s99, 0x80000000
    s_cmp_lg_u32 s2, 0
    s_cbranch_scc1 L_n0
    v_mov_b32 v22, s98
    v_mov_b32 v23, s99
    s_mov_b64 exec, 1
    buffer_store_dwordx2 v[22:23], v5, s[32:35], 0 offen sc0 sc1
    s_mov_b64 exec, -1
    s_barrier
    s_branch L_n1
    """)
    g.label("L_n0")
    e("buffer_load_dwordx2 v[22:23], v5, s[32:35], 0 offen sc1\ns_barrier\ns_mov_b32 s61, 0")
    g.label("L_auxn")
    e(f"""
    s_waitcnt vmcnt(0)
    v_readfirstlane_b32 s98, v22
    v_readfirstlane_b32 s99, v23
    s_nop 3
    s_cmp_lt_i32 s99, 0
    s_cbranch_scc1 L_n1
    buffer_load_dwordx2 v[22:23], v5, s[32:35], 0 offen sc1
    s_add_u32 s61, s61, 1
    s_cmp_lt_u32 s61, {spin_limit}
    s_cbranch_scc1 L_auxn
    """)
    g.label("L_n1")
    stamp(1)
    e(f"""
    v_mov_b32 v22, s98
    v_mov_b32 v23, s99
    ds_write_b64 v17, v[22:23]
    s_waitcnt lgkmcnt(0)
    ds_write_b32 v6, v21 offset:{F_N}
    s_lshl_b32 s50, s45, 14
    s_add_u32 s50, s50, {QWS}
    v_lshlrev_b32 v16, 3, v1
    v_add_u32 v16, {QL}, v16
    v_lshrrev_b32 v18, 5, v1
    v_lshlrev_b32 v18, 13, v18
    v_bfe_u32 v19, v1, 3, 2
    v_lshl_add_u32 v18, v19, 11, v18
    v_and_b32 v19, 7, v1
    v_lshl_add_u32 v18, v19, 6, v18
    """)
    stags(98, 99)
    e("s_getreg_b32 s53, hwreg(HW_REG_XCC_ID)\ns_and_b32 s53, s53, 15\ns_add_u32 s53, s53, 1\ns_xor_b32 s53, s53, s56\ns_mov_b32 s52, s56")
    spin(F_PD, 1, 6, 7)
    e("s_mov_b32 s61, 0")
    stamp(3)
    g.label("L_aux4")
    e(f"s_and_b32 s54, s61, {qsm}\ns_cmp_eq_u32 s54, {qsm}\ns_cselect_b32 s54, 0, s3\ns_cselect_b32 s56, s52, s53\ns_cselect_b32 s49, 1, {1 if forceslow else 2}\ns_add_u32 s54, s50, s54")
    if probe:
        e(f"""
        buffer_load_dwordx4 v[{RT}:{RT+3}], v18, s[36:39], s54 offen sc1
        s_waitcnt vmcnt(0)
        v_xor_b32 v{RT}, s56, v{RT}
        v_xor_b32 v{RT+1}, s57, v{RT+1}
        v_xor_b32 v{RT+2}, s58, v{RT+2}
        v_xor_b32 v{RT+3}, s59, v{RT+3}
        v_or3_b32 v7, v{RT}, v{RT+1}, v{RT+2}
        v_or_b32 v7, v7, v{RT+3}
        """)
        check(7, "L_aux4b", "L_aux4", spin_limit)
        g.label("L_aux4b")
    for i in range(16):
        if i % 4 == 0: e(f"s_add_u32 s55, s54, {1024*i}")
        e(f"buffer_load_dwordx4 v[{RT+4*i}:{RT+4*i+3}], v24, s[36:39], s55 offen offset:{(i % 4) * 1024} sc1")
    e("s_waitcnt vmcnt(0)")
    for i in range(64):
        e(f"v_xor_b32 v{RT+i}, s{56 + i % 4}, v{RT+i}")
    e(f"v_or3_b32 v7, v{RT}, v{RT+1}, v{RT+2}")
    for i in range(3, 63, 2):
        e(f"v_or3_b32 v7, v7, v{RT+i}, v{RT+i+1}")
    e(f"v_or_b32 v7, v7, v{RT+63}")
    check(7, "L_aux5", "L_aux4", spin_limit)
    g.label("L_aux5")
    for i in range(8):
        a = RT + 4 * i; b = a + 32
        e(f"""
        v_pk_add_f32 v[{a}:{a+1}], v[{a}:{a+1}], v[{b}:{b+1}]
        v_pk_add_f32 v[{a+2}:{a+3}], v[{a+2}:{a+3}], v[{b+2}:{b+3}]
        v_cvt_pk_bf16_f32 v{a}, v{a}, v{a+1}
        v_cvt_pk_bf16_f32 v{a+1}, v{a+2}, v{a+3}
        ds_write_b64 v16, v[{a}:{a+1}] offset:{512*i}
        """)
    e(f"v_mov_b32 v21, s49\ns_waitcnt lgkmcnt(0)\nds_write_b32 v6, v21 offset:{F_Q}\ns_waitcnt lgkmcnt(0)")
    stamp(4)
    g.label("L_wo")
    e("s_setprio 1")
    for i in range(32):
        if i >= THW: g.wait(f"wa{i-THW}")
        wo_issue(i, "wa")
    stamp(5)
    FR = WB; A = FR
    e(f"""
    s_cmp_lg_u32 s44, 8
    s_cbranch_scc1 L_tr
    s_setprio 3
    s_mov_b32 s61, 0
    """)
    g.label("L_dq")
    e(f"""
    ds_read_b64 v[28:29], v6 offset:{PROG}
    ds_read_b32 v30, v6 offset:{F_Q}
    s_waitcnt lgkmcnt(0)
    v_min_u32 v28, v28, v29
    v_readfirstlane_b32 s60, v30
    v_readfirstlane_b32 s50, v28
    s_nop 3
    s_cmp_eq_u32 s60, 2
    s_cbranch_scc1 L_dq2
    s_cmp_eq_u32 s60, 1
    s_cbranch_scc1 L_dq1
    s_cmp_ge_u32 s50, 8
    s_cbranch_scc1 L_dq1
    s_sleep 2
    s_add_u32 s61, s61, 1
    s_cmp_lt_u32 s61, {spin_limit * 20}
    s_cbranch_scc1 L_dq
    """)
    g.label("L_dq1")
    for ct in range(2):
        for rt in range(2):
            a2 = 8 + 4 * (2 * ct + rt)
            e(f"buffer_store_dwordx4 v[{a2}:{a2+3}], v27, s[36:39], s{46 + rt} offen offset:{64*ct} sc1")
    e("s_waitcnt vmcnt(0)")
    g.label("L_dq2")
    e(f"""
    v_lshlrev_b32 v{FR+21}, 4, v2
    s_lshl_b32 s50, s45, 10
    s_add_u32 s50, s50, {STATS}
    v_lshl_add_u32 v{FR+22}, v3, 8, v{FR+21}
    v_lshlrev_b32 v{FR+23}, 2, v2
    v_add_u32 v{FR+23}, {SCL}, v{FR+23}
    v_mov_b32 v{FR+24}, 1
    """)
    spin(C_L, 8, 6, 7)
    e("s_mov_b32 s61, 0")
    g.label("L_st6")
    e(f"""
    buffer_load_dwordx4 v[{A}:{A+3}], v{FR+22}, s[36:39], s50 offen sc1
    s_waitcnt vmcnt(0)
    v_xor_b32 v{A+2}, s98, v{A+2}
    v_xor_b32 v{A+3}, s99, v{A+3}
    v_or_b32 v{A+2}, v{A+2}, v{A+3}
    v_cmp_eq_u32 vcc, 0, v{A+2}
    s_nop 3
    s_cmp_eq_u64 vcc, -1
    s_cbranch_scc1 L_st7
    s_add_u32 s61, s61, 1
    s_cmp_lt_u32 s61, {spin_limit}
    s_cbranch_scc1 L_st6
    """)
    g.label("L_st7")
    stamp(6)
    e(f"v_mov_b32 v{A+4}, v{A}")
    xreduce(A + 4, A + 5, "v_max_f32")
    e(f"""
    v_sub_f32 v{A}, v{A}, v{A+4}
    v_exp_f32 v{A+5}, v{A}
    s_nop 0
    v_mul_f32 v{A}, v{A+5}, v{A+1}
    """)
    xreduce(A, A + 1, "v_add_f32")
    e(f"""
    v_rcp_f32 v{A}, v{A}
    v_cmp_eq_u32 vcc, s43, v3
    v_mul_f32 v{A+5}, v{A+5}, v{A}
    s_nop 3
    s_mov_b64 exec, vcc
    ds_write_b32 v{FR+23}, v{A+5}
    s_mov_b64 exec, -1
    s_waitcnt lgkmcnt(0)
    ds_write_b32 v6, v{FR+24} offset:{F_SCL}
    s_waitcnt lgkmcnt(0)
    """)
    g.label("L_tr")
    e("s_setprio 0\ns_waitcnt vmcnt(0)")
    g.label("L_tr2")
    e("s_mov_b32 s52, 0x05040100\ns_mov_b32 s53, 0x07060302")
    for j in range(4):
        src = WB + 32 * (j + 1); dst = WB + 32 * j
        for jc in range(8):
            for p in range(4):
                a = src + 4 * (2 * p) + (jc >> 1); b = src + 4 * (2 * p + 1) + (jc >> 1)
                e(f"v_perm_b32 v{dst+4*jc+p}, v{b}, v{a}, s{52 + (jc & 1)}")
    FR = WB + 128
    spin(F_N, 1, 6, FR + 26)
    e(f"""
    v_mov_b32 v{FR+28}, {NON}
    v_and_b32 v4, 3, v2
    v_lshlrev_b32 v4, 8, v4
    v_lshl_add_u32 v4, v3, 4, v4
    v_add_u32 v4, {OB}, v4
    ds_read_b64 v[{FR+26}:{FR+27}], v{FR+28}
    v_lshrrev_b32 v{FR+29}, 1, v2
    v_lshlrev_b32 v{FR+29}, 13, v{FR+29}
    v_and_b32 v0, 1, v2
    v_lshl_add_u32 v{FR+29}, v0, 6, v{FR+29}
    v_lshl_add_u32 v{FR+29}, v3, 4, v{FR+29}
    s_lshl_b32 s50, s42, 18
    s_lshl_b32 s51, s48, 16
    s_add_u32 s50, s50, s51
    s_add_u32 s50, s50, s63
    s_add_u32 s96, s50, {MSG2}
    v_and_b32 v0, 1, v3
    v_cmp_eq_u32 s[4:5], 1, v0
    v_cmp_le_u32 s[6:7], 2, v3
    s_mov_b32 s98, {(~TMASK) & 0xffffffff}
    v_lshrrev_b32 v0, 5, v1
    v_and_b32 v{FR+25}, 31, v1
    v_lshlrev_b32 v{FR+24}, 12, v0
    v_lshl_add_u32 v{FR+24}, v{FR+25}, 4, v{FR+24}
    s_lshl_b32 s50, s45, 15
    s_lshl_b32 s51, s43, 13
    s_add_u32 s50, s50, s51
    s_lshl_b32 s51, s48, 9
    s_add_u32 s50, s50, s51
    s_add_u32 s54, s50, {MSG1}
    v_lshlrev_b32 v{FR+25}, 1, v{FR+25}
    v_lshl_add_u32 v{FR+25}, v0, 9, v{FR+25}
    s_lshl_b32 s50, s48, 6
    s_add_u32 s50, s50, {OB}
    v_add_u32 v{FR+25}, s50, v{FR+25}
    s_waitcnt lgkmcnt(0)
    v_readfirstlane_b32 s50, v{FR+26}
    v_readfirstlane_b32 s51, v{FR+27}
    s_nop 3
    """)
    stags(50, 51)
    e("s_bitcmp0_b32 s44, 0\ns_cbranch_scc1 L_nodrain")
    for cnt, val in drain:
        e(f"s_waitcnt vmcnt({cnt})\nv_mov_b32 v5, {val}\nds_write_b32 v7, v5 offset:{PROG}")
    stamp(5)
    e("s_setprio 0")
    g.label("L_nodrain")
    e(f"v_mov_b32 v5, v{FR+29}")
    spin(PROG, 8, 6, FR + 26, sleep=2, two=True)
    e("s_mov_b32 s61, 0")
    stamp(7)
    R = FR
    g.label("L_m1l")
    e(f"""
    buffer_load_dwordx4 v[{R}:{R+3}], v{FR+24}, s[36:39], s54 offen sc1
    buffer_load_dwordx4 v[{R+4}:{R+7}], v{FR+24}, s[36:39], s54 offen offset:2048 sc1
    s_waitcnt vmcnt(0)
    """)
    for i in range(8):
        e(f"v_xor_b32 v{R+i}, s{56 + i % 4}, v{R+i}")
    e(f"""
    v_or3_b32 v6, v{R}, v{R+1}, v{R+2}
    v_or3_b32 v6, v6, v{R+3}, v{R+4}
    v_or3_b32 v6, v6, v{R+5}, v{R+6}
    v_or_b32 v6, v6, v{R+7}
    """)
    check(6, "L_m1g", "L_m1l", spin_limit)
    g.label("L_m1g")
    stamp(10)
    e(f"v_pk_add_f32 v[{R}:{R+1}], v[{R}:{R+1}], v[{R+4}:{R+5}]\nv_pk_add_f32 v[{R+2}:{R+3}], v[{R+2}:{R+3}], v[{R+6}:{R+7}]")
    xsum4(R, R + 4, sws=("v_permlane32_swap_b32",))
    e(f"""
    v_cvt_pk_bf16_f32 v{R+8}, v{R}, v{R+1}
    v_cvt_pk_bf16_f32 v{R+9}, v{R+2}, v{R+3}
    s_nop 0
    v_cndmask_b32 v{R+8}, v{R+8}, v{R+9}, s[6:7]
    ds_write_b16 v{FR+25}, v{R+8}
    ds_write_b16_d16_hi v{FR+25}, v{R+8} offset:256
    s_waitcnt lgkmcnt(0)
    s_barrier
    """)
    stamp(8)
    AF = FR; OA0 = FR + 16
    for j in range(4):
        e(f"ds_read_b128 v[{AF+4*j}:{AF+4*j+3}], v4 offset:{64*j}")
    OA1 = WB + 32
    def epi(OA, t0, h):
        L = []
        for r in range(4):
            L.append(f"v_cndmask_b32 v{t0+r}, v{OA+r}, v{OA+4+r}, s[4:5]")
            L.append(f"v_cndmask_b32 v{t0+4+r}, v{OA+8+r}, v{OA+12+r}, s[4:5]")
        for r in range(4):
            L.append(f"v_cndmask_b32 v{t0+r}, v{t0+r}, v{t0+4+r}, s[6:7]")
        for r in range(4):
            L.append(f"v_and_b32 v{t0+r}, s98, v{t0+r}"); L.append(f"v_or_b32 v{t0+r}, s{56+r}, v{t0+r}")
        L.append(f"buffer_store_dwordx4 v[{t0}:{t0+3}], v5, s[36:39], s96 offen offset:{128*h} sc1")
        return L
    for j in range(4):
        e(f"s_waitcnt lgkmcnt({3-j})")
        for q in range(4):
            c = "0" if j == 0 else f"v[{OA0+4*q}:{OA0+4*q+3}]"
            b = WB + 32 * j + 4 * q
            e(f"v_mfma_f32_16x16x32_bf16 v[{OA0+4*q}:{OA0+4*q+3}], v[{AF+4*j}:{AF+4*j+3}], v[{b}:{b+3}], {c}")
    ep0 = epi(OA0, WB, 0)
    n = 0
    for j in range(4):
        for q in range(4):
            c = "0" if j == 0 else f"v[{OA1+4*q}:{OA1+4*q+3}]"
            b = WB + 32 * j + 4 * (4 + q)
            e(f"v_mfma_f32_16x16x32_bf16 v[{OA1+4*q}:{OA1+4*q+3}], v[{AF+4*j}:{AF+4*j+3}], v[{b}:{b+3}], {c}")
            n += 1
            if n >= 8:
                for _ in range(3):
                    if ep0: e(ep0.pop(0))
    while ep0: e(ep0.pop(0))
    g.nop(8)
    for ln in epi(OA1, WB + 8, 1): e(ln)
    e(f"v_mov_b32 v6, {SYN}\nv_mov_b32 v7, 1\ns_mov_b64 exec, 1\nds_add_u32 v6, v7 offset:{C_M2}\ns_mov_b64 exec, -1")
    stamp(9)
    stamp_store()

    hdr = f"""; fused GQA decode block: q-proj -> split-KV attention -> out-proj, one launch, in-kernel hand-offs
; @launch grid=(256,1,1) block=({64*NW},1,1) lds={LDS_TOTAL}
.amdgcn_target "amdgcn-amd-amdhsa--gfx950"
.text
.globl {KNAME}
.p2align 8
.type {KNAME},@function
{KNAME}:
"""
    ftr = f"""L_done:
    s_endpgm
.section .rodata,"a"
.p2align 6
.amdhsa_kernel {KNAME}
  .amdhsa_next_free_vgpr 168
  .amdhsa_next_free_sgpr 102
  .amdhsa_accum_offset 168
  .amdhsa_group_segment_fixed_size 0
  .amdhsa_kernarg_size 64
  .amdhsa_user_sgpr_count 2
  .amdhsa_user_sgpr_kernarg_segment_ptr 1
  .amdhsa_system_sgpr_workgroup_id_x 1
  .amdhsa_float_denorm_mode_32 3
.end_amdhsa_kernel
"""
    return hdr + g.text() + ftr

if __name__ == "__main__":
    open("g34.s", "w").write(gen())
    open("g34_st.s", "w").write(gen(stamps=True))
    open("g34_slow.s", "w").write(gen(forceslow=True))
```

```python
import sys
from gen1 import G, KNAME

STATS = 0x80000
MSG1 = 0x100000
MSG2 = 0x300000
QWS = 0x600000
DBGA = 0x800000
FAST = 0x1000000
AUX1 = 131072
AUX2 = 147456
MX = AUX2
LS = AUX2 + 512
SCL = AUX2 + 1024
NON = AUX2 + 1536
SYN = AUX2 + 1600
PROG = 0
C_PART, F_PD, F_Q, C_M, C_L, F_N, F_SCL = [8 + 4 * i for i in range(7)]
C_KR = 40
C_M2 = 56
OB = AUX2 + 2048
QL = AUX2 + 4096
RED = AUX2 + 8192
LDS_TOTAL = 163840
TAGB = 11
TMASK = (1 << TAGB) - 1
NW = 12

def gen(stamps=False, spin_limit=20000, THW=8, WS=(32, 32, 20, 18, 16, 14, 12, 10), wo_start=1, wopol="", wqpol="", xpol="",
        kvpol="nt", ldprio=3, ld_early=0, forceslow=False, probe=False, qsm=15, ssm=15, m1sm=31, prest=False, overlay=True, pend=False, ackwait=True, m2sleep=0, nwait=0):
    g = G()
    e = g.e
    nst = [0]
    def stamp(idx=None):
        if not stamps: return
        i = nst[0] if idx is None else idx
        if idx is None: nst[0] += 1
        assert i < 14
        e(f"s_memrealtime s[100:101]\ns_waitcnt lgkmcnt(0)\ns_mov_b32 s{80+i}, s100")
    def stamp_store():
        if not stamps: return
        e(f"s_mul_i32 s50, s2, {NW}\ns_add_u32 s50, s50, s44\ns_lshl_b32 s50, s50, 6\ns_add_u32 s50, s50, {DBGA}\nv_mov_b32 v24, 0\ns_mov_b64 exec, 1")
        for i in range(0, 16, 4):
            for k in range(4): e(f"v_mov_b32 v{28+k}, s{80+i+k}")
            e(f"buffer_store_dwordx4 v[28:31], v24, s[36:39], s50 offen offset:{4*i}\ns_nop 1")
    def xreduce(r, tmp, op):
        for sw in ("v_permlane32_swap_b32", "v_permlane16_swap_b32"):
            e(f"v_mov_b32 v{tmp}, v{r}\ns_nop 1\n{sw} v{r}, v{tmp}\ns_nop 0\n{op} v{r}, v{r}, v{tmp}")
    def xsum4(a, t, sws=("v_permlane32_swap_b32", "v_permlane16_swap_b32")):
        for sw in sws:
            for i in range(4): e(f"v_mov_b32 v{t+i}, v{a+i}")
            e("s_nop 0")
            for i in range(4): e(f"{sw} v{a+i}, v{t+i}")
            e("s_nop 0")
            e(f"v_pk_add_f32 v[{a}:{a+1}], v[{a}:{a+1}], v[{t}:{t+1}]\nv_pk_add_f32 v[{a+2}:{a+3}], v[{a+2}:{a+3}], v[{t+2}:{t+3}]")
    def spin(word, val, vsyn, vtmp, sleep=1, two=False):
        l1, l2 = g.newlabel("Lsp"), g.newlabel("Lspd")
        e("s_mov_b32 s61, 0")
        g.label(l1)
        if two:
            e(f"ds_read_b64 v[{vtmp}:{vtmp+1}], v{vsyn} offset:{word}\ns_waitcnt lgkmcnt(0)\nv_min_u32 v{vtmp}, v{vtmp}, v{vtmp+1}\ns_nop 0")
        else:
            e(f"ds_read_b32 v{vtmp}, v{vsyn} offset:{word}\ns_waitcnt lgkmcnt(0)")
        e(f"""
        v_readfirstlane_b32 s60, v{vtmp}
        s_nop 3
        s_cmp_ge_u32 s60, {val}
        s_cbranch_scc1 {l2}
        {f's_sleep {sleep}' if sleep else ''}
        s_add_u32 s61, s61, 1
        s_cmp_lt_u32 s61, {spin_limit * 20}
        s_cbranch_scc1 {l1}
        """)
        g.label(l2)
    def arrive(word, vsyn, vone):
        e(f"s_waitcnt lgkmcnt(0)\ns_mov_b64 exec, 1\nds_add_u32 v{vsyn}, v{vone} offset:{word}\ns_mov_b64 exec, -1")
    def srd(d, p, size):
        e(f"s_mov_b32 s{d}, s{p}\ns_mov_b32 s{d+1}, s{p+1}\ns_mov_b32 s{d+2}, {size}\ns_mov_b32 s{d+3}, 0x00020000")
    def stags(lo, hi):
        e(f"""
        s_and_b32 s56, s{lo}, {TMASK}
        s_bfe_u32 s57, s{lo}, {TAGB | (TAGB << 16)}
        s_lshr_b64 s[58:59], s[{lo}:{hi}], {2*TAGB}
        s_and_b32 s58, s58, {TMASK}
        s_bfe_u32 s59, s{hi}, {(3*TAGB-32) | (TAGB << 16)}
        """)
    def check(vreg, lok, lloop, lim, slp=0):
        e(f"""
        v_and_b32 v{vreg}, {TMASK}, v{vreg}
        v_cmp_eq_u32 vcc, 0, v{vreg}
        s_nop 3
        s_cmp_eq_u64 vcc, -1
        s_cbranch_scc1 {lok}
        {f's_sleep {slp}' if slp else ''}
        s_add_u32 s61, s61, 1
        s_cmp_lt_u32 s61, {lim}
        s_cbranch_scc1 {lloop}
        """)
    WB = 8
    def wo_issue(i, tagp):
        j, ee = i // 8, i % 8
        r = WB + 32 * (j + 1) + 4 * ee
        off = (32 * j + ee) * 1024
        e(f"s_add_u32 s50, s97, {off & ~4095}")
        g.vm(f"buffer_load_dwordx4 v[{r}:{r+3}], v4, s[24:27], s50 offen offset:{off & 4095} {wopol}", f"{tagp}{i}")
    e(f"""
    s_cmp_ge_u32 s2, 256
    s_cbranch_scc1 L_done
    s_load_dwordx16 s[64:79], s[0:1], 0
    s_memrealtime s[98:99]
    v_and_b32 v1, 63, v0
    v_lshrrev_b32 v4, 6, v0
    v_and_b32 v2, 15, v0
    v_bfe_u32 v3, v0, 4, 2
    v_readfirstlane_b32 s44, v4
    s_and_b32 s40, s2, 7
    s_lshr_b32 s41, s2, 3
    s_lshr_b32 s42, s41, 2
    s_and_b32 s43, s41, 3
    s_lshl_b32 s45, s42, 3
    s_add_u32 s45, s45, s40
    s_lshl_b32 s51, s40, 2
    s_add_u32 s51, s51, s43
    s_lshl_b32 s63, s51, 8
    s_mov_b32 s3, {FAST}
    v_mov_b32 v6, {SYN}
    s_cmp_lt_u32 s44, 8
    s_cbranch_scc1 L_cw
    s_sub_u32 s48, s44, 8
    v_lshlrev_b32 v4, 13, v3
    v_lshl_add_u32 v4, v2, 4, v4
    s_lshl_b32 s97, s63, 9
    s_lshl_b32 s50, s48, 8
    s_add_u32 s97, s97, s50
    s_bitcmp0_b32 s44, 0
    s_cbranch_scc1 L_op
    """)
    e(f"""
    s_setprio {ldprio}
    s_lshr_b32 s49, s48, 1
    s_lshl_b32 s46, s45, 2
    s_add_u32 s46, s46, s43
    s_lshl_b32 s46, s46, 17
    s_lshl_b32 s47, s49, 16
    s_add_u32 s46, s46, s47
    s_lshl_b32 s50, s49, 2
    v_add_u32 v7, s50, v6
    s_add_u32 s94, s41, s40
    v_xor_b32 v8, v2, v3
    v_lshlrev_b32 v8, 4, v8
    v_lshl_add_u32 v8, v3, 8, v8
    v_lshlrev_b32 v12, 1, v3
    v_xor_b32 v12, v2, v12
    v_lshlrev_b32 v12, 4, v12
    v_lshl_add_u32 v12, v3, 8, v12
    v_xor_b32 v9, 64, v8
    v_xor_b32 v10, 0x80, v8
    v_xor_b32 v11, 0xc0, v8
    v_xor_b32 v13, 0x80, v12
    s_add_u32 s95, s42, s49
    """)
    for x in range(4):
        e(f"s_add_u32 s50, s94, {x}\ns_and_b32 s50, s50, 3\ns_lshl_b32 s50, s50, 12\ns_add_u32 s{52+x}, s50, s46")
        e(f"s_add_u32 s50, s95, {x}\ns_and_b32 s50, s50, 3\ns_lshl_b32 s{56+x}, s50, 10")
    e("s_waitcnt lgkmcnt(0)")
    srd(12, 66, 0x2000000); srd(16, 68, 0x2000000); srd(24, 72, 0x400000); srd(36, 78, 0x10000000)
    stamp(0)
    if not ld_early: e("s_barrier")
    kv = []; woi = [0]; sig = [0]; known = [0]
    for ph in range(2):
        for t in range(4):
            if ph == 0 and t == 3: spin(F_PD, 1, 6, 15)
            if ph == 1: spin(C_KR + 4 * t, 8, 6, 15)
            for k in range(4):
                for u in range(4):
                    n = len(kv)
                    if ld_early and n == ld_early: e("s_barrier")
                    Wc = WS[n // 16]
                    if n >= Wc and n - Wc + 1 > known[0]:
                        g.wait(kv[n - Wc]); known[0] = n - Wc + 1
                    e(f"s_add_u32 m0, s47, {16384*u + 4096*t + 1024*k}\ns_add_u32 s50, s{52 + (t+u)%4}, s{56 + (k+u)%4}\ns_add_u32 s50, s50, {16384*u}")
                    if ph == 0:
                        g.vm(f"buffer_load_dwordx4 v{8+k}, s[12:15], s50 offen {kvpol} lds", f"kv{n}")
                    else:
                        g.vm(f"buffer_load_dwordx4 v{12+(k&1)}, s[16:19], s50 offen {kvpol} lds", f"kv{n}")
                    kv.append(f"kv{n}")
                    while sig[0] < 8 and known[0] >= 16 * (sig[0] + 1):
                        sig[0] += 1
                        e(f"v_mov_b32 v14, {sig[0]}\nds_write_b32 v7, v14 offset:{PROG}")
                    gi = ph * 4 + t
                    if gi >= wo_start and woi[0] < 32 and (n % (3 if wo_start <= 1 else 2) == 0 or gi >= 6):
                        wo_issue(woi[0], "wl"); woi[0] += 1
    assert woi[0] == 32, woi[0]
    stamp(4)
    g.wait("wl31")
    e("s_branch L_tr2")
    drain = []
    while sig[0] < 8:
        drain.append((g.nvm - g.pos[kv[16 * (sig[0] + 1) - 1]], sig[0] + 1))
        sig[0] += 1

    g.label("L_cw")
    e(f"""
    s_lshl_b32 s47, s44, 14
    s_and_b32 s52, s43, 1
    s_lshr_b32 s53, s43, 1
    s_lshl_b32 s46, s52, 2
    s_add_u32 s46, s46, s44
    s_and_b32 s46, s46, 7
    s_lshl_b32 s50, s53, 3
    s_add_u32 s46, s46, s50
    v_lshrrev_b32 v14, 2, v1
    v_and_b32 v15, 3, v1
    v_lshlrev_b32 v15, 4, v15
    v_lshl_add_u32 v16, v14, 10, v15
    v_lshl_add_u32 v14, v14, 13, v15
    s_lshl_b32 s50, s46, 18
    s_lshl_b32 s51, s40, 10
    s_add_u32 s50, s50, s51
    s_lshl_b32 s51, s42, 7
    s_add_u32 s50, s50, s51
    s_lshl_b32 s51, s52, 6
    s_add_u32 s50, s50, s51
    s_lshl_b32 s51, s44, 11
    s_add_u32 s62, s51, {AUX1}
    s_lshl_b32 s51, s46, 6
    s_waitcnt lgkmcnt(0)
    """)
    srd(20, 70, 0x400000); srd(8, 64, 32768)
    stamp()
    e(f"""
    s_mov_b32 m0, s62
    s_add_u32 s54, s50, 0x20000
    buffer_load_dwordx4 v14, s[20:23], s50 offen {wqpol} lds
    s_add_u32 m0, s62, 1024
    s_add_u32 s55, s51, 16384
    buffer_load_dwordx4 v14, s[20:23], s54 offen {wqpol} lds
    s_add_u32 m0, s47, 12288
    s_nop 0
    buffer_load_dwordx4 v16, s[8:11], s51 offen {xpol} lds
    s_add_u32 m0, s47, 13312
    s_nop 0
    buffer_load_dwordx4 v16, s[8:11], s55 offen {xpol} lds
    s_barrier
    """)
    srd(28, 74, 32768); srd(36, 78, 0x10000000)
    e(f"""
    v_lshrrev_b32 v24, 2, v2
    v_lshl_add_u32 v24, v3, 3, v24
    v_lshlrev_b32 v24, 6, v24
    v_and_b32 v25, 3, v1
    v_lshl_add_u32 v24, v25, 3, v24
    v_add_u32 v24, s62, v24
    v_lshlrev_b32 v25, 6, v2
    v_lshl_add_u32 v25, v3, 4, v25
    v_add_u32 v25, s47, v25
    v_lshlrev_b32 v27, 4, v1
    v_add_u32 v27, s47, v27
    v_mov_b32 v20, {SYN}
    v_mov_b32 v21, 1
    s_lshr_b32 s50, s44, 2
    s_lshl_b32 s50, s50, 2
    v_add_u32 v19, s50, v20
    v_lshlrev_b32 v16, 13, v3
    v_lshl_add_u32 v16, v2, 4, v16
    s_lshl_b32 s50, s45, 15
    s_lshl_b32 s51, s43, 11
    s_add_u32 s50, s50, s51
    s_lshl_b32 s51, s44, 8
    s_add_u32 s50, s50, s51
    s_add_u32 s50, s50, {MSG1}
    v_add_u32 v16, s50, v16
    v_lshlrev_b32 v17, 8, v2
    v_lshl_add_u32 v17, v3, 4, v17
    v_add_u32 v17, {QL}, v17
    v_mov_b32 v18, {NON}
    v_xor_b32 v12, v2, v3
    v_lshlrev_b32 v12, 4, v12
    v_lshlrev_b32 v13, 8, v2
    v_add_u32 v13, s47, v13
    v_add_u32 v28, v13, v12
    v_xor_b32 v29, 64, v12
    v_add_u32 v29, v13, v29
    v_xor_b32 v30, 0x80, v12
    v_add_u32 v30, v13, v30
    v_xor_b32 v31, 0xc0, v12
    v_add_u32 v31, v13, v31
    v_mov_b32 v160, 0
    v_mov_b32 v161, 0
    v_mov_b32 v162, 0
    v_mov_b32 v163, 0
    s_waitcnt vmcnt(0)
    """)
    if prest: e("buffer_store_dwordx4 v[160:163], v16, s[36:39], s3 offen")
    stamp()
    XF = 96; WF = 104; QA = 112
    for ct in range(2):
        e(f"ds_read_b64_tr_b16 v[{WF+4*ct}:{WF+4*ct+1}], v24 offset:{32*ct}")
        e(f"ds_read_b64_tr_b16 v[{WF+4*ct+2}:{WF+4*ct+3}], v24 offset:{32*ct+256}")
    for rt in range(2):
        e(f"ds_read_b128 v[{XF+4*rt}:{XF+4*rt+3}], v25 offset:{12288 + 1024*rt}")
    e("s_waitcnt lgkmcnt(0)")
    for ct in range(2):
        for rt in range(2):
            q = QA + 4 * (2 * ct + rt)
            e(f"v_mfma_f32_16x16x32_bf16 v[{q}:{q+3}], v[{WF+4*ct}:{WF+4*ct+3}], v[{XF+4*rt}:{XF+4*rt+3}], 0")
    g.nop(8)
    for i in range(4):
        e(f"ds_write_b128 v27, v[{QA+4*i}:{QA+4*i+3}] offset:{12288 + 1024*i}")
    arrive(C_PART, 20, 21)
    stamp()
    KF = 32
    for t in range(4):
        spin(PROG, t + 1, 19, 22, sleep=2)
        for j in range(4):
            r = KF + 16 * t + 4 * j
            e(f"ds_read_b128 v[{r}:{r+3}], v{28+j} offset:{4096*t}")
        arrive(C_KR + 4 * t, 20, 21)
    stamp()
    spin(F_Q, 1, 20, 22, sleep=2)
    e("s_mov_b32 s94, s60")
    stamp()
    QF = 96; SA = 112; T = 128
    for j in range(4):
        e(f"ds_read_b128 v[{QF+4*j}:{QF+4*j+3}], v17 offset:{64*j}")
    e("ds_read_b64 v[22:23], v18")
    for j in range(4):
        e(f"s_waitcnt lgkmcnt({4-j})")
        for t in range(4):
            r = KF + 16 * t + 4 * j
            c = "0" if j == 0 else f"v[{SA+4*t}:{SA+4*t+3}]"
            e(f"v_mfma_f32_16x16x32_bf16 v[{SA+4*t}:{SA+4*t+3}], v[{r}:{r+3}], v[{QF+4*j}:{QF+4*j+3}], {c}")
    e(f"""
    s_waitcnt lgkmcnt(0)
    v_and_b32 v4, {TMASK}, v22
    v_bfe_u32 v5, v22, {TAGB}, {TAGB}
    v_alignbit_b32 v6, v23, v22, {2*TAGB}
    v_and_b32 v6, {TMASK}, v6
    v_bfe_u32 v7, v23, {3*TAGB-32}, {TAGB}
    s_mov_b32 s50, 0x3db504f3
    s_mov_b32 s51, 0xffff0000
    s_mov_b32 s99, 0x3fb8aa3b
    s_nop 1
    """)
    for p in range(8):
        a = SA + 2 * p
        e(f"""
        v_cvt_pk_bf16_f32 v{T}, v{a}, v{a+1}
        v_lshlrev_b32 v{a}, 16, v{T}
        v_and_b32 v{a+1}, s51, v{T}
        v_mul_f32 v{a}, s50, v{a}
        v_mul_f32 v{a+1}, s50, v{a+1}
        v_cvt_pk_bf16_f32 v{T}, v{a}, v{a+1}
        v_lshlrev_b32 v{a}, 16, v{T}
        v_and_b32 v{a+1}, s51, v{T}
        """)
    e(f"v_max3_f32 v{T}, v{SA}, v{SA+1}, v{SA+2}")
    for i in range(3, 15, 2):
        e(f"v_max3_f32 v{T}, v{T}, v{SA+i}, v{SA+i+1}")
    e(f"v_max_f32 v{T}, v{T}, v{SA+15}")
    xreduce(T, T + 1, "v_max_f32")
    e(f"""
    v_lshlrev_b32 v12, 5, v2
    v_add_u32 v12, {MX}, v12
    s_lshl_b32 s50, s44, 2
    v_add_u32 v13, s50, v12
    ds_write_b32 v13, v{T}
    """)
    arrive(C_M, 20, 21)
    spin(C_M, 8, 20, 22)
    e(f"ds_read_b128 v[{T+4}:{T+7}], v12\nds_read_b128 v[{T+8}:{T+11}], v12 offset:16\ns_waitcnt lgkmcnt(0)")
    e(f"""
    v_max3_f32 v{T}, v{T+4}, v{T+5}, v{T+6}
    v_max3_f32 v{T}, v{T}, v{T+7}, v{T+8}
    v_max3_f32 v{T}, v{T}, v{T+9}, v{T+10}
    v_max_f32 v{T}, v{T}, v{T+11}
    v_mul_f32 v23, s99, v{T}
    """)
    for i in range(16):
        e(f"v_fma_f32 v{SA+i}, v{SA+i}, s99, -v23")
    for i in range(16):
        e(f"v_exp_f32 v{SA+i}, v{SA+i}")
    e("s_nop 0")
    e(f"v_lshlrev_b32 v14, 3, v1\nv_add_u32 v14, s62, v14")
    for t in range(4):
        a = SA + 4 * t
        e(f"v_cvt_pk_bf16_f32 v{T+2*t}, v{a}, v{a+1}\nv_cvt_pk_bf16_f32 v{T+2*t+1}, v{a+2}, v{a+3}")
        e(f"ds_write_b64 v14, v[{T+2*t}:{T+2*t+1}] offset:{512*t}")
    for st in (8, 4, 2):
        for i in range(0, st, 2):
            a = SA + i; b = SA + i + st
            e(f"v_pk_add_f32 v[{a}:{a+1}], v[{a}:{a+1}], v[{b}:{b+1}]")
    e(f"v_add_f32 v{SA}, v{SA}, v{SA+1}")
    xreduce(SA, SA + 1, "v_add_f32")
    e(f"ds_write_b32 v13, v{SA} offset:512")
    arrive(C_L, 20, 21)
    PF = 32; BF = 112; PVA = 160; SC = 164
    e(f"""
    v_lshrrev_b32 v24, 2, v2
    v_lshl_add_u32 v24, v3, 2, v24
    v_and_b32 v25, 7, v24
    v_lshlrev_b32 v25, 1, v25
    v_bfe_u32 v27, v1, 1, 1
    s_lshl_b32 s50, s44, 1
    v_add_u32 v27, s50, v27
    v_xor_b32 v25, v25, v27
    v_lshlrev_b32 v25, 4, v25
    v_lshl_add_u32 v25, v24, 8, v25
    v_and_b32 v27, 1, v1
    v_lshl_add_u32 v25, v27, 3, v25
    v_add_u32 v26, 0x10000, v25
    v_lshlrev_b32 v27, 3, v1
    v_add_u32 v27, {AUX1}, v27
    v_and_b32 v30, 1, v3
    v_lshlrev_b32 v30, 4, v30
    v_cmp_le_u32 s[6:7], 2, v3
    v_lshlrev_b32 v19, 4, v3
    v_add_u32 v19, {SCL}, v19
    s_mov_b32 s98, {(~TMASK) & 0xffffffff}
    """)
    spin(C_L, 8, 20, 22)
    stamp()
    lnp = g.newlabel("Lnp")
    A = 128
    e(f"""
    s_cmp_lg_u32 s44, 1
    s_cbranch_scc1 {lnp}
    ds_read_b128 v[{A+8}:{A+11}], v12 offset:512
    ds_read_b128 v[{A+12}:{A+15}], v12 offset:528
    ds_read_b64 v[{A+18}:{A+19}], v18
    v_lshlrev_b32 v{A+21}, 4, v2
    s_lshl_b32 s50, s45, 10
    s_add_u32 s50, s50, {STATS}
    s_lshl_b32 s51, s43, 8
    s_add_u32 s51, s51, s50
    v_mov_b32 v{A+16}, v23
    s_waitcnt lgkmcnt(0)
    v_pk_add_f32 v[{A+8}:{A+9}], v[{A+8}:{A+9}], v[{A+10}:{A+11}]
    v_pk_add_f32 v[{A+12}:{A+13}], v[{A+12}:{A+13}], v[{A+14}:{A+15}]
    v_pk_add_f32 v[{A+8}:{A+9}], v[{A+8}:{A+9}], v[{A+12}:{A+13}]
    v_add_f32 v{A+17}, v{A+8}, v{A+9}
    s_mov_b64 exec, 0xffff
    s_add_u32 s55, s51, s3
    buffer_store_dwordx4 v[{A+16}:{A+19}], v{A+21}, s[36:39], s55 offen
    s_cmp_eq_u32 s94, 2
    s_cbranch_scc1 L_std
    buffer_store_dwordx4 v[{A+16}:{A+19}], v{A+21}, s[36:39], s51 offen sc1
    """)
    g.label("L_std")
    e("s_mov_b64 exec, -1")
    g.label(lnp)
    for k in range(4):
        for i in range(4):
            r = PF + 16 * k + 4 * i
            e(f"ds_read2st64_b64 v[{r}:{r+3}], v27 offset0:{8*i+k} offset1:{8*i+4+k}")
        if k == 1: e("s_waitcnt lgkmcnt(0)")
    first = [True]
    def pv_phase(k):
        for i in range(4):
            for hf in range(2):
                u = 2 * i + hf
                r = BF + 4 * i + 2 * hf
                e(f"ds_read_b64_tr_b16 v[{r}:{r+1}], v{25 if u < 4 else 26} offset:{(u % 4) * 16384 + 4096 * k}")
        for i in range(4):
            e(f"s_waitcnt lgkmcnt({6 - 2*i})")
            c = "0" if first[0] else f"v[{PVA}:{PVA+3}]"
            first[0] = False
            e(f"v_mfma_f32_16x16x32_bf16 v[{PVA}:{PVA+3}], v[{PF+16*k+4*i}:{PF+16*k+4*i+3}], v[{BF+4*i}:{BF+4*i+3}], {c}")
    for k in range(3):
        spin(PROG, 5 + k, 20, 22, sleep=2, two=True)
        pv_phase(k)
    stamp()
    spin(F_SCL, 1, 20, 22, sleep=1)
    e(f"ds_read_b128 v[{SC}:{SC+3}], v19")
    stamp()
    spin(PROG, 8, 20, 22, sleep=0, two=True)
    stamp()
    pv_phase(3)
    g.nop(8)
    for i in range(4):
        e(f"v_mul_f32 v{PVA+i}, v{PVA+i}, v{SC+i}")
    for i in range(4):
        e(f"v_and_or_b32 v{PVA+i}, v{PVA+i}, s98, v{4+i}")
    lsd = g.newlabel("Lsd")
    e(f"""
    buffer_store_dwordx4 v[{PVA}:{PVA+3}], v16, s[36:39], s3 offen
    s_cmp_eq_u32 s94, 2
    s_cbranch_scc1 {lsd}
    buffer_store_dwordx4 v[{PVA}:{PVA+3}], v16, s[36:39], 0 offen sc1
    """)
    g.label(lsd)
    stamp()
    nst[0] = 12
    lend = g.newlabel("Lend")
    e(f"s_cmp_lg_u32 s44, 0\ns_cbranch_scc1 {lend}")
    e(f"""
    v_lshlrev_b32 v24, 4, v1
    s_lshl_b32 s50, s42, 18
    s_lshl_b32 s51, s63, 5
    s_add_u32 s50, s50, s51
    s_add_u32 s50, s50, {MSG2}
    s_add_u32 s51, s50, 4096
    v_lshlrev_b32 v25, 10, v3
    v_and_b32 v26, 3, v2
    v_lshl_add_u32 v25, v26, 1, v25
    v_bfe_u32 v26, v2, 2, 1
    v_lshl_add_u32 v25, v26, 4, v25
    v_lshrrev_b32 v26, 3, v2
    v_lshl_add_u32 v25, v26, 3, v25
    s_lshl_b32 s96, s42, 12
    s_lshr_b32 s97, s63, 3
    s_add_u32 s96, s96, s97
    s_barrier
    """)
    spin(C_M2, 4, 20, 22, sleep=1)
    e("s_mov_b32 s61, 0")
    if pend:
        ll, lg = g.newlabel("Lm2l"), g.newlabel("Lm2g")
        FB = 32; RB = 64
        e("s_mov_b32 s52, 0xff")
        g.label(ll)
        for i in range(8):
            lk = g.newlabel("Lp")
            e(f"s_bitcmp0_b32 s52, {i}\ns_cbranch_scc1 {lk}\nbuffer_load_dwordx4 v[{RB+4*i}:{RB+4*i+3}], v24, s[36:39], s{50 + i // 4} offen offset:{(i % 4) * 1024} sc1")
            g.label(lk)
        e("s_waitcnt vmcnt(0)")
        for i in range(8):
            lk = g.newlabel("Lp")
            e(f"""
            s_bitcmp0_b32 s52, {i}
            s_cbranch_scc1 {lk}
            v_xor_b32 v{FB+4*i}, v{RB+4*i}, v4
            v_xor_b32 v{FB+4*i+1}, v{RB+4*i+1}, v5
            v_xor_b32 v{FB+4*i+2}, v{RB+4*i+2}, v6
            v_xor_b32 v{FB+4*i+3}, v{RB+4*i+3}, v7
            v_or3_b32 v28, v{FB+4*i}, v{FB+4*i+1}, v{FB+4*i+2}
            v_or_b32 v28, v28, v{FB+4*i+3}
            v_and_b32 v28, {TMASK}, v28
            v_cmp_eq_u32 vcc, 0, v28
            s_nop 3
            s_cmp_eq_u64 vcc, -1
            s_cbranch_scc0 {lk}
            s_bitset0_b32 s52, {i}
            """)
            g.label(lk)
        e(f"""
        s_cmp_eq_u32 s52, 0
        s_cbranch_scc1 {lg}
        s_add_u32 s61, s61, 1
        s_cmp_lt_u32 s61, {spin_limit}
        s_cbranch_scc1 {ll}
        """)
    else:
        ll, lg = g.newlabel("Lm2l"), g.newlabel("Lm2g")
        g.label(ll)
        FB = 32
        for i in range(8):
            e(f"buffer_load_dwordx4 v[{FB+4*i}:{FB+4*i+3}], v24, s[36:39], s{50 + i // 4} offen offset:{(i % 4) * 1024} sc1")
        e("s_waitcnt vmcnt(0)")
        for i in range(32):
            e(f"v_xor_b32 v{FB+i}, v{FB+i}, v{4 + i % 4}")
        e(f"v_or3_b32 v28, v{FB}, v{FB+1}, v{FB+2}")
        for i in range(3, 31, 2):
            e(f"v_or3_b32 v28, v28, v{FB+i}, v{FB+i+1}")
        e(f"v_or_b32 v28, v28, v{FB+31}")
        check(28, lg, ll, spin_limit, m2sleep)
    g.label(lg)
    stamp()
    for st in (4, 2, 1):
        for w in range(st):
            a = FB + 4 * w; b = FB + 4 * (w + st)
            e(f"v_pk_add_f32 v[{a}:{a+1}], v[{a}:{a+1}], v[{b}:{b+1}]\nv_pk_add_f32 v[{a+2}:{a+3}], v[{a+2}:{a+3}], v[{b+2}:{b+3}]")
    xsum4(FB, FB + 4)
    e(f"""
    v_cvt_pk_bf16_f32 v28, v{FB}, v{FB+1}
    v_cvt_pk_bf16_f32 v29, v{FB+2}, v{FB+3}
    s_nop 0
    v_cndmask_b32 v28, v28, v29, s[6:7]
    v_lshrrev_b32 v28, v30, v28
    buffer_store_short v28, v25, s[28:31], s96 offen
    """)
    g.label(lend)
    stamp()
    stamp_store()
    e("s_endpgm")

    g.label("L_op")
    e(f"""
    s_setprio 3
    v_mov_b32 v5, 0
    v_mov_b32 v21, 1
    v_mov_b32 v17, {NON}
    v_lshlrev_b32 v24, 4, v1
    v_mov_b32 v27, 0
    s_mov_b32 s46, {QWS}
    s_mov_b32 s47, {QWS}
    s_waitcnt lgkmcnt(0)
    """)
    srd(36, 78, 0x10000000); srd(24, 72, 0x400000)
    stamp(0)
    e("s_cmp_lg_u32 s44, 8\ns_cbranch_scc1 L_w10")
    e(f"""
    v_lshlrev_b32 v7, 2, v2
    v_add_u32 v7, {SYN}, v7
    ds_write_b32 v7, v5
    s_lshl_b32 s50, s45, 15
    s_lshl_b32 s51, s43, 12
    s_add_u32 s50, s50, s51
    s_add_u32 s50, s50, {MSG1 + FAST}
    s_add_u32 s51, s50, 16384
    """)
    if not overlay:
        e(f"s_lshl_b32 s52, s45, 14\ns_lshl_b32 s53, s43, 12\ns_add_u32 s52, s52, s53\ns_add_u32 s52, s52, {QWS + FAST}")
        for i in range(4): e(f"buffer_load_dwordx4 v[32:35], v24, s[36:39], s52 offen offset:{i * 1024} sc1")
    for i in range(4): e(f"buffer_load_dwordx4 v[32:35], v24, s[36:39], s50 offen offset:{i * 1024} sc1")
    e("s_waitcnt lgkmcnt(0)\ns_barrier")
    for i in range(4): e(f"buffer_load_dwordx4 v[32:35], v24, s[36:39], s51 offen offset:{i * 1024} sc1")
    e(f"""
    v_add_u32 v26, 12288, v24
    v_add_u32 v25, 0x10000, v26
    v_lshrrev_b32 v27, 2, v2
    v_lshlrev_b32 v27, 17, v27
    v_and_b32 v28, 3, v2
    v_lshl_add_u32 v27, v28, 9, v27
    v_lshl_add_u32 v27, v3, 4, v27
    s_lshl_b32 s52, s40, 14
    s_lshr_b32 s53, s43, 1
    s_lshl_b32 s53, s53, 13
    s_add_u32 s52, s52, s53
    s_lshr_b32 s53, s42, 1
    s_lshl_b32 s53, s53, 11
    s_add_u32 s52, s52, s53
    s_and_b32 s53, s42, 1
    s_lshl_b32 s53, s53, 8
    s_add_u32 s52, s52, s53
    s_and_b32 s53, s43, 1
    s_lshl_b32 s53, s53, 7
    s_add_u32 s52, s52, s53
    s_lshl_b32 s53, s40, 14
    s_add_u32 s54, s52, s53
    s_add_u32 s54, s54, {MSG1 + FAST if overlay else 0}
    s_add_u32 s55, s54, 0x100000
    v_lshrrev_b32 v29, 2, v2
    v_lshl_add_u32 v29, v29, 17, v27
    s_add_u32 s52, s52, {QWS}
    s_add_u32 s53, s52, 0x80000
    OVL
    s_mov_b32 s96, {(~TMASK) & 0xffffffff}
    v_mov_b32 v32, 0
    v_mov_b32 v33, 0
    v_mov_b32 v34, 0
    v_mov_b32 v35, 0
    s_lshl_b32 s50, s45, 10
    s_lshl_b32 s51, s43, 8
    s_add_u32 s50, s50, s51
    s_add_u32 s50, s50, {STATS + FAST}
    v_lshlrev_b32 v28, 4, v2
    """.replace("OVL", "s_nop 0" if overlay else "s_add_u32 s54, s52, s3\ns_add_u32 s55, s53, s3\nv_mov_b32 v29, v27"))
    e(f"""
    s_lshl_b32 s50, s45, 10
    s_add_u32 s50, s50, {STATS + FAST}
    buffer_load_dwordx4 v[32:35], v24, s[36:39], s50 offen sc1
    """)
    if prest:
        for ct in range(2):
            for rt in range(2):
                e(f"buffer_store_dwordx4 v[32:35], v27, s[36:39], s{54 + rt} offen offset:{64*ct}")
        e("buffer_store_dwordx4 v[32:35], v28, s[36:39], s50 offen")
    spin(C_PART, 8, 6, 7)
    e("s_waitcnt vmcnt(0)")
    stamp(2)
    RT = 32
    for i in range(4):
        for w in range(8):
            r = RT + 32 * i + 4 * w
            e(f"ds_read_b128 v[{r}:{r+3}], v{26 if w < 4 else 25} offset:{(w % 4)*16384+i*1024}")
        e("s_waitcnt lgkmcnt(0)")
    e(f"ds_write_b32 v6, v21 offset:{F_PD}")
    for i in range(4):
        for st in (4, 2, 1):
            for w in range(st):
                a = RT + 32 * i + 4 * w; b = a + 4 * st
                e(f"v_pk_add_f32 v[{a}:{a+1}], v[{a}:{a+1}], v[{b}:{b+1}]\nv_pk_add_f32 v[{a+2}:{a+3}], v[{a+2}:{a+3}], v[{b+2}:{b+3}]")
        for r in range(4):
            a = RT + 32 * i + r
            e(f"v_add_u32 v{a}, {1 << (TAGB-1)}, v{a}\nv_and_b32 v{a}, s96, v{a}")
    spin(F_N, 1, 6, 7)
    e(f"""
    ds_read_b64 v[10:11], v17
    s_waitcnt lgkmcnt(0)
    v_readfirstlane_b32 s98, v10
    v_readfirstlane_b32 s99, v11
    s_nop 3
    """)
    stags(98, 99)
    stamp(1)
    e("s_getreg_b32 s51, hwreg(HW_REG_XCC_ID)\ns_and_b32 s51, s51, 15\ns_add_u32 s51, s51, 1\ns_xor_b32 s51, s51, s57")
    for i in range(4):
        for r in range(4):
            a = RT + 32 * i + r
            e(f"v_or_b32 v{8+4*i+r}, s{56+r}, v{a}")
            e(f"v_or_b32 v{a}, s{51 if r == 1 else 56+r}, v{a}")
    for ct in range(2):
        for rt in range(2):
            a = RT + 32 * (2 * ct + rt)
            e(f"buffer_store_dwordx4 v[{a}:{a+3}], v29, s[36:39], s{54 + rt} offen offset:{64*ct}")
    e("s_mov_b32 s46, s52\ns_mov_b32 s47, s53\ns_nop 1")
    stamp(3)
    e("s_branch L_wo")
    g.label("L_w10")
    srd(32, 76, 256)
    e(f"""
    s_lshl_b64 s[98:99], s[98:99], 1
    s_or_b32 s98, s98, 1
    s_or_b32 s99, s99, 0x80000000
    s_cmp_lg_u32 s2, 0
    s_cbranch_scc1 L_n0
    v_mov_b32 v22, s98
    v_mov_b32 v23, s99
    s_mov_b64 exec, 1
    buffer_store_dwordx2 v[22:23], v5, s[32:35], 0 offen sc0 sc1
    s_mov_b64 exec, -1
    s_barrier
    s_branch L_n1
    """)
    g.label("L_n0")
    if nwait:
        e("s_barrier")
        spin(C_PART, nwait, 6, 7)
        e("buffer_load_dwordx2 v[22:23], v5, s[32:35], 0 offen sc1\ns_mov_b32 s61, 0")
    else:
        e("buffer_load_dwordx2 v[22:23], v5, s[32:35], 0 offen sc1\ns_barrier\ns_mov_b32 s61, 0")
    g.label("L_auxn")
    e(f"""
    s_waitcnt vmcnt(0)
    v_readfirstlane_b32 s98, v22
    v_readfirstlane_b32 s99, v23
    s_nop 3
    s_cmp_lt_i32 s99, 0
    s_cbranch_scc1 L_n1
    buffer_load_dwordx2 v[22:23], v5, s[32:35], 0 offen sc1
    s_add_u32 s61, s61, 1
    s_cmp_lt_u32 s61, {spin_limit}
    s_cbranch_scc1 L_auxn
    """)
    g.label("L_n1")
    stamp(1)
    e(f"""
    v_mov_b32 v22, s98
    v_mov_b32 v23, s99
    ds_write_b64 v17, v[22:23]
    s_waitcnt lgkmcnt(0)
    ds_write_b32 v6, v21 offset:{F_N}
    s_lshl_b32 s50, s45, 14
    s_add_u32 s50, s50, {QWS}
    s_lshl_b32 s51, s45, {15 if overlay else 14}
    s_add_u32 s51, s51, {MSG1 + FAST if overlay else QWS + FAST}
    v_lshlrev_b32 v16, 3, v1
    v_add_u32 v16, {QL}, v16
    v_lshrrev_b32 v18, 5, v1
    v_lshlrev_b32 v18, 13, v18
    v_bfe_u32 v19, v1, 3, 2
    v_lshl_add_u32 v18, v19, 11, v18
    v_and_b32 v19, 7, v1
    v_lshl_add_u32 v18, v19, 6, v18
    """)
    stags(98, 99)
    e("s_getreg_b32 s53, hwreg(HW_REG_XCC_ID)\ns_and_b32 s53, s53, 15\ns_add_u32 s53, s53, 1\ns_xor_b32 s53, s53, s57\ns_mov_b32 s52, s57")
    spin(F_PD, 1, 6, 7)
    e("s_mov_b32 s61, 0")
    stamp(3)
    g.label("L_aux4")
    e(f"s_and_b32 s54, s61, {qsm}\ns_cmp_eq_u32 s54, {qsm}\ns_cselect_b32 s54, s50, s51\ns_cselect_b32 s57, s52, s53\ns_cselect_b32 s49, 1, {1 if forceslow else 2}")
    if probe:
        e(f"""
        buffer_load_dwordx4 v[{RT}:{RT+3}], v18, s[36:39], s54 offen sc1
        s_waitcnt vmcnt(0)
        v_xor_b32 v{RT}, s56, v{RT}
        v_xor_b32 v{RT+1}, s57, v{RT+1}
        v_xor_b32 v{RT+2}, s58, v{RT+2}
        v_xor_b32 v{RT+3}, s59, v{RT+3}
        v_or3_b32 v7, v{RT}, v{RT+1}, v{RT+2}
        v_or_b32 v7, v7, v{RT+3}
        """)
        check(7, "L_aux4b", "L_aux4", spin_limit)
        g.label("L_aux4b")
    for i in range(16):
        if i % 4 == 0: e(f"s_add_u32 s55, s54, {1024*i}")
        e(f"buffer_load_dwordx4 v[{RT+4*i}:{RT+4*i+3}], v24, s[36:39], s55 offen offset:{(i % 4) * 1024} sc1")
    e("s_waitcnt vmcnt(0)")
    for i in range(64):
        e(f"v_xor_b32 v{RT+i}, s{56 + i % 4}, v{RT+i}")
    e(f"v_or3_b32 v7, v{RT}, v{RT+1}, v{RT+2}")
    for i in range(3, 63, 2):
        e(f"v_or3_b32 v7, v7, v{RT+i}, v{RT+i+1}")
    e(f"v_or_b32 v7, v7, v{RT+63}")
    check(7, "L_aux5", "L_aux4", spin_limit)
    g.label("L_aux5")
    for i in range(8):
        a = RT + 4 * i; b = a + 32
        e(f"""
        v_pk_add_f32 v[{a}:{a+1}], v[{a}:{a+1}], v[{b}:{b+1}]
        v_pk_add_f32 v[{a+2}:{a+3}], v[{a+2}:{a+3}], v[{b+2}:{b+3}]
        v_cvt_pk_bf16_f32 v{a}, v{a}, v{a+1}
        v_cvt_pk_bf16_f32 v{a+1}, v{a+2}, v{a+3}
        ds_write_b64 v16, v[{a}:{a+1}] offset:{512*i}
        """)
    e(f"v_mov_b32 v21, s49\ns_waitcnt lgkmcnt(0)\nds_write_b32 v6, v21 offset:{F_Q}\ns_waitcnt lgkmcnt(0)")
    stamp(4)
    g.label("L_wo")
    e("s_setprio 1")
    for i in range(32):
        if i >= THW: g.wait(f"wa{i-THW}")
        wo_issue(i, "wa")
    stamp(5)
    FR = WB; A = FR
    e(f"""
    s_cmp_lg_u32 s44, 8
    s_cbranch_scc1 L_tr
    s_setprio 3
    s_mov_b32 s61, 0
    """)
    g.label("L_dq")
    e(f"""
    ds_read_b64 v[28:29], v6 offset:{PROG}
    ds_read_b32 v30, v6 offset:{F_Q}
    s_waitcnt lgkmcnt(0)
    v_min_u32 v28, v28, v29
    v_readfirstlane_b32 s60, v30
    v_readfirstlane_b32 s50, v28
    s_nop 3
    s_cmp_eq_u32 s60, 2
    s_cbranch_scc1 L_dq2
    s_cmp_eq_u32 s60, 1
    s_cbranch_scc1 L_dq1
    s_cmp_ge_u32 s50, 8
    s_cbranch_scc1 L_dq1
    s_sleep 2
    s_add_u32 s61, s61, 1
    s_cmp_lt_u32 s61, {spin_limit * 20}
    s_cbranch_scc1 L_dq
    """)
    g.label("L_dq1")
    for ct in range(2):
        for rt in range(2):
            a2 = 8 + 4 * (2 * ct + rt)
            e(f"buffer_store_dwordx4 v[{a2}:{a2+3}], v27, s[36:39], s{46 + rt} offen offset:{64*ct} sc1")
    e("s_waitcnt vmcnt(0)")
    g.label("L_dq2")
    e(f"""
    v_lshlrev_b32 v{FR+21}, 4, v2
    s_lshl_b32 s50, s45, 10
    s_add_u32 s50, s50, {STATS}
    v_lshl_add_u32 v{FR+22}, v3, 8, v{FR+21}
    v_lshlrev_b32 v{FR+23}, 2, v2
    v_add_u32 v{FR+23}, {SCL}, v{FR+23}
    v_mov_b32 v{FR+24}, 1
    """)
    spin(C_L, 8, 6, 7)
    e("s_mov_b32 s61, 0")
    g.label("L_st6")
    e(f"""
    s_and_b32 s55, s61, {ssm}
    s_cmp_eq_u32 s55, {ssm}
    s_cselect_b32 s55, 0, s3
    s_add_u32 s55, s55, s50
    buffer_load_dwordx4 v[{A}:{A+3}], v{FR+22}, s[36:39], s55 offen sc1
    s_waitcnt vmcnt(0)
    v_xor_b32 v{A+2}, s98, v{A+2}
    v_xor_b32 v{A+3}, s99, v{A+3}
    v_or_b32 v{A+2}, v{A+2}, v{A+3}
    v_cmp_eq_u32 vcc, 0, v{A+2}
    s_nop 3
    s_cmp_eq_u64 vcc, -1
    s_cbranch_scc1 L_st7
    s_add_u32 s61, s61, 1
    s_cmp_lt_u32 s61, {spin_limit}
    s_cbranch_scc1 L_st6
    """)
    g.label("L_st7")
    stamp(6)
    e(f"v_mov_b32 v{A+4}, v{A}")
    xreduce(A + 4, A + 5, "v_max_f32")
    e(f"""
    v_sub_f32 v{A}, v{A}, v{A+4}
    v_exp_f32 v{A+5}, v{A}
    s_nop 0
    v_mul_f32 v{A}, v{A+5}, v{A+1}
    """)
    xreduce(A, A + 1, "v_add_f32")
    e(f"""
    v_rcp_f32 v{A}, v{A}
    v_cmp_eq_u32 vcc, s43, v3
    v_mul_f32 v{A+5}, v{A+5}, v{A}
    s_nop 3
    s_mov_b64 exec, vcc
    ds_write_b32 v{FR+23}, v{A+5}
    s_mov_b64 exec, -1
    s_waitcnt lgkmcnt(0)
    ds_write_b32 v6, v{FR+24} offset:{F_SCL}
    s_waitcnt lgkmcnt(0)
    """)
    g.label("L_tr")
    e("s_setprio 0\ns_waitcnt vmcnt(0)")
    g.label("L_tr2")
    e("s_mov_b32 s52, 0x05040100\ns_mov_b32 s53, 0x07060302")
    for j in range(4):
        src = WB + 32 * (j + 1); dst = WB + 32 * j
        for jc in range(8):
            for p in range(4):
                a = src + 4 * (2 * p) + (jc >> 1); b = src + 4 * (2 * p + 1) + (jc >> 1)
                e(f"v_perm_b32 v{dst+4*jc+p}, v{b}, v{a}, s{52 + (jc & 1)}")
    FR = WB + 128
    spin(F_N, 1, 6, FR + 26)
    e(f"""
    v_mov_b32 v{FR+28}, {NON}
    v_and_b32 v4, 3, v2
    v_lshlrev_b32 v4, 8, v4
    v_lshl_add_u32 v4, v3, 4, v4
    v_add_u32 v4, {OB}, v4
    ds_read_b64 v[{FR+26}:{FR+27}], v{FR+28}
    v_lshrrev_b32 v{FR+29}, 1, v2
    v_lshlrev_b32 v{FR+29}, 13, v{FR+29}
    v_and_b32 v0, 1, v2
    v_lshl_add_u32 v{FR+29}, v0, 6, v{FR+29}
    v_lshl_add_u32 v{FR+29}, v3, 4, v{FR+29}
    s_lshl_b32 s50, s42, 18
    s_lshl_b32 s51, s48, 16
    s_add_u32 s50, s50, s51
    s_add_u32 s50, s50, s63
    s_add_u32 s96, s50, {MSG2}
    v_and_b32 v0, 1, v3
    v_cmp_eq_u32 s[4:5], 1, v0
    v_cmp_le_u32 s[6:7], 2, v3
    s_mov_b32 s98, {(~TMASK) & 0xffffffff}
    v_lshrrev_b32 v0, 5, v1
    v_and_b32 v{FR+25}, 31, v1
    v_lshlrev_b32 v{FR+24}, 12, v0
    v_lshl_add_u32 v{FR+24}, v{FR+25}, 4, v{FR+24}
    s_lshl_b32 s50, s45, 15
    s_lshl_b32 s51, s43, 13
    s_add_u32 s50, s50, s51
    s_lshl_b32 s51, s48, 9
    s_add_u32 s50, s50, s51
    s_add_u32 s54, s50, {MSG1}
    v_lshlrev_b32 v{FR+25}, 1, v{FR+25}
    v_lshl_add_u32 v{FR+25}, v0, 9, v{FR+25}
    s_lshl_b32 s50, s48, 6
    s_add_u32 s50, s50, {OB}
    v_add_u32 v{FR+25}, s50, v{FR+25}
    s_waitcnt lgkmcnt(0)
    v_readfirstlane_b32 s50, v{FR+26}
    v_readfirstlane_b32 s51, v{FR+27}
    s_nop 3
    """)
    stags(50, 51)
    e("s_bitcmp0_b32 s44, 0\ns_cbranch_scc1 L_nodrain")
    for cnt, val in drain:
        e(f"s_waitcnt vmcnt({cnt})\nv_mov_b32 v5, {val}\nds_write_b32 v7, v5 offset:{PROG}")
    stamp(5)
    e("s_setprio 0")
    g.label("L_nodrain")
    e(f"v_mov_b32 v5, v{FR+29}")
    spin(PROG, 8, 6, FR + 26, sleep=2, two=True)
    e("s_mov_b32 s61, 0")
    stamp(7)
    R = FR
    g.label("L_m1l")
    e(f"""
    s_and_b32 s55, s61, {m1sm}
    s_cmp_eq_u32 s55, {m1sm}
    s_cselect_b32 s55, 0, s3
    s_add_u32 s55, s55, s54
    buffer_load_dwordx4 v[{R}:{R+3}], v{FR+24}, s[36:39], s55 offen sc1
    buffer_load_dwordx4 v[{R+4}:{R+7}], v{FR+24}, s[36:39], s55 offen offset:2048 sc1
    s_waitcnt vmcnt(0)
    """)
    for i in range(8):
        e(f"v_xor_b32 v{R+i}, s{56 + i % 4}, v{R+i}")
    e(f"""
    v_or3_b32 v6, v{R}, v{R+1}, v{R+2}
    v_or3_b32 v6, v6, v{R+3}, v{R+4}
    v_or3_b32 v6, v6, v{R+5}, v{R+6}
    v_or_b32 v6, v6, v{R+7}
    """)
    check(6, "L_m1g", "L_m1l", spin_limit)
    g.label("L_m1g")
    stamp(10)
    e(f"v_pk_add_f32 v[{R}:{R+1}], v[{R}:{R+1}], v[{R+4}:{R+5}]\nv_pk_add_f32 v[{R+2}:{R+3}], v[{R+2}:{R+3}], v[{R+6}:{R+7}]")
    xsum4(R, R + 4, sws=("v_permlane32_swap_b32",))
    e(f"""
    v_cvt_pk_bf16_f32 v{R+8}, v{R}, v{R+1}
    v_cvt_pk_bf16_f32 v{R+9}, v{R+2}, v{R+3}
    s_nop 0
    v_cndmask_b32 v{R+8}, v{R+8}, v{R+9}, s[6:7]
    ds_write_b16 v{FR+25}, v{R+8}
    ds_write_b16_d16_hi v{FR+25}, v{R+8} offset:256
    s_waitcnt lgkmcnt(0)
    s_barrier
    """)
    stamp(8)
    AF = FR; OA0 = FR + 16
    for j in range(4):
        e(f"ds_read_b128 v[{AF+4*j}:{AF+4*j+3}], v4 offset:{64*j}")
    OA1 = WB + 32
    def epi(OA, t0, h):
        L = []
        for r in range(4):
            L.append(f"v_cndmask_b32 v{t0+r}, v{OA+r}, v{OA+4+r}, s[4:5]")
            L.append(f"v_cndmask_b32 v{t0+4+r}, v{OA+8+r}, v{OA+12+r}, s[4:5]")
        for r in range(4):
            L.append(f"v_cndmask_b32 v{t0+r}, v{t0+r}, v{t0+4+r}, s[6:7]")
        for r in range(4):
            L.append(f"v_and_b32 v{t0+r}, s98, v{t0+r}"); L.append(f"v_or_b32 v{t0+r}, s{56+r}, v{t0+r}")
        L.append(f"buffer_store_dwordx4 v[{t0}:{t0+3}], v5, s[36:39], s96 offen offset:{128*h} sc1")
        return L
    for j in range(4):
        e(f"s_waitcnt lgkmcnt({3-j})")
        for q in range(4):
            c = "0" if j == 0 else f"v[{OA0+4*q}:{OA0+4*q+3}]"
            b = WB + 32 * j + 4 * q
            e(f"v_mfma_f32_16x16x32_bf16 v[{OA0+4*q}:{OA0+4*q+3}], v[{AF+4*j}:{AF+4*j+3}], v[{b}:{b+3}], {c}")
    ep0 = epi(OA0, WB, 0)
    n = 0
    for j in range(4):
        for q in range(4):
            c = "0" if j == 0 else f"v[{OA1+4*q}:{OA1+4*q+3}]"
            b = WB + 32 * j + 4 * (4 + q)
            e(f"v_mfma_f32_16x16x32_bf16 v[{OA1+4*q}:{OA1+4*q+3}], v[{AF+4*j}:{AF+4*j+3}], v[{b}:{b+3}], {c}")
            n += 1
            if n >= 8:
                for _ in range(3):
                    if ep0: e(ep0.pop(0))
    while ep0: e(ep0.pop(0))
    g.nop(8)
    for ln in epi(OA1, WB + 8, 1): e(ln)
    stamp(9)
    if ackwait: e("s_waitcnt vmcnt(0)")
    e(f"v_mov_b32 v6, {SYN}\nv_mov_b32 v7, 1\ns_mov_b64 exec, 1\nds_add_u32 v6, v7 offset:{C_M2}\ns_mov_b64 exec, -1")
    stamp_store()

    hdr = f"""; fused GQA decode block: q-proj -> split-KV attention -> out-proj, one launch, in-kernel hand-offs
; @launch grid=(256,1,1) block=({64*NW},1,1) lds={LDS_TOTAL}
.amdgcn_target "amdgcn-amd-amdhsa--gfx950"
.text
.globl {KNAME}
.p2align 8
.type {KNAME},@function
{KNAME}:
"""
    ftr = f"""L_done:
    s_endpgm
.section .rodata,"a"
.p2align 6
.amdhsa_kernel {KNAME}
  .amdhsa_next_free_vgpr 168
  .amdhsa_next_free_sgpr 102
  .amdhsa_accum_offset 168
  .amdhsa_group_segment_fixed_size 0
  .amdhsa_kernarg_size 64
  .amdhsa_user_sgpr_count 2
  .amdhsa_user_sgpr_kernarg_segment_ptr 1
  .amdhsa_system_sgpr_workgroup_id_x 1
  .amdhsa_float_denorm_mode_32 3
.end_amdhsa_kernel
"""
    return hdr + g.text() + ftr

if __name__ == "__main__":
    open("g36.s", "w").write(gen())
    open("g36_st.s", "w").write(gen(stamps=True))
    open("g36_n1.s", "w").write(gen(nwait=1))
    open("g36_n8.s", "w").write(gen(nwait=8))
    open("g36_n1_st.s", "w").write(gen(nwait=1, stamps=True))
```

```python
import sys
from gen1 import G, KNAME

STATS = 0x80000
MSG1 = 0x100000
MSG2 = 0x300000
QWS = 0x600000
DBGA = 0x800000
FAST = 0x1000000
AUX1 = 131072
AUX2 = 147456
MX = AUX2
LS = AUX2 + 512
SCL = AUX2 + 1024
NON = AUX2 + 1536
SYN = AUX2 + 1600
PROG = 0
C_PART, F_PD, F_Q, C_M, C_L, F_N, F_SCL = [8 + 4 * i for i in range(7)]
C_KR = 40
C_M2 = 56
OB = AUX2 + 2048
QL = AUX2 + 4096
RED = AUX2 + 8192
LDS_TOTAL = 163840
TAGB = 11
TMASK = (1 << TAGB) - 1
NW = 12

def gen(stamps=False, spin_limit=20000, THW=8, WS=(32, 32, 20, 18, 16, 14, 12, 10), wo_start=1, wopol="", wqpol="", xpol="",
        kvpol="nt", ldprio=3, ld_early=0, forceslow=False, probe=False, qsm=15, ssm=15, m1sm=31, prest=False, overlay=True, pend=False, ackwait=True, m2sleep=0, nwait=0, wb=0):
    g = G()
    e = g.e
    nst = [0]
    def stamp(idx=None):
        if not stamps: return
        i = nst[0] if idx is None else idx
        if idx is None: nst[0] += 1
        assert i < 14
        e(f"s_memrealtime s[100:101]\ns_waitcnt lgkmcnt(0)\ns_mov_b32 s{80+i}, s100")
    def stamp_store():
        if not stamps: return
        e(f"s_mul_i32 s50, s2, {NW}\ns_add_u32 s50, s50, s44\ns_lshl_b32 s50, s50, 6\ns_add_u32 s50, s50, {DBGA}\nv_mov_b32 v24, 0\ns_mov_b64 exec, 1")
        for i in range(0, 16, 4):
            for k in range(4): e(f"v_mov_b32 v{28+k}, s{80+i+k}")
            e(f"buffer_store_dwordx4 v[28:31], v24, s[36:39], s50 offen offset:{4*i}\ns_nop 1")
    def xreduce(r, tmp, op):
        for sw in ("v_permlane32_swap_b32", "v_permlane16_swap_b32"):
            e(f"v_mov_b32 v{tmp}, v{r}\ns_nop 1\n{sw} v{r}, v{tmp}\ns_nop 0\n{op} v{r}, v{r}, v{tmp}")
    def xsum4(a, t, sws=("v_permlane32_swap_b32", "v_permlane16_swap_b32")):
        for sw in sws:
            for i in range(4): e(f"v_mov_b32 v{t+i}, v{a+i}")
            e("s_nop 0")
            for i in range(4): e(f"{sw} v{a+i}, v{t+i}")
            e("s_nop 0")
            e(f"v_pk_add_f32 v[{a}:{a+1}], v[{a}:{a+1}], v[{t}:{t+1}]\nv_pk_add_f32 v[{a+2}:{a+3}], v[{a+2}:{a+3}], v[{t+2}:{t+3}]")
    def spin(word, val, vsyn, vtmp, sleep=1, two=False):
        l1, l2 = g.newlabel("Lsp"), g.newlabel("Lspd")
        e("s_mov_b32 s61, 0")
        g.label(l1)
        if two:
            e(f"ds_read_b64 v[{vtmp}:{vtmp+1}], v{vsyn} offset:{word}\ns_waitcnt lgkmcnt(0)\nv_min_u32 v{vtmp}, v{vtmp}, v{vtmp+1}\ns_nop 0")
        else:
            e(f"ds_read_b32 v{vtmp}, v{vsyn} offset:{word}\ns_waitcnt lgkmcnt(0)")
        e(f"""
        v_readfirstlane_b32 s60, v{vtmp}
        s_nop 3
        s_cmp_ge_u32 s60, {val}
        s_cbranch_scc1 {l2}
        {f's_sleep {sleep}' if sleep else ''}
        s_add_u32 s61, s61, 1
        s_cmp_lt_u32 s61, {spin_limit * 20}
        s_cbranch_scc1 {l1}
        """)
        g.label(l2)
    def arrive(word, vsyn, vone):
        e(f"s_waitcnt lgkmcnt(0)\ns_mov_b64 exec, 1\nds_add_u32 v{vsyn}, v{vone} offset:{word}\ns_mov_b64 exec, -1")
    def srd(d, p, size):
        e(f"s_mov_b32 s{d}, s{p}\ns_mov_b32 s{d+1}, s{p+1}\ns_mov_b32 s{d+2}, {size}\ns_mov_b32 s{d+3}, 0x00020000")
    def stags(lo, hi):
        e(f"""
        s_and_b32 s56, s{lo}, {TMASK}
        s_bfe_u32 s57, s{lo}, {TAGB | (TAGB << 16)}
        s_lshr_b64 s[58:59], s[{lo}:{hi}], {2*TAGB}
        s_and_b32 s58, s58, {TMASK}
        s_bfe_u32 s59, s{hi}, {(3*TAGB-32) | (TAGB << 16)}
        """)
    def check(vreg, lok, lloop, lim, slp=0):
        e(f"""
        v_and_b32 v{vreg}, {TMASK}, v{vreg}
        v_cmp_eq_u32 vcc, 0, v{vreg}
        s_nop 3
        s_cmp_eq_u64 vcc, -1
        s_cbranch_scc1 {lok}
        {f's_sleep {slp}' if slp else ''}
        s_add_u32 s61, s61, 1
        s_cmp_lt_u32 s61, {lim}
        s_cbranch_scc1 {lloop}
        """)
    WB = 8
    def wo_issue(i, tagp):
        j, ee = i // 8, i % 8
        r = WB + 32 * (j + 1) + 4 * ee
        off = (32 * j + ee) * 1024
        e(f"s_add_u32 s50, s97, {off & ~4095}")
        g.vm(f"buffer_load_dwordx4 v[{r}:{r+3}], v4, s[24:27], s50 offen offset:{off & 4095} {wopol}", f"{tagp}{i}")
    e(f"""
    s_cmp_ge_u32 s2, 256
    s_cbranch_scc1 L_done
    s_load_dwordx16 s[64:79], s[0:1], 0
    s_memrealtime s[98:99]
    v_and_b32 v1, 63, v0
    v_lshrrev_b32 v4, 6, v0
    v_and_b32 v2, 15, v0
    v_bfe_u32 v3, v0, 4, 2
    v_readfirstlane_b32 s44, v4
    s_and_b32 s40, s2, 7
    s_lshr_b32 s41, s2, 3
    s_lshr_b32 s42, s41, 2
    s_and_b32 s43, s41, 3
    s_lshl_b32 s45, s42, 3
    s_add_u32 s45, s45, s40
    s_lshl_b32 s51, s40, 2
    s_add_u32 s51, s51, s43
    s_lshl_b32 s63, s51, 8
    s_mov_b32 s3, {FAST}
    v_mov_b32 v6, {SYN}
    s_cmp_lt_u32 s44, 8
    s_cbranch_scc1 L_cw
    s_sub_u32 s48, s44, 8
    v_lshlrev_b32 v4, 13, v3
    v_lshl_add_u32 v4, v2, 4, v4
    s_lshl_b32 s97, s63, 9
    s_lshl_b32 s50, s48, 8
    s_add_u32 s97, s97, s50
    s_bitcmp0_b32 s44, 0
    s_cbranch_scc1 L_op
    """)
    e(f"""
    s_setprio {ldprio}
    s_lshr_b32 s49, s48, 1
    s_lshl_b32 s46, s45, 2
    s_add_u32 s46, s46, s43
    s_lshl_b32 s46, s46, 17
    s_lshl_b32 s47, s49, 16
    s_add_u32 s46, s46, s47
    s_lshl_b32 s50, s49, 2
    v_add_u32 v7, s50, v6
    s_add_u32 s94, s41, s40
    v_xor_b32 v8, v2, v3
    v_lshlrev_b32 v8, 4, v8
    v_lshl_add_u32 v8, v3, 8, v8
    v_lshlrev_b32 v12, 1, v3
    v_xor_b32 v12, v2, v12
    v_lshlrev_b32 v12, 4, v12
    v_lshl_add_u32 v12, v3, 8, v12
    v_xor_b32 v9, 64, v8
    v_xor_b32 v10, 0x80, v8
    v_xor_b32 v11, 0xc0, v8
    v_xor_b32 v13, 0x80, v12
    s_add_u32 s95, s42, s49
    """)
    for x in range(4):
        e(f"s_add_u32 s50, s94, {x}\ns_and_b32 s50, s50, 3\ns_lshl_b32 s50, s50, 12\ns_add_u32 s{52+x}, s50, s46")
        e(f"s_add_u32 s50, s95, {x}\ns_and_b32 s50, s50, 3\ns_lshl_b32 s{56+x}, s50, 10")
    e("s_waitcnt lgkmcnt(0)")
    srd(12, 66, 0x2000000); srd(16, 68, 0x2000000); srd(24, 72, 0x400000); srd(36, 78, 0x10000000)
    stamp(0)
    if not ld_early: e("s_barrier")
    kv = []; woi = [0]; sig = [0]; known = [0]
    for ph in range(2):
        for t in range(4):
            if ph == 0 and t == 3: spin(F_PD, 1, 6, 15)
            if ph == 1: spin(C_KR + 4 * t, 8, 6, 15)
            for k in range(4):
                for u in range(4):
                    n = len(kv)
                    if ld_early and n == ld_early: e("s_barrier")
                    Wc = WS[n // 16]
                    if n >= Wc and n - Wc + 1 > known[0]:
                        g.wait(kv[n - Wc]); known[0] = n - Wc + 1
                    e(f"s_add_u32 m0, s47, {16384*u + 4096*t + 1024*k}\ns_add_u32 s50, s{52 + (t+u)%4}, s{56 + (k+u)%4}\ns_add_u32 s50, s50, {16384*u}")
                    if ph == 0:
                        g.vm(f"buffer_load_dwordx4 v{8+k}, s[12:15], s50 offen {kvpol} lds", f"kv{n}")
                    else:
                        g.vm(f"buffer_load_dwordx4 v{12+(k&1)}, s[16:19], s50 offen {kvpol} lds", f"kv{n}")
                    kv.append(f"kv{n}")
                    while sig[0] < 8 and known[0] >= 16 * (sig[0] + 1):
                        sig[0] += 1
                        e(f"v_mov_b32 v14, {sig[0]}\nds_write_b32 v7, v14 offset:{PROG}")
                    gi = ph * 4 + t
                    if gi >= wo_start and woi[0] < 32 and (n % (3 if wo_start <= 1 else 2) == 0 or gi >= 6):
                        wo_issue(woi[0], "wl"); woi[0] += 1
    assert woi[0] == 32, woi[0]
    stamp(4)
    g.wait("wl31")
    e("s_branch L_tr2")
    drain = []
    while sig[0] < 8:
        drain.append((g.nvm - g.pos[kv[16 * (sig[0] + 1) - 1]], sig[0] + 1))
        sig[0] += 1

    g.label("L_cw")
    e(f"""
    s_lshl_b32 s47, s44, 14
    s_and_b32 s52, s43, 1
    s_lshr_b32 s53, s43, 1
    s_lshl_b32 s46, s52, 2
    s_add_u32 s46, s46, s44
    s_and_b32 s46, s46, 7
    s_lshl_b32 s50, s53, 3
    s_add_u32 s46, s46, s50
    v_lshrrev_b32 v14, 2, v1
    v_and_b32 v15, 3, v1
    v_lshlrev_b32 v15, 4, v15
    v_lshl_add_u32 v16, v14, 10, v15
    v_lshl_add_u32 v14, v14, 13, v15
    s_lshl_b32 s50, s46, 18
    s_lshl_b32 s51, s40, 10
    s_add_u32 s50, s50, s51
    s_lshl_b32 s51, s42, 7
    s_add_u32 s50, s50, s51
    s_lshl_b32 s51, s52, 6
    s_add_u32 s50, s50, s51
    s_lshl_b32 s51, s44, 11
    s_add_u32 s62, s51, {AUX1}
    s_lshl_b32 s51, s46, 6
    s_waitcnt lgkmcnt(0)
    """)
    srd(20, 70, 0x400000); srd(8, 64, 32768)
    stamp()
    e(f"""
    s_mov_b32 m0, s62
    s_add_u32 s54, s50, 0x20000
    buffer_load_dwordx4 v14, s[20:23], s50 offen {wqpol} lds
    s_add_u32 m0, s62, 1024
    s_add_u32 s55, s51, 16384
    buffer_load_dwordx4 v14, s[20:23], s54 offen {wqpol} lds
    s_add_u32 m0, s47, 12288
    s_nop 0
    buffer_load_dwordx4 v16, s[8:11], s51 offen {xpol} lds
    s_add_u32 m0, s47, 13312
    s_nop 0
    buffer_load_dwordx4 v16, s[8:11], s55 offen {xpol} lds
    s_barrier
    """)
    srd(28, 74, 32768); srd(36, 78, 0x10000000)
    e(f"""
    v_lshrrev_b32 v24, 2, v2
    v_lshl_add_u32 v24, v3, 3, v24
    v_lshlrev_b32 v24, 6, v24
    v_and_b32 v25, 3, v1
    v_lshl_add_u32 v24, v25, 3, v24
    v_add_u32 v24, s62, v24
    v_lshlrev_b32 v25, 6, v2
    v_lshl_add_u32 v25, v3, 4, v25
    v_add_u32 v25, s47, v25
    v_lshlrev_b32 v27, 4, v1
    v_add_u32 v27, s47, v27
    v_mov_b32 v20, {SYN}
    v_mov_b32 v21, 1
    s_lshr_b32 s50, s44, 2
    s_lshl_b32 s50, s50, 2
    v_add_u32 v19, s50, v20
    v_lshlrev_b32 v16, 13, v3
    v_lshl_add_u32 v16, v2, 4, v16
    s_lshl_b32 s50, s45, 15
    s_lshl_b32 s51, s43, 11
    s_add_u32 s50, s50, s51
    s_lshl_b32 s51, s44, 8
    s_add_u32 s50, s50, s51
    s_add_u32 s50, s50, {MSG1}
    v_add_u32 v16, s50, v16
    v_lshlrev_b32 v17, 8, v2
    v_lshl_add_u32 v17, v3, 4, v17
    v_add_u32 v17, {QL}, v17
    v_mov_b32 v18, {NON}
    v_xor_b32 v12, v2, v3
    v_lshlrev_b32 v12, 4, v12
    v_lshlrev_b32 v13, 8, v2
    v_add_u32 v13, s47, v13
    v_add_u32 v28, v13, v12
    v_xor_b32 v29, 64, v12
    v_add_u32 v29, v13, v29
    v_xor_b32 v30, 0x80, v12
    v_add_u32 v30, v13, v30
    v_xor_b32 v31, 0xc0, v12
    v_add_u32 v31, v13, v31
    v_mov_b32 v160, 0
    v_mov_b32 v161, 0
    v_mov_b32 v162, 0
    v_mov_b32 v163, 0
    s_waitcnt vmcnt(0)
    """)
    if prest: e("buffer_store_dwordx4 v[160:163], v16, s[36:39], s3 offen")
    stamp()
    XF = 96; WF = 104; QA = 112
    for ct in range(2):
        e(f"ds_read_b64_tr_b16 v[{WF+4*ct}:{WF+4*ct+1}], v24 offset:{32*ct}")
        e(f"ds_read_b64_tr_b16 v[{WF+4*ct+2}:{WF+4*ct+3}], v24 offset:{32*ct+256}")
    for rt in range(2):
        e(f"ds_read_b128 v[{XF+4*rt}:{XF+4*rt+3}], v25 offset:{12288 + 1024*rt}")
    e("s_waitcnt lgkmcnt(0)")
    for ct in range(2):
        for rt in range(2):
            q = QA + 4 * (2 * ct + rt)
            e(f"v_mfma_f32_16x16x32_bf16 v[{q}:{q+3}], v[{WF+4*ct}:{WF+4*ct+3}], v[{XF+4*rt}:{XF+4*rt+3}], 0")
    g.nop(8)
    for i in range(4):
        e(f"ds_write_b128 v27, v[{QA+4*i}:{QA+4*i+3}] offset:{12288 + 1024*i}")
    arrive(C_PART, 20, 21)
    stamp()
    KF = 32
    for t in range(4):
        spin(PROG, t + 1, 19, 22, sleep=2)
        for j in range(4):
            r = KF + 16 * t + 4 * j
            e(f"ds_read_b128 v[{r}:{r+3}], v{28+j} offset:{4096*t}")
        arrive(C_KR + 4 * t, 20, 21)
    stamp()
    spin(F_Q, 1, 20, 22, sleep=2)
    e("s_mov_b32 s94, s60")
    stamp()
    QF = 96; SA = 112; T = 128
    for j in range(4):
        e(f"ds_read_b128 v[{QF+4*j}:{QF+4*j+3}], v17 offset:{64*j}")
    e("ds_read_b64 v[22:23], v18")
    for j in range(4):
        e(f"s_waitcnt lgkmcnt({4-j})")
        for t in range(4):
            r = KF + 16 * t + 4 * j
            c = "0" if j == 0 else f"v[{SA+4*t}:{SA+4*t+3}]"
            e(f"v_mfma_f32_16x16x32_bf16 v[{SA+4*t}:{SA+4*t+3}], v[{r}:{r+3}], v[{QF+4*j}:{QF+4*j+3}], {c}")
    e(f"""
    s_waitcnt lgkmcnt(0)
    v_and_b32 v4, {TMASK}, v22
    v_bfe_u32 v5, v22, {TAGB}, {TAGB}
    v_alignbit_b32 v6, v23, v22, {2*TAGB}
    v_and_b32 v6, {TMASK}, v6
    v_bfe_u32 v7, v23, {3*TAGB-32}, {TAGB}
    s_mov_b32 s50, 0x3db504f3
    s_mov_b32 s51, 0xffff0000
    s_mov_b32 s99, 0x3fb8aa3b
    s_nop 1
    """)
    for p in range(8):
        a = SA + 2 * p
        e(f"""
        v_cvt_pk_bf16_f32 v{T}, v{a}, v{a+1}
        v_lshlrev_b32 v{a}, 16, v{T}
        v_and_b32 v{a+1}, s51, v{T}
        v_mul_f32 v{a}, s50, v{a}
        v_mul_f32 v{a+1}, s50, v{a+1}
        v_cvt_pk_bf16_f32 v{T}, v{a}, v{a+1}
        v_lshlrev_b32 v{a}, 16, v{T}
        v_and_b32 v{a+1}, s51, v{T}
        """)
    e(f"v_max3_f32 v{T}, v{SA}, v{SA+1}, v{SA+2}")
    for i in range(3, 15, 2):
        e(f"v_max3_f32 v{T}, v{T}, v{SA+i}, v{SA+i+1}")
    e(f"v_max_f32 v{T}, v{T}, v{SA+15}")
    xreduce(T, T + 1, "v_max_f32")
    e(f"""
    v_lshlrev_b32 v12, 5, v2
    v_add_u32 v12, {MX}, v12
    s_lshl_b32 s50, s44, 2
    v_add_u32 v13, s50, v12
    ds_write_b32 v13, v{T}
    """)
    arrive(C_M, 20, 21)
    spin(C_M, 8, 20, 22)
    e(f"ds_read_b128 v[{T+4}:{T+7}], v12\nds_read_b128 v[{T+8}:{T+11}], v12 offset:16\ns_waitcnt lgkmcnt(0)")
    e(f"""
    v_max3_f32 v{T}, v{T+4}, v{T+5}, v{T+6}
    v_max3_f32 v{T}, v{T}, v{T+7}, v{T+8}
    v_max3_f32 v{T}, v{T}, v{T+9}, v{T+10}
    v_max_f32 v{T}, v{T}, v{T+11}
    v_mul_f32 v23, s99, v{T}
    """)
    for i in range(16):
        e(f"v_fma_f32 v{SA+i}, v{SA+i}, s99, -v23")
    for i in range(16):
        e(f"v_exp_f32 v{SA+i}, v{SA+i}")
    e("s_nop 0")
    e(f"v_lshlrev_b32 v14, 3, v1\nv_add_u32 v14, s62, v14")
    for t in range(4):
        a = SA + 4 * t
        e(f"v_cvt_pk_bf16_f32 v{T+2*t}, v{a}, v{a+1}\nv_cvt_pk_bf16_f32 v{T+2*t+1}, v{a+2}, v{a+3}")
        e(f"ds_write_b64 v14, v[{T+2*t}:{T+2*t+1}] offset:{512*t}")
    for st in (8, 4, 2):
        for i in range(0, st, 2):
            a = SA + i; b = SA + i + st
            e(f"v_pk_add_f32 v[{a}:{a+1}], v[{a}:{a+1}], v[{b}:{b+1}]")
    e(f"v_add_f32 v{SA}, v{SA}, v{SA+1}")
    xreduce(SA, SA + 1, "v_add_f32")
    e(f"ds_write_b32 v13, v{SA} offset:512")
    arrive(C_L, 20, 21)
    PF = 32; BF = 112; PVA = 160; SC = 164
    e(f"""
    v_lshrrev_b32 v24, 2, v2
    v_lshl_add_u32 v24, v3, 2, v24
    v_and_b32 v25, 7, v24
    v_lshlrev_b32 v25, 1, v25
    v_bfe_u32 v27, v1, 1, 1
    s_lshl_b32 s50, s44, 1
    v_add_u32 v27, s50, v27
    v_xor_b32 v25, v25, v27
    v_lshlrev_b32 v25, 4, v25
    v_lshl_add_u32 v25, v24, 8, v25
    v_and_b32 v27, 1, v1
    v_lshl_add_u32 v25, v27, 3, v25
    v_add_u32 v26, 0x10000, v25
    v_lshlrev_b32 v27, 3, v1
    v_add_u32 v27, {AUX1}, v27
    v_and_b32 v30, 1, v3
    v_lshlrev_b32 v30, 4, v30
    v_cmp_le_u32 s[6:7], 2, v3
    v_lshlrev_b32 v19, 4, v3
    v_add_u32 v19, {SCL}, v19
    s_mov_b32 s98, {(~TMASK) & 0xffffffff}
    """)
    spin(C_L, 8, 20, 22)
    stamp()
    lnp = g.newlabel("Lnp")
    A = 128
    e(f"""
    s_cmp_lg_u32 s44, 1
    s_cbranch_scc1 {lnp}
    ds_read_b128 v[{A+8}:{A+11}], v12 offset:512
    ds_read_b128 v[{A+12}:{A+15}], v12 offset:528
    ds_read_b64 v[{A+18}:{A+19}], v18
    v_lshlrev_b32 v{A+21}, 4, v2
    s_lshl_b32 s50, s45, 10
    s_add_u32 s50, s50, {STATS}
    s_lshl_b32 s51, s43, 8
    s_add_u32 s51, s51, s50
    v_mov_b32 v{A+16}, v23
    s_waitcnt lgkmcnt(0)
    v_pk_add_f32 v[{A+8}:{A+9}], v[{A+8}:{A+9}], v[{A+10}:{A+11}]
    v_pk_add_f32 v[{A+12}:{A+13}], v[{A+12}:{A+13}], v[{A+14}:{A+15}]
    v_pk_add_f32 v[{A+8}:{A+9}], v[{A+8}:{A+9}], v[{A+12}:{A+13}]
    v_add_f32 v{A+17}, v{A+8}, v{A+9}
    s_mov_b64 exec, 0xffff
    s_add_u32 s55, s51, s3
    buffer_store_dwordx4 v[{A+16}:{A+19}], v{A+21}, s[36:39], s55 offen
    s_cmp_eq_u32 s94, 2
    s_cbranch_scc1 L_std
    buffer_store_dwordx4 v[{A+16}:{A+19}], v{A+21}, s[36:39], s51 offen sc1
    """)
    g.label("L_std")
    e("s_mov_b64 exec, -1")
    g.label(lnp)
    for k in range(4):
        for i in range(4):
            r = PF + 16 * k + 4 * i
            e(f"ds_read2st64_b64 v[{r}:{r+3}], v27 offset0:{8*i+k} offset1:{8*i+4+k}")
        if k == 1: e("s_waitcnt lgkmcnt(0)")
    first = [True]
    def pv_phase(k):
        for i in range(4):
            for hf in range(2):
                u = 2 * i + hf
                r = BF + 4 * i + 2 * hf
                e(f"ds_read_b64_tr_b16 v[{r}:{r+1}], v{25 if u < 4 else 26} offset:{(u % 4) * 16384 + 4096 * k}")
        for i in range(4):
            e(f"s_waitcnt lgkmcnt({6 - 2*i})")
            c = "0" if first[0] else f"v[{PVA}:{PVA+3}]"
            first[0] = False
            e(f"v_mfma_f32_16x16x32_bf16 v[{PVA}:{PVA+3}], v[{PF+16*k+4*i}:{PF+16*k+4*i+3}], v[{BF+4*i}:{BF+4*i+3}], {c}")
    for k in range(3):
        spin(PROG, 5 + k, 20, 22, sleep=2, two=True)
        pv_phase(k)
    stamp()
    spin(F_SCL, 1, 20, 22, sleep=1)
    e(f"ds_read_b128 v[{SC}:{SC+3}], v19")
    stamp()
    spin(PROG, 8, 20, 22, sleep=0, two=True)
    stamp()
    pv_phase(3)
    g.nop(8)
    for i in range(4):
        e(f"v_mul_f32 v{PVA+i}, v{PVA+i}, v{SC+i}")
    for i in range(4):
        e(f"v_and_or_b32 v{PVA+i}, v{PVA+i}, s98, v{4+i}")
    lsd = g.newlabel("Lsd")
    e(f"""
    buffer_store_dwordx4 v[{PVA}:{PVA+3}], v16, s[36:39], s3 offen
    s_cmp_eq_u32 s94, 2
    s_cbranch_scc1 {lsd}
    buffer_store_dwordx4 v[{PVA}:{PVA+3}], v16, s[36:39], 0 offen sc1
    """)
    g.label(lsd)
    stamp()
    nst[0] = 12
    lend = g.newlabel("Lend")
    e(f"s_cmp_lg_u32 s44, 0\ns_cbranch_scc1 {lend}")
    e(f"""
    v_lshlrev_b32 v24, 4, v1
    s_lshl_b32 s50, s42, 18
    s_lshl_b32 s51, s63, 5
    s_add_u32 s50, s50, s51
    s_add_u32 s50, s50, {MSG2}
    s_add_u32 s51, s50, 4096
    v_lshlrev_b32 v25, 10, v3
    v_and_b32 v26, 3, v2
    v_lshl_add_u32 v25, v26, 1, v25
    v_bfe_u32 v26, v2, 2, 1
    v_lshl_add_u32 v25, v26, 4, v25
    v_lshrrev_b32 v26, 3, v2
    v_lshl_add_u32 v25, v26, 3, v25
    s_lshl_b32 s96, s42, 12
    s_lshr_b32 s97, s63, 3
    s_add_u32 s96, s96, s97
    s_barrier
    """)
    spin(C_M2, 4, 20, 22, sleep=1)
    e("s_mov_b32 s61, 0")
    if pend:
        ll, lg = g.newlabel("Lm2l"), g.newlabel("Lm2g")
        FB = 32; RB = 64
        e("s_mov_b32 s52, 0xff")
        g.label(ll)
        for i in range(8):
            lk = g.newlabel("Lp")
            e(f"s_bitcmp0_b32 s52, {i}\ns_cbranch_scc1 {lk}\nbuffer_load_dwordx4 v[{RB+4*i}:{RB+4*i+3}], v24, s[36:39], s{50 + i // 4} offen offset:{(i % 4) * 1024} sc1")
            g.label(lk)
        e("s_waitcnt vmcnt(0)")
        for i in range(8):
            lk = g.newlabel("Lp")
            e(f"""
            s_bitcmp0_b32 s52, {i}
            s_cbranch_scc1 {lk}
            v_xor_b32 v{FB+4*i}, v{RB+4*i}, v4
            v_xor_b32 v{FB+4*i+1}, v{RB+4*i+1}, v5
            v_xor_b32 v{FB+4*i+2}, v{RB+4*i+2}, v6
            v_xor_b32 v{FB+4*i+3}, v{RB+4*i+3}, v7
            v_or3_b32 v28, v{FB+4*i}, v{FB+4*i+1}, v{FB+4*i+2}
            v_or_b32 v28, v28, v{FB+4*i+3}
            v_and_b32 v28, {TMASK}, v28
            v_cmp_eq_u32 vcc, 0, v28
            s_nop 3
            s_cmp_eq_u64 vcc, -1
            s_cbranch_scc0 {lk}
            s_bitset0_b32 s52, {i}
            """)
            g.label(lk)
        e(f"""
        s_cmp_eq_u32 s52, 0
        s_cbranch_scc1 {lg}
        s_add_u32 s61, s61, 1
        s_cmp_lt_u32 s61, {spin_limit}
        s_cbranch_scc1 {ll}
        """)
    else:
        ll, lg = g.newlabel("Lm2l"), g.newlabel("Lm2g")
        g.label(ll)
        FB = 32
        for i in range(8):
            e(f"buffer_load_dwordx4 v[{FB+4*i}:{FB+4*i+3}], v24, s[36:39], s{50 + i // 4} offen offset:{(i % 4) * 1024} sc1")
        e("s_waitcnt vmcnt(0)")
        for i in range(32):
            e(f"v_xor_b32 v{FB+i}, v{FB+i}, v{4 + i % 4}")
        e(f"v_or3_b32 v28, v{FB}, v{FB+1}, v{FB+2}")
        for i in range(3, 31, 2):
            e(f"v_or3_b32 v28, v28, v{FB+i}, v{FB+i+1}")
        e(f"v_or_b32 v28, v28, v{FB+31}")
        check(28, lg, ll, spin_limit, m2sleep)
    g.label(lg)
    stamp()
    for st in (4, 2, 1):
        for w in range(st):
            a = FB + 4 * w; b = FB + 4 * (w + st)
            e(f"v_pk_add_f32 v[{a}:{a+1}], v[{a}:{a+1}], v[{b}:{b+1}]\nv_pk_add_f32 v[{a+2}:{a+3}], v[{a+2}:{a+3}], v[{b+2}:{b+3}]")
    xsum4(FB, FB + 4)
    e(f"""
    v_cvt_pk_bf16_f32 v28, v{FB}, v{FB+1}
    v_cvt_pk_bf16_f32 v29, v{FB+2}, v{FB+3}
    s_nop 0
    v_cndmask_b32 v28, v28, v29, s[6:7]
    v_lshrrev_b32 v28, v30, v28
    buffer_store_short v28, v25, s[28:31], s96 offen
    """)
    g.label(lend)
    stamp()
    stamp_store()
    e("s_endpgm")

    g.label("L_op")
    e(f"""
    s_setprio 3
    v_mov_b32 v5, 0
    v_mov_b32 v21, 1
    v_mov_b32 v17, {NON}
    v_lshlrev_b32 v24, 4, v1
    v_mov_b32 v27, 0
    s_mov_b32 s46, {QWS}
    s_mov_b32 s47, {QWS}
    s_waitcnt lgkmcnt(0)
    """)
    srd(36, 78, 0x10000000); srd(24, 72, 0x400000)
    stamp(0)
    e("s_cmp_lg_u32 s44, 8\ns_cbranch_scc1 L_w10")
    e(f"""
    v_lshlrev_b32 v7, 2, v2
    v_add_u32 v7, {SYN}, v7
    ds_write_b32 v7, v5
    s_lshl_b32 s50, s45, 15
    s_lshl_b32 s51, s43, 12
    s_add_u32 s50, s50, s51
    s_add_u32 s50, s50, {MSG1 + FAST}
    s_add_u32 s51, s50, 16384
    """)
    if not overlay:
        e(f"s_lshl_b32 s52, s45, 14\ns_lshl_b32 s53, s43, 12\ns_add_u32 s52, s52, s53\ns_add_u32 s52, s52, {QWS + FAST}")
        for i in range(4): e(f"buffer_load_dwordx4 v[32:35], v24, s[36:39], s52 offen offset:{i * 1024} sc1")
    for i in range(4): e(f"buffer_load_dwordx4 v[32:35], v24, s[36:39], s50 offen offset:{i * 1024} sc1")
    e("s_waitcnt lgkmcnt(0)\ns_barrier")
    for i in range(4): e(f"buffer_load_dwordx4 v[32:35], v24, s[36:39], s51 offen offset:{i * 1024} sc1")
    e(f"""
    v_add_u32 v26, 12288, v24
    v_add_u32 v25, 0x10000, v26
    v_lshrrev_b32 v27, 2, v2
    v_lshlrev_b32 v27, 17, v27
    v_and_b32 v28, 3, v2
    v_lshl_add_u32 v27, v28, 9, v27
    v_lshl_add_u32 v27, v3, 4, v27
    s_lshl_b32 s52, s40, 14
    s_lshr_b32 s53, s43, 1
    s_lshl_b32 s53, s53, 13
    s_add_u32 s52, s52, s53
    s_lshr_b32 s53, s42, 1
    s_lshl_b32 s53, s53, 11
    s_add_u32 s52, s52, s53
    s_and_b32 s53, s42, 1
    s_lshl_b32 s53, s53, 8
    s_add_u32 s52, s52, s53
    s_and_b32 s53, s43, 1
    s_lshl_b32 s53, s53, 7
    s_add_u32 s52, s52, s53
    s_lshl_b32 s53, s40, 14
    s_add_u32 s54, s52, s53
    s_add_u32 s54, s54, {MSG1 + FAST if overlay else 0}
    s_add_u32 s55, s54, 0x100000
    v_lshrrev_b32 v29, 2, v2
    v_lshl_add_u32 v29, v29, 17, v27
    s_add_u32 s52, s52, {QWS}
    s_add_u32 s53, s52, 0x80000
    OVL
    s_mov_b32 s96, {(~TMASK) & 0xffffffff}
    v_mov_b32 v32, 0
    v_mov_b32 v33, 0
    v_mov_b32 v34, 0
    v_mov_b32 v35, 0
    s_lshl_b32 s50, s45, 10
    s_lshl_b32 s51, s43, 8
    s_add_u32 s50, s50, s51
    s_add_u32 s50, s50, {STATS + FAST}
    v_lshlrev_b32 v28, 4, v2
    """.replace("OVL", "s_nop 0" if overlay else "s_add_u32 s54, s52, s3\ns_add_u32 s55, s53, s3\nv_mov_b32 v29, v27"))
    e(f"""
    s_lshl_b32 s50, s45, 10
    s_add_u32 s50, s50, {STATS + FAST}
    buffer_load_dwordx4 v[32:35], v24, s[36:39], s50 offen sc1
    """)
    if prest:
        for ct in range(2):
            for rt in range(2):
                e(f"buffer_store_dwordx4 v[32:35], v27, s[36:39], s{54 + rt} offen offset:{64*ct}")
        e("buffer_store_dwordx4 v[32:35], v28, s[36:39], s50 offen")
    spin(C_PART, 8, 6, 7)
    e("s_waitcnt vmcnt(0)")
    stamp(2)
    RT = 32
    for i in range(4):
        for w in range(8):
            r = RT + 32 * i + 4 * w
            e(f"ds_read_b128 v[{r}:{r+3}], v{26 if w < 4 else 25} offset:{(w % 4)*16384+i*1024}")
        e("s_waitcnt lgkmcnt(0)")
    e(f"ds_write_b32 v6, v21 offset:{F_PD}")
    for i in range(4):
        for st in (4, 2, 1):
            for w in range(st):
                a = RT + 32 * i + 4 * w; b = a + 4 * st
                e(f"v_pk_add_f32 v[{a}:{a+1}], v[{a}:{a+1}], v[{b}:{b+1}]\nv_pk_add_f32 v[{a+2}:{a+3}], v[{a+2}:{a+3}], v[{b+2}:{b+3}]")
        for r in range(4):
            a = RT + 32 * i + r
            e(f"v_add_u32 v{a}, {1 << (TAGB-1)}, v{a}\nv_and_b32 v{a}, s96, v{a}")
    spin(F_N, 1, 6, 7)
    e(f"""
    ds_read_b64 v[10:11], v17
    s_waitcnt lgkmcnt(0)
    v_readfirstlane_b32 s98, v10
    v_readfirstlane_b32 s99, v11
    s_nop 3
    """)
    stags(98, 99)
    stamp(1)
    e("s_getreg_b32 s51, hwreg(HW_REG_XCC_ID)\ns_and_b32 s51, s51, 15\ns_add_u32 s51, s51, 1\ns_xor_b32 s51, s51, s57")
    for i in range(4):
        for r in range(4):
            a = RT + 32 * i + r
            e(f"v_or_b32 v{8+4*i+r}, s{56+r}, v{a}")
            e(f"v_or_b32 v{a}, s{51 if r == 1 else 56+r}, v{a}")
    for ct in range(2):
        for rt in range(2):
            a = RT + 32 * (2 * ct + rt)
            e(f"buffer_store_dwordx4 v[{a}:{a+3}], v29, s[36:39], s{54 + rt} offen offset:{64*ct}")
    e("s_mov_b32 s46, s52\ns_mov_b32 s47, s53\ns_nop 1")
    stamp(3)
    e("s_branch L_wo")
    g.label("L_w10")
    srd(32, 76, 256)
    e(f"""
    s_lshl_b64 s[98:99], s[98:99], 1
    s_or_b32 s98, s98, 1
    s_or_b32 s99, s99, 0x80000000
    s_cmp_lg_u32 s2, 0
    s_cbranch_scc1 L_n0
    v_mov_b32 v28, s98
    v_mov_b32 v29, s99
    v_mov_b32 v30, 0
    v_mov_b32 v31, 0
    s_mov_b64 exec, 1
    buffer_atomic_cmpswap_x2 v[28:31], v5, s[32:35], 0 offen sc0 sc1
    s_mov_b64 exec, -1
    s_barrier
    s_waitcnt vmcnt(0)
    v_readfirstlane_b32 s50, v28
    v_readfirstlane_b32 s51, v29
    s_nop 3
    s_cmp_lt_i32 s51, 0
    s_cselect_b32 s98, s50, s98
    s_cselect_b32 s99, s51, s99
    s_branch L_n1
    """)
    g.label("L_n0")
    if nwait:
        e("s_barrier")
        spin(C_PART, nwait, 6, 7)
        e("buffer_load_dwordx2 v[22:23], v5, s[32:35], 0 offen sc1\ns_mov_b32 s61, 0")
    else:
        e("buffer_load_dwordx2 v[22:23], v5, s[32:35], 0 offen sc1\ns_barrier\ns_mov_b32 s61, 0")
    g.label("L_auxn")
    e(f"""
    s_waitcnt vmcnt(0)
    v_readfirstlane_b32 s98, v22
    v_readfirstlane_b32 s99, v23
    s_nop 3
    s_cmp_lt_i32 s99, 0
    s_cbranch_scc1 L_n1
    buffer_load_dwordx2 v[22:23], v5, s[32:35], 0 offen sc1
    s_add_u32 s61, s61, 1
    s_cmp_lt_u32 s61, {spin_limit}
    s_cbranch_scc1 L_auxn
    """)
    g.label("L_n1")
    stamp(1)
    e(f"""
    v_mov_b32 v22, s98
    v_mov_b32 v23, s99
    ds_write_b64 v17, v[22:23]
    s_waitcnt lgkmcnt(0)
    ds_write_b32 v6, v21 offset:{F_N}
    s_lshl_b32 s50, s45, 14
    s_add_u32 s50, s50, {QWS}
    s_lshl_b32 s51, s45, {15 if overlay else 14}
    s_add_u32 s51, s51, {MSG1 + FAST if overlay else QWS + FAST}
    v_lshlrev_b32 v16, 3, v1
    v_add_u32 v16, {QL}, v16
    v_lshrrev_b32 v18, 5, v1
    v_lshlrev_b32 v18, 13, v18
    v_bfe_u32 v19, v1, 3, 2
    v_lshl_add_u32 v18, v19, 11, v18
    v_and_b32 v19, 7, v1
    v_lshl_add_u32 v18, v19, 6, v18
    """)
    stags(98, 99)
    e("s_getreg_b32 s53, hwreg(HW_REG_XCC_ID)\ns_and_b32 s53, s53, 15\ns_add_u32 s53, s53, 1\ns_xor_b32 s53, s53, s57\ns_mov_b32 s52, s57")
    spin(F_PD, 1, 6, 7)
    e("s_mov_b32 s61, 0")
    stamp(3)
    g.label("L_aux4")
    e(f"s_and_b32 s54, s61, {qsm}\ns_cmp_eq_u32 s54, {qsm}\ns_cselect_b32 s54, s50, s51\ns_cselect_b32 s57, s52, s53\ns_cselect_b32 s49, 1, {1 if forceslow else 2}")
    if probe:
        e(f"""
        buffer_load_dwordx4 v[{RT}:{RT+3}], v18, s[36:39], s54 offen sc1
        s_waitcnt vmcnt(0)
        v_xor_b32 v{RT}, s56, v{RT}
        v_xor_b32 v{RT+1}, s57, v{RT+1}
        v_xor_b32 v{RT+2}, s58, v{RT+2}
        v_xor_b32 v{RT+3}, s59, v{RT+3}
        v_or3_b32 v7, v{RT}, v{RT+1}, v{RT+2}
        v_or_b32 v7, v7, v{RT+3}
        """)
        check(7, "L_aux4b", "L_aux4", spin_limit)
        g.label("L_aux4b")
    for i in range(16):
        if i % 4 == 0: e(f"s_add_u32 s55, s54, {1024*i}")
        e(f"buffer_load_dwordx4 v[{RT+4*i}:{RT+4*i+3}], v24, s[36:39], s55 offen offset:{(i % 4) * 1024} sc1")
    e("s_waitcnt vmcnt(0)")
    for i in range(64):
        e(f"v_xor_b32 v{RT+i}, s{56 + i % 4}, v{RT+i}")
    e(f"v_or3_b32 v7, v{RT}, v{RT+1}, v{RT+2}")
    for i in range(3, 63, 2):
        e(f"v_or3_b32 v7, v7, v{RT+i}, v{RT+i+1}")
    e(f"v_or_b32 v7, v7, v{RT+63}")
    check(7, "L_aux5", "L_aux4", spin_limit)
    g.label("L_aux5")
    for i in range(8):
        a = RT + 4 * i; b = a + 32
        e(f"""
        v_pk_add_f32 v[{a}:{a+1}], v[{a}:{a+1}], v[{b}:{b+1}]
        v_pk_add_f32 v[{a+2}:{a+3}], v[{a+2}:{a+3}], v[{b+2}:{b+3}]
        v_cvt_pk_bf16_f32 v{a}, v{a}, v{a+1}
        v_cvt_pk_bf16_f32 v{a+1}, v{a+2}, v{a+3}
        ds_write_b64 v16, v[{a}:{a+1}] offset:{512*i}
        """)
    e(f"v_mov_b32 v21, s49\ns_waitcnt lgkmcnt(0)\nds_write_b32 v6, v21 offset:{F_Q}\ns_waitcnt lgkmcnt(0)")
    stamp(4)
    g.label("L_wo")
    e("s_setprio 1")
    for i in range(32):
        if i >= THW: g.wait(f"wa{i-THW}")
        wo_issue(i, "wa")
    stamp(5)
    FR = WB; A = FR
    e(f"""
    s_cmp_lg_u32 s44, 8
    s_cbranch_scc1 L_tr
    s_setprio 3
    s_mov_b32 s61, 0
    """)
    g.label("L_dq")
    e(f"""
    ds_read_b64 v[28:29], v6 offset:{PROG}
    ds_read_b32 v30, v6 offset:{F_Q}
    s_waitcnt lgkmcnt(0)
    v_min_u32 v28, v28, v29
    v_readfirstlane_b32 s60, v30
    v_readfirstlane_b32 s50, v28
    s_nop 3
    s_cmp_eq_u32 s60, 2
    s_cbranch_scc1 L_dq2
    s_cmp_eq_u32 s60, 1
    s_cbranch_scc1 L_dq1
    s_cmp_ge_u32 s50, 8
    s_cbranch_scc1 L_dq1
    s_sleep 2
    s_add_u32 s61, s61, 1
    s_cmp_lt_u32 s61, {spin_limit * 20}
    s_cbranch_scc1 L_dq
    """)
    g.label("L_dq1")
    for ct in range(2):
        for rt in range(2):
            a2 = 8 + 4 * (2 * ct + rt)
            e(f"buffer_store_dwordx4 v[{a2}:{a2+3}], v27, s[36:39], s{46 + rt} offen offset:{64*ct} sc1")
    e("s_waitcnt vmcnt(0)")
    g.label("L_dq2")
    e(f"""
    v_lshlrev_b32 v{FR+21}, 4, v2
    s_lshl_b32 s50, s45, 10
    s_add_u32 s50, s50, {STATS}
    v_lshl_add_u32 v{FR+22}, v3, 8, v{FR+21}
    v_lshlrev_b32 v{FR+23}, 2, v2
    v_add_u32 v{FR+23}, {SCL}, v{FR+23}
    v_mov_b32 v{FR+24}, 1
    """)
    spin(C_L, 8, 6, 7)
    e("s_mov_b32 s61, 0")
    g.label("L_st6")
    e(f"""
    s_and_b32 s55, s61, {ssm}
    s_cmp_eq_u32 s55, {ssm}
    s_cselect_b32 s55, 0, s3
    s_add_u32 s55, s55, s50
    buffer_load_dwordx4 v[{A}:{A+3}], v{FR+22}, s[36:39], s55 offen sc1
    s_waitcnt vmcnt(0)
    v_xor_b32 v{A+2}, s98, v{A+2}
    v_xor_b32 v{A+3}, s99, v{A+3}
    v_or_b32 v{A+2}, v{A+2}, v{A+3}
    v_cmp_eq_u32 vcc, 0, v{A+2}
    s_nop 3
    s_cmp_eq_u64 vcc, -1
    s_cbranch_scc1 L_st7
    s_add_u32 s61, s61, 1
    s_cmp_lt_u32 s61, {spin_limit}
    s_cbranch_scc1 L_st6
    """)
    g.label("L_st7")
    stamp(6)
    e(f"v_mov_b32 v{A+4}, v{A}")
    xreduce(A + 4, A + 5, "v_max_f32")
    e(f"""
    v_sub_f32 v{A}, v{A}, v{A+4}
    v_exp_f32 v{A+5}, v{A}
    s_nop 0
    v_mul_f32 v{A}, v{A+5}, v{A+1}
    """)
    xreduce(A, A + 1, "v_add_f32")
    e(f"""
    v_rcp_f32 v{A}, v{A}
    v_cmp_eq_u32 vcc, s43, v3
    v_mul_f32 v{A+5}, v{A+5}, v{A}
    s_nop 3
    s_mov_b64 exec, vcc
    ds_write_b32 v{FR+23}, v{A+5}
    s_mov_b64 exec, -1
    s_waitcnt lgkmcnt(0)
    ds_write_b32 v6, v{FR+24} offset:{F_SCL}
    s_waitcnt lgkmcnt(0)
    """)
    g.label("L_tr")
    e("s_setprio 0\ns_waitcnt vmcnt(0)")
    g.label("L_tr2")
    e("s_mov_b32 s52, 0x05040100\ns_mov_b32 s53, 0x07060302")
    for j in range(4):
        src = WB + 32 * (j + 1); dst = WB + 32 * j
        for jc in range(8):
            for p in range(4):
                a = src + 4 * (2 * p) + (jc >> 1); b = src + 4 * (2 * p + 1) + (jc >> 1)
                e(f"v_perm_b32 v{dst+4*jc+p}, v{b}, v{a}, s{52 + (jc & 1)}")
    FR = WB + 128
    spin(F_N, 1, 6, FR + 26)
    e(f"""
    v_mov_b32 v{FR+28}, {NON}
    v_and_b32 v4, 3, v2
    v_lshlrev_b32 v4, 8, v4
    v_lshl_add_u32 v4, v3, 4, v4
    v_add_u32 v4, {OB}, v4
    ds_read_b64 v[{FR+26}:{FR+27}], v{FR+28}
    v_lshrrev_b32 v{FR+29}, 1, v2
    v_lshlrev_b32 v{FR+29}, 13, v{FR+29}
    v_and_b32 v0, 1, v2
    v_lshl_add_u32 v{FR+29}, v0, 6, v{FR+29}
    v_lshl_add_u32 v{FR+29}, v3, 4, v{FR+29}
    s_lshl_b32 s50, s42, 18
    s_lshl_b32 s51, s48, 16
    s_add_u32 s50, s50, s51
    s_add_u32 s50, s50, s63
    s_add_u32 s96, s50, {MSG2}
    v_and_b32 v0, 1, v3
    v_cmp_eq_u32 s[4:5], 1, v0
    v_cmp_le_u32 s[6:7], 2, v3
    s_mov_b32 s98, {(~TMASK) & 0xffffffff}
    v_lshrrev_b32 v0, 5, v1
    v_and_b32 v{FR+25}, 31, v1
    v_lshlrev_b32 v{FR+24}, 12, v0
    v_lshl_add_u32 v{FR+24}, v{FR+25}, 4, v{FR+24}
    s_lshl_b32 s50, s45, 15
    s_lshl_b32 s51, s43, 13
    s_add_u32 s50, s50, s51
    s_lshl_b32 s51, s48, 9
    s_add_u32 s50, s50, s51
    s_add_u32 s54, s50, {MSG1}
    v_lshlrev_b32 v{FR+25}, 1, v{FR+25}
    v_lshl_add_u32 v{FR+25}, v0, 9, v{FR+25}
    s_lshl_b32 s50, s48, 6
    s_add_u32 s50, s50, {OB}
    v_add_u32 v{FR+25}, s50, v{FR+25}
    s_waitcnt lgkmcnt(0)
    v_readfirstlane_b32 s50, v{FR+26}
    v_readfirstlane_b32 s51, v{FR+27}
    s_nop 3
    """)
    stags(50, 51)
    e("s_bitcmp0_b32 s44, 0\ns_cbranch_scc1 L_nodrain")
    for cnt, val in drain:
        e(f"s_waitcnt vmcnt({cnt})\nv_mov_b32 v5, {val}\nds_write_b32 v7, v5 offset:{PROG}")
    stamp(5)
    e("s_setprio 0")
    g.label("L_nodrain")
    e(f"v_mov_b32 v5, v{FR+29}")
    spin(PROG, 8, 6, FR + 26, sleep=2, two=True)
    e("s_mov_b32 s61, 0")
    stamp(7)
    R = FR
    g.label("L_m1l")
    e(f"""
    s_and_b32 s55, s61, {m1sm}
    s_cmp_eq_u32 s55, {m1sm}
    s_cselect_b32 s55, 0, s3
    s_add_u32 s55, s55, s54
    buffer_load_dwordx4 v[{R}:{R+3}], v{FR+24}, s[36:39], s55 offen sc1
    buffer_load_dwordx4 v[{R+4}:{R+7}], v{FR+24}, s[36:39], s55 offen offset:2048 sc1
    s_waitcnt vmcnt(0)
    """)
    for i in range(8):
        e(f"v_xor_b32 v{R+i}, s{56 + i % 4}, v{R+i}")
    e(f"""
    v_or3_b32 v6, v{R}, v{R+1}, v{R+2}
    v_or3_b32 v6, v6, v{R+3}, v{R+4}
    v_or3_b32 v6, v6, v{R+5}, v{R+6}
    v_or_b32 v6, v6, v{R+7}
    """)
    check(6, "L_m1g", "L_m1l", spin_limit)
    g.label("L_m1g")
    stamp(10)
    e(f"v_pk_add_f32 v[{R}:{R+1}], v[{R}:{R+1}], v[{R+4}:{R+5}]\nv_pk_add_f32 v[{R+2}:{R+3}], v[{R+2}:{R+3}], v[{R+6}:{R+7}]")
    xsum4(R, R + 4, sws=("v_permlane32_swap_b32",))
    e(f"""
    v_cvt_pk_bf16_f32 v{R+8}, v{R}, v{R+1}
    v_cvt_pk_bf16_f32 v{R+9}, v{R+2}, v{R+3}
    s_nop 0
    v_cndmask_b32 v{R+8}, v{R+8}, v{R+9}, s[6:7]
    ds_write_b16 v{FR+25}, v{R+8}
    ds_write_b16_d16_hi v{FR+25}, v{R+8} offset:256
    s_waitcnt lgkmcnt(0)
    s_barrier
    """)
    stamp(8)
    AF = FR; OA0 = FR + 16
    for j in range(4):
        e(f"ds_read_b128 v[{AF+4*j}:{AF+4*j+3}], v4 offset:{64*j}")
    OA1 = WB + 32
    def epi(OA, t0, h):
        L = []
        for r in range(4):
            L.append(f"v_cndmask_b32 v{t0+r}, v{OA+r}, v{OA+4+r}, s[4:5]")
            L.append(f"v_cndmask_b32 v{t0+4+r}, v{OA+8+r}, v{OA+12+r}, s[4:5]")
        for r in range(4):
            L.append(f"v_cndmask_b32 v{t0+r}, v{t0+r}, v{t0+4+r}, s[6:7]")
        for r in range(4):
            L.append(f"v_and_b32 v{t0+r}, s98, v{t0+r}"); L.append(f"v_or_b32 v{t0+r}, s{56+r}, v{t0+r}")
        L.append(f"buffer_store_dwordx4 v[{t0}:{t0+3}], v5, s[36:39], s96 offen offset:{128*h} sc1")
        return L
    for j in range(4):
        e(f"s_waitcnt lgkmcnt({3-j})")
        for q in range(4):
            c = "0" if j == 0 else f"v[{OA0+4*q}:{OA0+4*q+3}]"
            b = WB + 32 * j + 4 * q
            e(f"v_mfma_f32_16x16x32_bf16 v[{OA0+4*q}:{OA0+4*q+3}], v[{AF+4*j}:{AF+4*j+3}], v[{b}:{b+3}], {c}")
    ep0 = epi(OA0, WB, 0)
    n = 0
    for j in range(4):
        for q in range(4):
            c = "0" if j == 0 else f"v[{OA1+4*q}:{OA1+4*q+3}]"
            b = WB + 32 * j + 4 * (4 + q)
            e(f"v_mfma_f32_16x16x32_bf16 v[{OA1+4*q}:{OA1+4*q+3}], v[{AF+4*j}:{AF+4*j+3}], v[{b}:{b+3}], {c}")
            n += 1
            if n >= 8:
                for _ in range(3):
                    if ep0: e(ep0.pop(0))
    while ep0: e(ep0.pop(0))
    g.nop(8)
    for ln in epi(OA1, WB + 8, 1): e(ln)
    stamp(9)
    if ackwait: e("s_waitcnt vmcnt(0)")
    if wb:
        e(f"s_and_b32 s50, s41, {wb - 1}\ns_lshl_b32 s50, s50, 4\ns_add_u32 s50, s50, s44\ns_cmp_lg_u32 s50, 10\ns_cbranch_scc1 L_nowb\nbuffer_wbl2 sc1")
        g.label("L_nowb")
    e(f"v_mov_b32 v6, {SYN}\nv_mov_b32 v7, 1\ns_mov_b64 exec, 1\nds_add_u32 v6, v7 offset:{C_M2}\ns_mov_b64 exec, -1")
    stamp_store()

    hdr = f"""; Fused GQA decode block (q-proj -> split-KV attention -> out-proj) in ONE launch, 256 workgroups x 12 waves.
; @launch grid=(256,1,1) block=({64*NW},1,1) lds={LDS_TOTAL}
.amdgcn_target "amdgcn-amd-amdhsa--gfx950"
.text
.globl {KNAME}
.p2align 8
.type {KNAME},@function
{KNAME}:
"""
    ftr = f"""L_done:
    s_endpgm
.section .rodata,"a"
.p2align 6
.amdhsa_kernel {KNAME}
  .amdhsa_next_free_vgpr 168
  .amdhsa_next_free_sgpr 102
  .amdhsa_accum_offset 168
  .amdhsa_group_segment_fixed_size 0
  .amdhsa_kernarg_size 64
  .amdhsa_user_sgpr_count 2
  .amdhsa_user_sgpr_kernarg_segment_ptr 1
  .amdhsa_system_sgpr_workgroup_id_x 1
  .amdhsa_float_denorm_mode_32 3
.end_amdhsa_kernel
"""
    body = "\n".join(l for l in g.text().split("\n") if l.strip()) + "\n"
    return hdr + body + ftr

if __name__ == "__main__":
    open("g37.s", "w").write(gen())
    open("g37_st.s", "w").write(gen(stamps=True))
    open("g37_wb32.s", "w").write(gen(wb=32))
    open("g37_wb8.s", "w").write(gen(wb=8))
    open("g37_wb1.s", "w").write(gen(wb=1))
```

```python
import sys
from gen1 import G, KNAME

STATS = 0x80000
TOK = 0xA0000
MSG1 = 0x100000
MSG2 = 0x300000
QWS = 0x600000
DBGA = 0x800000
FAST = 0x1000000
AUX1 = 131072
AUX2 = 147456
MX = AUX2
LS = AUX2 + 512
SCL = AUX2 + 1024
NON = AUX2 + 1536
SYN = AUX2 + 1600
PROG = 0
C_PART, F_PD, F_Q, C_M, C_L, F_N, F_SCL = [8 + 4 * i for i in range(7)]
C_KR = 40
C_M2 = 56
F_QC = 60
OB = AUX2 + 2048
QL = AUX2 + 4096
RED = AUX2 + 8192
LDS_TOTAL = 163840
TAGB = 11
TMASK = (1 << TAGB) - 1
NW = 12

def gen(stamps=False, spin_limit=20000, THW=8, WS=(32, 32, 20, 18, 16, 14, 12, 10), wo_start=1, wopol="", wqpol="", xpol="",
        kvpol="nt", ldprio=3, ld_early=0, forceslow=False, probe=False, qsm=15, ssm=15, m1sm=31, prest=False, overlay=True, pend=False, ackwait=True, m2sleep=0, nwait=0, wb=0, cas=False, snonce=0):
    g = G()
    e = g.e
    nst = [0]
    def stamp(idx=None):
        if not stamps: return
        i = nst[0] if idx is None else idx
        if idx is None: nst[0] += 1
        assert i < 14
        e(f"s_memrealtime s[100:101]\ns_waitcnt lgkmcnt(0)\ns_mov_b32 s{80+i}, s100")
    def stamp_store():
        if not stamps: return
        e(f"s_mul_i32 s50, s2, {NW}\ns_add_u32 s50, s50, s44\ns_lshl_b32 s50, s50, 6\ns_add_u32 s50, s50, {DBGA}\nv_mov_b32 v24, 0\ns_mov_b64 exec, 1")
        for i in range(0, 16, 4):
            for k in range(4): e(f"v_mov_b32 v{28+k}, s{80+i+k}")
            e(f"buffer_store_dwordx4 v[28:31], v24, s[36:39], s50 offen offset:{4*i}\ns_nop 1")
    def xreduce(r, tmp, op):
        for sw in ("v_permlane32_swap_b32", "v_permlane16_swap_b32"):
            e(f"v_mov_b32 v{tmp}, v{r}\ns_nop 1\n{sw} v{r}, v{tmp}\ns_nop 0\n{op} v{r}, v{r}, v{tmp}")
    def xsum4(a, t, sws=("v_permlane32_swap_b32", "v_permlane16_swap_b32")):
        for sw in sws:
            for i in range(4): e(f"v_mov_b32 v{t+i}, v{a+i}")
            e("s_nop 0")
            for i in range(4): e(f"{sw} v{a+i}, v{t+i}")
            e("s_nop 0")
            e(f"v_pk_add_f32 v[{a}:{a+1}], v[{a}:{a+1}], v[{t}:{t+1}]\nv_pk_add_f32 v[{a+2}:{a+3}], v[{a+2}:{a+3}], v[{t+2}:{t+3}]")
    def spin(word, val, vsyn, vtmp, sleep=1, two=False):
        l1, l2 = g.newlabel("Lsp"), g.newlabel("Lspd")
        e("s_mov_b32 s61, 0")
        g.label(l1)
        if two:
            e(f"ds_read_b64 v[{vtmp}:{vtmp+1}], v{vsyn} offset:{word}\ns_waitcnt lgkmcnt(0)\nv_min_u32 v{vtmp}, v{vtmp}, v{vtmp+1}\ns_nop 0")
        else:
            e(f"ds_read_b32 v{vtmp}, v{vsyn} offset:{word}\ns_waitcnt lgkmcnt(0)")
        e(f"""
        v_readfirstlane_b32 s60, v{vtmp}
        s_nop 3
        s_cmp_ge_u32 s60, {val}
        s_cbranch_scc1 {l2}
        {f's_sleep {sleep}' if sleep else ''}
        s_add_u32 s61, s61, 1
        s_cmp_lt_u32 s61, {spin_limit * 20}
        s_cbranch_scc1 {l1}
        """)
        g.label(l2)
    def arrive(word, vsyn, vone):
        e(f"s_waitcnt lgkmcnt(0)\ns_mov_b64 exec, 1\nds_add_u32 v{vsyn}, v{vone} offset:{word}\ns_mov_b64 exec, -1")
    def srd(d, p, size):
        e(f"s_mov_b32 s{d}, s{p}\ns_mov_b32 s{d+1}, s{p+1}\ns_mov_b32 s{d+2}, {size}\ns_mov_b32 s{d+3}, 0x00020000")
    def stags(lo, hi):
        e(f"""
        s_and_b32 s56, s{lo}, {TMASK}
        s_bfe_u32 s57, s{lo}, {TAGB | (TAGB << 16)}
        s_lshr_b64 s[58:59], s[{lo}:{hi}], {2*TAGB}
        s_and_b32 s58, s58, {TMASK}
        s_bfe_u32 s59, s{hi}, {(3*TAGB-32) | (TAGB << 16)}
        """)
    def check(vreg, lok, lloop, lim, slp=0):
        e(f"""
        v_and_b32 v{vreg}, {TMASK}, v{vreg}
        v_cmp_eq_u32 vcc, 0, v{vreg}
        s_nop 3
        s_cmp_eq_u64 vcc, -1
        s_cbranch_scc1 {lok}
        {f's_sleep {slp}' if slp else ''}
        s_add_u32 s61, s61, 1
        s_cmp_lt_u32 s61, {lim}
        s_cbranch_scc1 {lloop}
        """)
    WB = 8
    def wo_issue(i, tagp):
        j, ee = i // 8, i % 8
        r = WB + 32 * (j + 1) + 4 * ee
        off = (32 * j + ee) * 1024
        e(f"s_add_u32 s50, s97, {off & ~4095}")
        g.vm(f"buffer_load_dwordx4 v[{r}:{r+3}], v4, s[24:27], s50 offen offset:{off & 4095} {wopol}", f"{tagp}{i}")
    e(f"""
    s_cmp_ge_u32 s2, 256
    s_cbranch_scc1 L_done
    s_load_dwordx16 s[64:79], s[0:1], 0
    s_memrealtime s[98:99]
    v_and_b32 v1, 63, v0
    v_lshrrev_b32 v4, 6, v0
    v_and_b32 v2, 15, v0
    v_bfe_u32 v3, v0, 4, 2
    v_readfirstlane_b32 s44, v4
    s_and_b32 s40, s2, 7
    s_lshr_b32 s41, s2, 3
    s_lshr_b32 s42, s41, 2
    s_and_b32 s43, s41, 3
    s_lshl_b32 s45, s42, 3
    s_add_u32 s45, s45, s40
    s_lshl_b32 s51, s40, 2
    s_add_u32 s51, s51, s43
    s_lshl_b32 s63, s51, 8
    s_mov_b32 s3, {FAST}
    v_mov_b32 v6, {SYN}
    s_cmp_lt_u32 s44, 8
    s_cbranch_scc1 L_cw
    s_sub_u32 s48, s44, 8
    v_lshlrev_b32 v4, 13, v3
    v_lshl_add_u32 v4, v2, 4, v4
    s_lshl_b32 s97, s63, 9
    s_lshl_b32 s50, s48, 8
    s_add_u32 s97, s97, s50
    s_bitcmp0_b32 s44, 0
    s_cbranch_scc1 L_op
    """)
    e(f"""
    s_setprio {ldprio}
    s_lshr_b32 s49, s48, 1
    s_lshl_b32 s46, s45, 2
    s_add_u32 s46, s46, s43
    s_lshl_b32 s46, s46, 17
    s_lshl_b32 s47, s49, 16
    s_add_u32 s46, s46, s47
    s_lshl_b32 s50, s49, 2
    v_add_u32 v7, s50, v6
    s_add_u32 s94, s41, s40
    v_xor_b32 v8, v2, v3
    v_lshlrev_b32 v8, 4, v8
    v_lshl_add_u32 v8, v3, 8, v8
    v_lshlrev_b32 v12, 1, v3
    v_xor_b32 v12, v2, v12
    v_lshlrev_b32 v12, 4, v12
    v_lshl_add_u32 v12, v3, 8, v12
    v_xor_b32 v9, 64, v8
    v_xor_b32 v10, 0x80, v8
    v_xor_b32 v11, 0xc0, v8
    v_xor_b32 v13, 0x80, v12
    s_add_u32 s95, s42, s49
    """)
    for x in range(4):
        e(f"s_add_u32 s50, s94, {x}\ns_and_b32 s50, s50, 3\ns_lshl_b32 s50, s50, 12\ns_add_u32 s{52+x}, s50, s46")
        e(f"s_add_u32 s50, s95, {x}\ns_and_b32 s50, s50, 3\ns_lshl_b32 s{56+x}, s50, 10")
    e("s_waitcnt lgkmcnt(0)")
    srd(12, 66, 0x2000000); srd(16, 68, 0x2000000); srd(24, 72, 0x400000); srd(36, 78, 0x10000000)
    stamp(0)
    if not ld_early: e("s_barrier")
    kv = []; woi = [0]; sig = [0]; known = [0]
    for ph in range(2):
        for t in range(4):
            if ph == 0 and t == 3: spin(F_PD, 1, 6, 15)
            if ph == 1: spin(C_KR + 4 * t, 8, 6, 15)
            for k in range(4):
                for u in range(4):
                    n = len(kv)
                    if ld_early and n == ld_early: e("s_barrier")
                    Wc = WS[n // 16]
                    if n >= Wc and n - Wc + 1 > known[0]:
                        g.wait(kv[n - Wc]); known[0] = n - Wc + 1
                    e(f"s_add_u32 m0, s47, {16384*u + 4096*t + 1024*k}\ns_add_u32 s50, s{52 + (t+u)%4}, s{56 + (k+u)%4}\ns_add_u32 s50, s50, {16384*u}")
                    if ph == 0:
                        g.vm(f"buffer_load_dwordx4 v{8+k}, s[12:15], s50 offen {kvpol} lds", f"kv{n}")
                    else:
                        g.vm(f"buffer_load_dwordx4 v{12+(k&1)}, s[16:19], s50 offen {kvpol} lds", f"kv{n}")
                    kv.append(f"kv{n}")
                    while sig[0] < 8 and known[0] >= 16 * (sig[0] + 1):
                        sig[0] += 1
                        e(f"v_mov_b32 v14, {sig[0]}\nds_write_b32 v7, v14 offset:{PROG}")
                    gi = ph * 4 + t
                    if gi >= wo_start and woi[0] < 32 and (n % (3 if wo_start <= 1 else 2) == 0 or gi >= 6):
                        wo_issue(woi[0], "wl"); woi[0] += 1
    assert woi[0] == 32, woi[0]
    stamp(4)
    g.wait("wl31")
    e("s_branch L_tr2")
    drain = []
    while sig[0] < 8:
        drain.append((g.nvm - g.pos[kv[16 * (sig[0] + 1) - 1]], sig[0] + 1))
        sig[0] += 1

    g.label("L_cw")
    e(f"""
    s_lshl_b32 s47, s44, 14
    s_and_b32 s52, s43, 1
    s_lshr_b32 s53, s43, 1
    s_lshl_b32 s46, s52, 2
    s_add_u32 s46, s46, s44
    s_and_b32 s46, s46, 7
    s_lshl_b32 s50, s53, 3
    s_add_u32 s46, s46, s50
    v_lshrrev_b32 v14, 2, v1
    v_and_b32 v15, 3, v1
    v_lshlrev_b32 v15, 4, v15
    v_lshl_add_u32 v16, v14, 10, v15
    v_lshl_add_u32 v14, v14, 13, v15
    s_lshl_b32 s50, s46, 18
    s_lshl_b32 s51, s40, 10
    s_add_u32 s50, s50, s51
    s_lshl_b32 s51, s42, 7
    s_add_u32 s50, s50, s51
    s_lshl_b32 s51, s52, 6
    s_add_u32 s50, s50, s51
    s_lshl_b32 s51, s44, 11
    s_add_u32 s62, s51, {AUX1}
    s_lshl_b32 s51, s46, 6
    s_waitcnt lgkmcnt(0)
    """)
    srd(20, 70, 0x400000); srd(8, 64, 32768)
    stamp()
    e(f"""
    s_mov_b32 m0, s62
    s_add_u32 s54, s50, 0x20000
    buffer_load_dwordx4 v14, s[20:23], s50 offen {wqpol} lds
    s_add_u32 m0, s62, 1024
    s_add_u32 s55, s51, 16384
    buffer_load_dwordx4 v14, s[20:23], s54 offen {wqpol} lds
    s_add_u32 m0, s47, 12288
    s_nop 0
    buffer_load_dwordx4 v16, s[8:11], s51 offen {xpol} lds
    s_add_u32 m0, s47, 13312
    s_nop 0
    buffer_load_dwordx4 v16, s[8:11], s55 offen {xpol} lds
    s_barrier
    """)
    srd(28, 74, 32768); srd(36, 78, 0x10000000)
    e(f"""
    v_lshrrev_b32 v24, 2, v2
    v_lshl_add_u32 v24, v3, 3, v24
    v_lshlrev_b32 v24, 6, v24
    v_and_b32 v25, 3, v1
    v_lshl_add_u32 v24, v25, 3, v24
    v_add_u32 v24, s62, v24
    v_lshlrev_b32 v25, 6, v2
    v_lshl_add_u32 v25, v3, 4, v25
    v_add_u32 v25, s47, v25
    v_lshlrev_b32 v27, 4, v1
    v_add_u32 v27, s47, v27
    v_mov_b32 v20, {SYN}
    v_mov_b32 v21, 1
    s_lshr_b32 s50, s44, 2
    s_lshl_b32 s50, s50, 2
    v_add_u32 v19, s50, v20
    v_lshlrev_b32 v16, 13, v3
    v_lshl_add_u32 v16, v2, 4, v16
    s_lshl_b32 s50, s45, 15
    s_lshl_b32 s51, s43, 11
    s_add_u32 s50, s50, s51
    s_lshl_b32 s51, s44, 8
    s_add_u32 s50, s50, s51
    s_add_u32 s50, s50, {MSG1}
    v_add_u32 v16, s50, v16
    v_lshlrev_b32 v17, 8, v2
    v_lshl_add_u32 v17, v3, 4, v17
    v_add_u32 v17, {QL}, v17
    v_mov_b32 v18, {NON}
    v_xor_b32 v12, v2, v3
    v_lshlrev_b32 v12, 4, v12
    v_lshlrev_b32 v13, 8, v2
    v_add_u32 v13, s47, v13
    v_add_u32 v28, v13, v12
    v_xor_b32 v29, 64, v12
    v_add_u32 v29, v13, v29
    v_xor_b32 v30, 0x80, v12
    v_add_u32 v30, v13, v30
    v_xor_b32 v31, 0xc0, v12
    v_add_u32 v31, v13, v31
    v_mov_b32 v160, 0
    v_mov_b32 v161, 0
    v_mov_b32 v162, 0
    v_mov_b32 v163, 0
    s_waitcnt vmcnt(0)
    """)
    if prest: e("buffer_store_dwordx4 v[160:163], v16, s[36:39], s3 offen")
    stamp()
    XF = 96; WF = 104; QA = 112
    for ct in range(2):
        e(f"ds_read_b64_tr_b16 v[{WF+4*ct}:{WF+4*ct+1}], v24 offset:{32*ct}")
        e(f"ds_read_b64_tr_b16 v[{WF+4*ct+2}:{WF+4*ct+3}], v24 offset:{32*ct+256}")
    for rt in range(2):
        e(f"ds_read_b128 v[{XF+4*rt}:{XF+4*rt+3}], v25 offset:{12288 + 1024*rt}")
    e("s_waitcnt lgkmcnt(0)")
    for ct in range(2):
        for rt in range(2):
            q = QA + 4 * (2 * ct + rt)
            e(f"v_mfma_f32_16x16x32_bf16 v[{q}:{q+3}], v[{WF+4*ct}:{WF+4*ct+3}], v[{XF+4*rt}:{XF+4*rt+3}], 0")
    g.nop(8)
    for i in range(4):
        e(f"ds_write_b128 v27, v[{QA+4*i}:{QA+4*i+3}] offset:{12288 + 1024*i}")
    arrive(C_PART, 20, 21)
    stamp()
    KF = 32
    for t in range(4):
        spin(PROG, t + 1, 19, 22, sleep=2)
        for j in range(4):
            r = KF + 16 * t + 4 * j
            e(f"ds_read_b128 v[{r}:{r+3}], v{28+j} offset:{4096*t}")
        arrive(C_KR + 4 * t, 20, 21)
    stamp()
    spin(F_Q, 1, 20, 22, sleep=2)
    e("s_mov_b32 s94, s60")
    stamp()
    QF = 96; SA = 112; T = 128
    for j in range(4):
        e(f"ds_read_b128 v[{QF+4*j}:{QF+4*j+3}], v17 offset:{64*j}")
    e("ds_read_b64 v[22:23], v18")
    for j in range(4):
        e(f"s_waitcnt lgkmcnt({4-j})")
        for t in range(4):
            r = KF + 16 * t + 4 * j
            c = "0" if j == 0 else f"v[{SA+4*t}:{SA+4*t+3}]"
            e(f"v_mfma_f32_16x16x32_bf16 v[{SA+4*t}:{SA+4*t+3}], v[{r}:{r+3}], v[{QF+4*j}:{QF+4*j+3}], {c}")
    e(f"""
    s_waitcnt lgkmcnt(0)
    v_and_b32 v4, {TMASK}, v22
    v_bfe_u32 v5, v22, {TAGB}, {TAGB}
    v_alignbit_b32 v6, v23, v22, {2*TAGB}
    v_and_b32 v6, {TMASK}, v6
    v_bfe_u32 v7, v23, {3*TAGB-32}, {TAGB}
    s_mov_b32 s50, 0x3db504f3
    s_mov_b32 s51, 0xffff0000
    s_mov_b32 s99, 0x3fb8aa3b
    s_nop 1
    """)
    for p in range(8):
        a = SA + 2 * p
        e(f"""
        v_cvt_pk_bf16_f32 v{T}, v{a}, v{a+1}
        v_lshlrev_b32 v{a}, 16, v{T}
        v_and_b32 v{a+1}, s51, v{T}
        v_mul_f32 v{a}, s50, v{a}
        v_mul_f32 v{a+1}, s50, v{a+1}
        v_cvt_pk_bf16_f32 v{T}, v{a}, v{a+1}
        v_lshlrev_b32 v{a}, 16, v{T}
        v_and_b32 v{a+1}, s51, v{T}
        """)
    e(f"v_max3_f32 v{T}, v{SA}, v{SA+1}, v{SA+2}")
    for i in range(3, 15, 2):
        e(f"v_max3_f32 v{T}, v{T}, v{SA+i}, v{SA+i+1}")
    e(f"v_max_f32 v{T}, v{T}, v{SA+15}")
    xreduce(T, T + 1, "v_max_f32")
    e(f"""
    v_lshlrev_b32 v12, 5, v2
    v_add_u32 v12, {MX}, v12
    s_lshl_b32 s50, s44, 2
    v_add_u32 v13, s50, v12
    ds_write_b32 v13, v{T}
    """)
    arrive(C_M, 20, 21)
    spin(C_M, 8, 20, 22)
    e(f"ds_read_b128 v[{T+4}:{T+7}], v12\nds_read_b128 v[{T+8}:{T+11}], v12 offset:16\ns_waitcnt lgkmcnt(0)")
    e(f"""
    v_max3_f32 v{T}, v{T+4}, v{T+5}, v{T+6}
    v_max3_f32 v{T}, v{T}, v{T+7}, v{T+8}
    v_max3_f32 v{T}, v{T}, v{T+9}, v{T+10}
    v_max_f32 v{T}, v{T}, v{T+11}
    v_mul_f32 v23, s99, v{T}
    """)
    for i in range(16):
        e(f"v_fma_f32 v{SA+i}, v{SA+i}, s99, -v23")
    for i in range(16):
        e(f"v_exp_f32 v{SA+i}, v{SA+i}")
    e("s_nop 0")
    e(f"v_lshlrev_b32 v14, 3, v1\nv_add_u32 v14, s62, v14")
    for t in range(4):
        a = SA + 4 * t
        e(f"v_cvt_pk_bf16_f32 v{T+2*t}, v{a}, v{a+1}\nv_cvt_pk_bf16_f32 v{T+2*t+1}, v{a+2}, v{a+3}")
        e(f"ds_write_b64 v14, v[{T+2*t}:{T+2*t+1}] offset:{512*t}")
    for st in (8, 4, 2):
        for i in range(0, st, 2):
            a = SA + i; b = SA + i + st
            e(f"v_pk_add_f32 v[{a}:{a+1}], v[{a}:{a+1}], v[{b}:{b+1}]")
    e(f"v_add_f32 v{SA}, v{SA}, v{SA+1}")
    xreduce(SA, SA + 1, "v_add_f32")
    e(f"ds_write_b32 v13, v{SA} offset:512")
    arrive(C_L, 20, 21)
    PF = 32; BF = 112; PVA = 160; SC = 164
    e(f"""
    v_lshrrev_b32 v24, 2, v2
    v_lshl_add_u32 v24, v3, 2, v24
    v_and_b32 v25, 7, v24
    v_lshlrev_b32 v25, 1, v25
    v_bfe_u32 v27, v1, 1, 1
    s_lshl_b32 s50, s44, 1
    v_add_u32 v27, s50, v27
    v_xor_b32 v25, v25, v27
    v_lshlrev_b32 v25, 4, v25
    v_lshl_add_u32 v25, v24, 8, v25
    v_and_b32 v27, 1, v1
    v_lshl_add_u32 v25, v27, 3, v25
    v_add_u32 v26, 0x10000, v25
    v_lshlrev_b32 v27, 3, v1
    v_add_u32 v27, {AUX1}, v27
    v_and_b32 v30, 1, v3
    v_lshlrev_b32 v30, 4, v30
    v_cmp_le_u32 s[6:7], 2, v3
    v_lshlrev_b32 v19, 4, v3
    v_add_u32 v19, {SCL}, v19
    s_mov_b32 s98, {(~TMASK) & 0xffffffff}
    """)
    spin(C_L, 8, 20, 22)
    stamp()
    lnp = g.newlabel("Lnp")
    A = 128
    e(f"""
    s_cmp_lg_u32 s44, 1
    s_cbranch_scc1 {lnp}
    ds_read_b128 v[{A+8}:{A+11}], v12 offset:512
    ds_read_b128 v[{A+12}:{A+15}], v12 offset:528
    ds_read_b64 v[{A+18}:{A+19}], v18
    v_lshlrev_b32 v{A+21}, 4, v2
    s_lshl_b32 s50, s45, 10
    s_add_u32 s50, s50, {STATS}
    s_lshl_b32 s51, s43, 8
    s_add_u32 s51, s51, s50
    v_mov_b32 v{A+16}, v23
    s_waitcnt lgkmcnt(0)
    v_pk_add_f32 v[{A+8}:{A+9}], v[{A+8}:{A+9}], v[{A+10}:{A+11}]
    v_pk_add_f32 v[{A+12}:{A+13}], v[{A+12}:{A+13}], v[{A+14}:{A+15}]
    v_pk_add_f32 v[{A+8}:{A+9}], v[{A+8}:{A+9}], v[{A+12}:{A+13}]
    v_add_f32 v{A+17}, v{A+8}, v{A+9}
    s_mov_b64 exec, 0xffff
    s_add_u32 s55, s51, s3
    buffer_store_dwordx4 v[{A+16}:{A+19}], v{A+21}, s[36:39], s55 offen
    s_cmp_eq_u32 s94, 2
    s_cbranch_scc1 L_std
    buffer_store_dwordx4 v[{A+16}:{A+19}], v{A+21}, s[36:39], s51 offen sc1
    """)
    g.label("L_std")
    e("s_mov_b64 exec, -1")
    g.label(lnp)
    for k in range(4):
        for i in range(4):
            r = PF + 16 * k + 4 * i
            e(f"ds_read2st64_b64 v[{r}:{r+3}], v27 offset0:{8*i+k} offset1:{8*i+4+k}")
        if k == 1: e("s_waitcnt lgkmcnt(0)")
    first = [True]
    def pv_phase(k):
        for i in range(4):
            for hf in range(2):
                u = 2 * i + hf
                r = BF + 4 * i + 2 * hf
                e(f"ds_read_b64_tr_b16 v[{r}:{r+1}], v{25 if u < 4 else 26} offset:{(u % 4) * 16384 + 4096 * k}")
        for i in range(4):
            e(f"s_waitcnt lgkmcnt({6 - 2*i})")
            c = "0" if first[0] else f"v[{PVA}:{PVA+3}]"
            first[0] = False
            e(f"v_mfma_f32_16x16x32_bf16 v[{PVA}:{PVA+3}], v[{PF+16*k+4*i}:{PF+16*k+4*i+3}], v[{BF+4*i}:{BF+4*i+3}], {c}")
    for k in range(3):
        spin(PROG, 5 + k, 20, 22, sleep=2, two=True)
        pv_phase(k)
    stamp()
    spin(F_QC, 1, 20, 22, sleep=1)
    stamp()
    spin(PROG, 8, 20, 22, sleep=0, two=True)
    stamp()
    pv_phase(3)
    g.nop(8)
    for i in range(4):
        e(f"v_and_or_b32 v{PVA+i}, v{PVA+i}, s98, v{4+i}")
    lsd = g.newlabel("Lsd")
    e(f"""
    buffer_store_dwordx4 v[{PVA}:{PVA+3}], v16, s[36:39], s3 offen
    s_cmp_eq_u32 s94, 2
    s_cbranch_scc1 {lsd}
    buffer_store_dwordx4 v[{PVA}:{PVA+3}], v16, s[36:39], 0 offen sc1
    """)
    g.label(lsd)
    stamp()
    nst[0] = 12
    lend = g.newlabel("Lend")
    e(f"s_cmp_lg_u32 s44, 0\ns_cbranch_scc1 {lend}")
    e(f"""
    v_lshlrev_b32 v24, 4, v1
    s_lshl_b32 s50, s42, 18
    s_lshl_b32 s51, s63, 5
    s_add_u32 s50, s50, s51
    s_add_u32 s50, s50, {MSG2}
    s_add_u32 s51, s50, 4096
    v_lshlrev_b32 v25, 10, v3
    v_and_b32 v26, 3, v2
    v_lshl_add_u32 v25, v26, 1, v25
    v_bfe_u32 v26, v2, 2, 1
    v_lshl_add_u32 v25, v26, 4, v25
    v_lshrrev_b32 v26, 3, v2
    v_lshl_add_u32 v25, v26, 3, v25
    s_lshl_b32 s96, s42, 12
    s_lshr_b32 s97, s63, 3
    s_add_u32 s96, s96, s97
    s_barrier
    """)
    spin(C_M2, 4, 20, 22, sleep=1)
    e("s_mov_b32 s61, 0")
    if pend:
        ll, lg = g.newlabel("Lm2l"), g.newlabel("Lm2g")
        FB = 32; RB = 64
        e("s_mov_b32 s52, 0xff")
        g.label(ll)
        for i in range(8):
            lk = g.newlabel("Lp")
            e(f"s_bitcmp0_b32 s52, {i}\ns_cbranch_scc1 {lk}\nbuffer_load_dwordx4 v[{RB+4*i}:{RB+4*i+3}], v24, s[36:39], s{50 + i // 4} offen offset:{(i % 4) * 1024} sc1")
            g.label(lk)
        e("s_waitcnt vmcnt(0)")
        for i in range(8):
            lk = g.newlabel("Lp")
            e(f"""
            s_bitcmp0_b32 s52, {i}
            s_cbranch_scc1 {lk}
            v_xor_b32 v{FB+4*i}, v{RB+4*i}, v4
            v_xor_b32 v{FB+4*i+1}, v{RB+4*i+1}, v5
            v_xor_b32 v{FB+4*i+2}, v{RB+4*i+2}, v6
            v_xor_b32 v{FB+4*i+3}, v{RB+4*i+3}, v7
            v_or3_b32 v28, v{FB+4*i}, v{FB+4*i+1}, v{FB+4*i+2}
            v_or_b32 v28, v28, v{FB+4*i+3}
            v_and_b32 v28, {TMASK}, v28
            v_cmp_eq_u32 vcc, 0, v28
            s_nop 3
            s_cmp_eq_u64 vcc, -1
            s_cbranch_scc0 {lk}
            s_bitset0_b32 s52, {i}
            """)
            g.label(lk)
        e(f"""
        s_cmp_eq_u32 s52, 0
        s_cbranch_scc1 {lg}
        s_add_u32 s61, s61, 1
        s_cmp_lt_u32 s61, {spin_limit}
        s_cbranch_scc1 {ll}
        """)
    else:
        ll, lg = g.newlabel("Lm2l"), g.newlabel("Lm2g")
        g.label(ll)
        FB = 32
        for i in range(8):
            e(f"buffer_load_dwordx4 v[{FB+4*i}:{FB+4*i+3}], v24, s[36:39], s{50 + i // 4} offen offset:{(i % 4) * 1024} sc1")
        e("s_waitcnt vmcnt(0)")
        for i in range(32):
            e(f"v_xor_b32 v{FB+i}, v{FB+i}, v{4 + i % 4}")
        e(f"v_or3_b32 v28, v{FB}, v{FB+1}, v{FB+2}")
        for i in range(3, 31, 2):
            e(f"v_or3_b32 v28, v28, v{FB+i}, v{FB+i+1}")
        e(f"v_or_b32 v28, v28, v{FB+31}")
        check(28, lg, ll, spin_limit, m2sleep)
    g.label(lg)
    stamp()
    for st in (4, 2, 1):
        for w in range(st):
            a = FB + 4 * w; b = FB + 4 * (w + st)
            e(f"v_pk_add_f32 v[{a}:{a+1}], v[{a}:{a+1}], v[{b}:{b+1}]\nv_pk_add_f32 v[{a+2}:{a+3}], v[{a+2}:{a+3}], v[{b+2}:{b+3}]")
    xsum4(FB, FB + 4)
    e(f"""
    v_cvt_pk_bf16_f32 v28, v{FB}, v{FB+1}
    v_cvt_pk_bf16_f32 v29, v{FB+2}, v{FB+3}
    s_nop 0
    v_cndmask_b32 v28, v28, v29, s[6:7]
    v_lshrrev_b32 v28, v30, v28
    buffer_store_short v28, v25, s[28:31], s96 offen
    """)
    g.label(lend)
    stamp()
    stamp_store()
    e("s_endpgm")

    g.label("L_op")
    e(f"""
    s_setprio 3
    v_mov_b32 v5, 0
    v_mov_b32 v21, 1
    v_mov_b32 v17, {NON}
    v_lshlrev_b32 v24, 4, v1
    v_mov_b32 v27, 0
    s_mov_b32 s46, {QWS}
    s_mov_b32 s47, {QWS}
    s_waitcnt lgkmcnt(0)
    """)
    srd(36, 78, 0x10000000); srd(24, 72, 0x400000)
    stamp(0)
    e("s_cmp_lg_u32 s44, 8\ns_cbranch_scc1 L_w10")
    e(f"""
    v_lshlrev_b32 v7, 2, v2
    v_add_u32 v7, {SYN}, v7
    ds_write_b32 v7, v5
    s_lshl_b32 s50, s45, 15
    s_lshl_b32 s51, s43, 12
    s_add_u32 s50, s50, s51
    s_add_u32 s50, s50, {MSG1 + FAST}
    s_add_u32 s51, s50, 16384
    """)
    if not overlay:
        e(f"s_lshl_b32 s52, s45, 14\ns_lshl_b32 s53, s43, 12\ns_add_u32 s52, s52, s53\ns_add_u32 s52, s52, {QWS + FAST}")
        for i in range(4): e(f"buffer_load_dwordx4 v[32:35], v24, s[36:39], s52 offen offset:{i * 1024} sc1")
    for i in range(4): e(f"buffer_load_dwordx4 v[32:35], v24, s[36:39], s50 offen offset:{i * 1024} sc1")
    e("s_waitcnt lgkmcnt(0)\ns_barrier")
    for i in range(4): e(f"buffer_load_dwordx4 v[32:35], v24, s[36:39], s51 offen offset:{i * 1024} sc1")
    e(f"""
    v_add_u32 v26, 12288, v24
    v_add_u32 v25, 0x10000, v26
    v_lshrrev_b32 v27, 2, v2
    v_lshlrev_b32 v27, 17, v27
    v_and_b32 v28, 3, v2
    v_lshl_add_u32 v27, v28, 9, v27
    v_lshl_add_u32 v27, v3, 4, v27
    s_lshl_b32 s52, s40, 14
    s_lshr_b32 s53, s43, 1
    s_lshl_b32 s53, s53, 13
    s_add_u32 s52, s52, s53
    s_lshr_b32 s53, s42, 1
    s_lshl_b32 s53, s53, 11
    s_add_u32 s52, s52, s53
    s_and_b32 s53, s42, 1
    s_lshl_b32 s53, s53, 8
    s_add_u32 s52, s52, s53
    s_and_b32 s53, s43, 1
    s_lshl_b32 s53, s53, 7
    s_add_u32 s52, s52, s53
    s_lshl_b32 s53, s40, 14
    s_add_u32 s54, s52, s53
    s_add_u32 s54, s54, {MSG1 + FAST if overlay else 0}
    s_add_u32 s55, s54, 0x100000
    v_lshrrev_b32 v29, 2, v2
    v_lshl_add_u32 v29, v29, 17, v27
    s_add_u32 s52, s52, {QWS}
    s_add_u32 s53, s52, 0x80000
    OVL
    s_mov_b32 s96, {(~TMASK) & 0xffffffff}
    v_mov_b32 v32, 0
    v_mov_b32 v33, 0
    v_mov_b32 v34, 0
    v_mov_b32 v35, 0
    s_lshl_b32 s50, s45, 10
    s_lshl_b32 s51, s43, 8
    s_add_u32 s50, s50, s51
    s_add_u32 s50, s50, {STATS + FAST}
    v_lshlrev_b32 v28, 4, v2
    """.replace("OVL", "s_nop 0" if overlay else "s_add_u32 s54, s52, s3\ns_add_u32 s55, s53, s3\nv_mov_b32 v29, v27"))
    e(f"""
    s_lshl_b32 s50, s45, 10
    s_add_u32 s50, s50, {STATS + FAST}
    buffer_load_dwordx4 v[32:35], v24, s[36:39], s50 offen sc1
    s_lshl_b32 s50, s45, 7
    s_add_u32 s50, s50, {TOK + FAST}
    buffer_load_dword v32, v5, s[36:39], s50 offen sc1
    """)
    if prest:
        for ct in range(2):
            for rt in range(2):
                e(f"buffer_store_dwordx4 v[32:35], v27, s[36:39], s{54 + rt} offen offset:{64*ct}")
        e("buffer_store_dwordx4 v[32:35], v28, s[36:39], s50 offen")
    spin(C_PART, 8, 6, 7)
    e("s_waitcnt vmcnt(0)")
    stamp(2)
    RT = 32
    for i in range(4):
        for w in range(8):
            r = RT + 32 * i + 4 * w
            e(f"ds_read_b128 v[{r}:{r+3}], v{26 if w < 4 else 25} offset:{(w % 4)*16384+i*1024}")
        e("s_waitcnt lgkmcnt(0)")
    e(f"ds_write_b32 v6, v21 offset:{F_PD}")
    for i in range(4):
        for st in (4, 2, 1):
            for w in range(st):
                a = RT + 32 * i + 4 * w; b = a + 4 * st
                e(f"v_pk_add_f32 v[{a}:{a+1}], v[{a}:{a+1}], v[{b}:{b+1}]\nv_pk_add_f32 v[{a+2}:{a+3}], v[{a+2}:{a+3}], v[{b+2}:{b+3}]")
        for r in range(4):
            a = RT + 32 * i + r
            e(f"v_add_u32 v{a}, {1 << (TAGB-1)}, v{a}\nv_and_b32 v{a}, s96, v{a}")
    spin(F_N, 1, 6, 7)
    e(f"""
    ds_read_b64 v[10:11], v17
    s_waitcnt lgkmcnt(0)
    v_readfirstlane_b32 s98, v10
    v_readfirstlane_b32 s99, v11
    s_nop 3
    """)
    stags(98, 99)
    stamp(1)
    e("s_getreg_b32 s51, hwreg(HW_REG_XCC_ID)\ns_and_b32 s51, s51, 15\ns_add_u32 s51, s51, 1\ns_xor_b32 s51, s51, s57")
    for i in range(4):
        for r in range(4):
            a = RT + 32 * i + r
            e(f"v_or_b32 v{8+4*i+r}, s{56+r}, v{a}")
            e(f"v_or_b32 v{a}, s{51 if r == 1 else 56+r}, v{a}")
    for ct in range(2):
        for rt in range(2):
            a = RT + 32 * (2 * ct + rt)
            e(f"buffer_store_dwordx4 v[{a}:{a+3}], v29, s[36:39], s{54 + rt} offen offset:{64*ct}")
    e("s_mov_b32 s46, s52\ns_mov_b32 s47, s53\ns_nop 1")
    stamp(3)
    e("s_branch L_wo")
    g.label("L_w10")
    srd(32, 76, 256)
    e(f"""
    s_lshl_b64 s[98:99], s[98:99], 1
    s_or_b32 s98, s98, 1
    s_or_b32 s99, s99, 0x80000000
    s_cmp_lg_u32 s2, 0
    s_cbranch_scc1 L_n0
    LEAD
    """.replace("LEAD", """v_mov_b32 v28, s98
    v_mov_b32 v29, s99
    v_mov_b32 v30, 0
    v_mov_b32 v31, 0
    s_mov_b64 exec, 1
    buffer_atomic_cmpswap_x2 v[28:31], v5, s[32:35], 0 offen sc0 sc1
    s_mov_b64 exec, -1
    s_barrier
    s_waitcnt vmcnt(0)
    v_readfirstlane_b32 s50, v28
    v_readfirstlane_b32 s51, v29
    s_nop 3
    s_cmp_lt_i32 s51, 0
    s_cselect_b32 s98, s50, s98
    s_cselect_b32 s99, s51, s99
    s_branch L_n1""" if cas else """v_mov_b32 v22, s98
    v_mov_b32 v23, s99
    s_mov_b64 exec, 1
    buffer_store_dwordx2 v[22:23], v5, s[32:35], 0 offen sc0 sc1
    s_mov_b64 exec, -1
    s_barrier
    s_branch L_n1"""))
    g.label("L_n0")
    if snonce:
        e("s_barrier\ns_mov_b32 s61, 0")
        g.label("L_auxn")
        e(f"""
        s_sleep {snonce}
        s_load_dwordx2 s[98:99], s[76:77], 0 glc
        s_waitcnt lgkmcnt(0)
        s_cmp_lt_i32 s99, 0
        s_cbranch_scc1 L_n1
        s_add_u32 s61, s61, 1
        s_cmp_lt_u32 s61, {spin_limit}
        s_cbranch_scc1 L_auxn
        """)
    else:
        if nwait:
            e("s_barrier")
            spin(C_PART, nwait, 6, 7)
            e("buffer_load_dwordx2 v[22:23], v5, s[32:35], 0 offen sc1\ns_mov_b32 s61, 0")
        else:
            e("buffer_load_dwordx2 v[22:23], v5, s[32:35], 0 offen sc1\ns_barrier\ns_mov_b32 s61, 0")
        g.label("L_auxn")
        e(f"""
        s_waitcnt vmcnt(0)
        v_readfirstlane_b32 s98, v22
        v_readfirstlane_b32 s99, v23
        s_nop 3
        s_cmp_lt_i32 s99, 0
        s_cbranch_scc1 L_n1
        buffer_load_dwordx2 v[22:23], v5, s[32:35], 0 offen sc1
        s_add_u32 s61, s61, 1
        s_cmp_lt_u32 s61, {spin_limit}
        s_cbranch_scc1 L_auxn
        """)
    g.label("L_n1")
    stamp(1)
    e(f"""
    v_mov_b32 v22, s98
    v_mov_b32 v23, s99
    ds_write_b64 v17, v[22:23]
    s_waitcnt lgkmcnt(0)
    ds_write_b32 v6, v21 offset:{F_N}
    s_lshl_b32 s50, s45, 14
    s_add_u32 s50, s50, {QWS}
    s_lshl_b32 s51, s45, {15 if overlay else 14}
    s_add_u32 s51, s51, {MSG1 + FAST if overlay else QWS + FAST}
    v_lshlrev_b32 v16, 3, v1
    v_add_u32 v16, {QL}, v16
    v_lshrrev_b32 v18, 5, v1
    v_lshlrev_b32 v18, 13, v18
    v_bfe_u32 v19, v1, 3, 2
    v_lshl_add_u32 v18, v19, 11, v18
    v_and_b32 v19, 7, v1
    v_lshl_add_u32 v18, v19, 6, v18
    """)
    stags(98, 99)
    e("s_getreg_b32 s53, hwreg(HW_REG_XCC_ID)\ns_and_b32 s53, s53, 15\ns_add_u32 s53, s53, 1\ns_xor_b32 s53, s53, s57\ns_mov_b32 s52, s57")
    spin(F_PD, 1, 6, 7)
    e("s_mov_b32 s61, 0")
    stamp(3)
    g.label("L_aux4")
    e(f"s_and_b32 s54, s61, {qsm}\ns_cmp_eq_u32 s54, {qsm}\ns_cselect_b32 s54, s50, s51\ns_cselect_b32 s57, s52, s53\ns_cselect_b32 s49, 1, {1 if forceslow else 2}")
    if probe:
        e(f"""
        buffer_load_dwordx4 v[{RT}:{RT+3}], v18, s[36:39], s54 offen sc1
        s_waitcnt vmcnt(0)
        v_xor_b32 v{RT}, s56, v{RT}
        v_xor_b32 v{RT+1}, s57, v{RT+1}
        v_xor_b32 v{RT+2}, s58, v{RT+2}
        v_xor_b32 v{RT+3}, s59, v{RT+3}
        v_or3_b32 v7, v{RT}, v{RT+1}, v{RT+2}
        v_or_b32 v7, v7, v{RT+3}
        """)
        check(7, "L_aux4b", "L_aux4", spin_limit)
        g.label("L_aux4b")
    for i in range(16):
        if i % 4 == 0: e(f"s_add_u32 s55, s54, {1024*i}")
        e(f"buffer_load_dwordx4 v[{RT+4*i}:{RT+4*i+3}], v24, s[36:39], s55 offen offset:{(i % 4) * 1024} sc1")
    e("s_waitcnt vmcnt(0)")
    for i in range(64):
        e(f"v_xor_b32 v{RT+i}, s{56 + i % 4}, v{RT+i}")
    e(f"v_or3_b32 v7, v{RT}, v{RT+1}, v{RT+2}")
    for i in range(3, 63, 2):
        e(f"v_or3_b32 v7, v7, v{RT+i}, v{RT+i+1}")
    e(f"v_or_b32 v7, v7, v{RT+63}")
    check(7, "L_aux5", "L_aux4", spin_limit)
    g.label("L_aux5")
    for i in range(8):
        a = RT + 4 * i; b = a + 32
        e(f"""
        v_pk_add_f32 v[{a}:{a+1}], v[{a}:{a+1}], v[{b}:{b+1}]
        v_pk_add_f32 v[{a+2}:{a+3}], v[{a+2}:{a+3}], v[{b+2}:{b+3}]
        v_cvt_pk_bf16_f32 v{a}, v{a}, v{a+1}
        v_cvt_pk_bf16_f32 v{a+1}, v{a+2}, v{a+3}
        ds_write_b64 v16, v[{a}:{a+1}] offset:{512*i}
        """)
    e(f"v_mov_b32 v21, s49\ns_waitcnt lgkmcnt(0)\nds_write_b32 v6, v21 offset:{F_Q}\ns_waitcnt lgkmcnt(0)")
    e(f"""
    s_lshl_b32 s46, s45, 7
    s_add_u32 s46, s46, {TOK}
    s_lshl_b32 s50, s43, 4
    s_add_u32 s50, s50, s46
    s_add_u32 s51, s50, s3
    s_mov_b64 exec, 1
    buffer_store_dwordx2 v[22:23], v5, s[36:39], s51 offen
    s_cmp_eq_u32 s49, 2
    s_cbranch_scc1 L_tk1
    buffer_store_dwordx2 v[22:23], v5, s[36:39], s50 offen sc1
    """)
    g.label("L_tk1")
    e("s_mov_b64 exec, -1")
    stamp(4)
    g.label("L_wo")
    e("s_setprio 1")
    for i in range(32):
        if i >= THW: g.wait(f"wa{i-THW}")
        wo_issue(i, "wa")
    stamp(5)
    FR = WB; A = FR
    e(f"""
    s_cmp_lg_u32 s44, 8
    s_cbranch_scc1 L_tr
    s_setprio 3
    s_mov_b32 s61, 0
    """)
    g.label("L_dq")
    e(f"""
    ds_read_b64 v[28:29], v6 offset:{PROG}
    ds_read_b32 v30, v6 offset:{F_Q}
    s_waitcnt lgkmcnt(0)
    v_min_u32 v28, v28, v29
    v_readfirstlane_b32 s60, v30
    v_readfirstlane_b32 s50, v28
    s_nop 3
    s_cmp_eq_u32 s60, 2
    s_cbranch_scc1 L_dq2
    s_cmp_eq_u32 s60, 1
    s_cbranch_scc1 L_dq1
    s_cmp_ge_u32 s50, 8
    s_cbranch_scc1 L_dq1
    s_sleep 2
    s_add_u32 s61, s61, 1
    s_cmp_lt_u32 s61, {spin_limit * 20}
    s_cbranch_scc1 L_dq
    """)
    g.label("L_dq1")
    for ct in range(2):
        for rt in range(2):
            a2 = 8 + 4 * (2 * ct + rt)
            e(f"buffer_store_dwordx4 v[{a2}:{a2+3}], v27, s[36:39], s{46 + rt} offen offset:{64*ct} sc1")
    e("s_waitcnt vmcnt(0)")
    g.label("L_dq2")
    spin(F_Q, 1, 6, 7)
    e(f"""
    s_lshl_b32 s46, s45, 7
    s_add_u32 s46, s46, {TOK}
    v_lshlrev_b32 v28, 4, v3
    v_mov_b32 v29, 1
    s_mov_b32 s61, 0
    """)
    g.label("L_tk2")
    e(f"""
    s_and_b32 s55, s61, {ssm}
    s_cmp_eq_u32 s55, {ssm}
    s_cselect_b32 s55, 0, s3
    s_add_u32 s55, s55, s46
    buffer_load_dwordx2 v[30:31], v28, s[36:39], s55 offen sc1
    s_waitcnt vmcnt(0)
    v_xor_b32 v30, s98, v30
    v_xor_b32 v31, s99, v31
    v_or_b32 v30, v30, v31
    v_cmp_eq_u32 vcc, 0, v30
    s_nop 3
    s_cmp_eq_u64 vcc, -1
    s_cbranch_scc1 L_tk3
    s_add_u32 s61, s61, 1
    s_cmp_lt_u32 s61, {spin_limit}
    s_cbranch_scc1 L_tk2
    """)
    g.label("L_tk3")
    e(f"ds_write_b32 v6, v29 offset:{F_QC}\ns_waitcnt lgkmcnt(0)")
    e(f"""
    v_lshlrev_b32 v{FR+21}, 4, v2
    s_lshl_b32 s50, s45, 10
    s_add_u32 s50, s50, {STATS}
    v_lshl_add_u32 v{FR+22}, v3, 8, v{FR+21}
    v_lshlrev_b32 v{FR+23}, 2, v1
    v_add_u32 v{FR+23}, {SCL}, v{FR+23}
    v_mov_b32 v{FR+24}, 1
    """)
    spin(C_L, 8, 6, 7)
    e("s_mov_b32 s61, 0")
    g.label("L_st6")
    e(f"""
    s_and_b32 s55, s61, {ssm}
    s_cmp_eq_u32 s55, {ssm}
    s_cselect_b32 s55, 0, s3
    s_add_u32 s55, s55, s50
    buffer_load_dwordx4 v[{A}:{A+3}], v{FR+22}, s[36:39], s55 offen sc1
    s_waitcnt vmcnt(0)
    v_xor_b32 v{A+2}, s98, v{A+2}
    v_xor_b32 v{A+3}, s99, v{A+3}
    v_or_b32 v{A+2}, v{A+2}, v{A+3}
    v_cmp_eq_u32 vcc, 0, v{A+2}
    s_nop 3
    s_cmp_eq_u64 vcc, -1
    s_cbranch_scc1 L_st7
    s_add_u32 s61, s61, 1
    s_cmp_lt_u32 s61, {spin_limit}
    s_cbranch_scc1 L_st6
    """)
    g.label("L_st7")
    stamp(6)
    e(f"v_mov_b32 v{A+4}, v{A}")
    xreduce(A + 4, A + 5, "v_max_f32")
    e(f"""
    v_sub_f32 v{A}, v{A}, v{A+4}
    v_exp_f32 v{A+5}, v{A}
    s_nop 0
    v_mul_f32 v{A}, v{A+5}, v{A+1}
    """)
    xreduce(A, A + 1, "v_add_f32")
    e(f"""
    v_rcp_f32 v{A}, v{A}
    s_nop 0
    v_mul_f32 v{A+5}, v{A+5}, v{A}
    ds_write_b32 v{FR+23}, v{A+5}
    s_waitcnt lgkmcnt(0)
    ds_write_b32 v6, v{FR+24} offset:{F_SCL}
    s_waitcnt lgkmcnt(0)
    """)
    g.label("L_tr")
    e("s_setprio 0\ns_waitcnt vmcnt(0)")
    g.label("L_tr2")
    e("s_mov_b32 s52, 0x05040100\ns_mov_b32 s53, 0x07060302")
    for j in range(4):
        src = WB + 32 * (j + 1); dst = WB + 32 * j
        for jc in range(8):
            for p in range(4):
                a = src + 4 * (2 * p) + (jc >> 1); b = src + 4 * (2 * p + 1) + (jc >> 1)
                e(f"v_perm_b32 v{dst+4*jc+p}, v{b}, v{a}, s{52 + (jc & 1)}")
    FR = WB + 128
    spin(F_N, 1, 6, FR + 26)
    e(f"""
    v_mov_b32 v{FR+28}, {NON}
    v_and_b32 v4, 3, v2
    v_lshlrev_b32 v4, 8, v4
    v_lshl_add_u32 v4, v3, 4, v4
    v_add_u32 v4, {OB}, v4
    ds_read_b64 v[{FR+26}:{FR+27}], v{FR+28}
    v_lshrrev_b32 v{FR+29}, 1, v2
    v_lshlrev_b32 v{FR+29}, 13, v{FR+29}
    v_and_b32 v0, 1, v2
    v_lshl_add_u32 v{FR+29}, v0, 6, v{FR+29}
    v_lshl_add_u32 v{FR+29}, v3, 4, v{FR+29}
    s_lshl_b32 s50, s42, 18
    s_lshl_b32 s51, s48, 16
    s_add_u32 s50, s50, s51
    s_add_u32 s50, s50, s63
    s_add_u32 s96, s50, {MSG2}
    v_and_b32 v0, 1, v3
    v_cmp_eq_u32 s[4:5], 1, v0
    v_cmp_le_u32 s[6:7], 2, v3
    s_mov_b32 s98, {(~TMASK) & 0xffffffff}
    v_lshrrev_b32 v0, 5, v1
    v_and_b32 v{FR+25}, 31, v1
    v_lshlrev_b32 v{FR+24}, 12, v0
    v_lshl_add_u32 v{FR+24}, v{FR+25}, 4, v{FR+24}
    s_lshl_b32 s50, s45, 15
    s_lshl_b32 s51, s43, 13
    s_add_u32 s50, s50, s51
    s_lshl_b32 s51, s48, 9
    s_add_u32 s50, s50, s51
    s_add_u32 s54, s50, {MSG1}
    v_lshlrev_b32 v{FR+25}, 1, v{FR+25}
    v_lshl_add_u32 v{FR+25}, v0, 9, v{FR+25}
    s_lshl_b32 s50, s48, 6
    s_add_u32 s50, s50, {OB}
    v_add_u32 v{FR+25}, s50, v{FR+25}
    s_waitcnt lgkmcnt(0)
    v_readfirstlane_b32 s50, v{FR+26}
    v_readfirstlane_b32 s51, v{FR+27}
    s_nop 3
    """)
    stags(50, 51)
    e("s_bitcmp0_b32 s44, 0\ns_cbranch_scc1 L_nodrain")
    for cnt, val in drain:
        e(f"s_waitcnt vmcnt({cnt})\nv_mov_b32 v5, {val}\nds_write_b32 v7, v5 offset:{PROG}")
    stamp(5)
    e("s_setprio 0")
    g.label("L_nodrain")
    e(f"v_mov_b32 v5, v{FR+29}")
    spin(F_SCL, 1, 6, FR + 26, sleep=2)
    e(f"""
    v_lshrrev_b32 v{FR+26}, 5, v1
    v_lshlrev_b32 v{FR+26}, 7, v{FR+26}
    s_lshl_b32 s50, s43, 4
    s_add_u32 s50, s50, {SCL}
    v_add_u32 v{FR+26}, s50, v{FR+26}
    ds_read_b128 v[{FR+16}:{FR+19}], v{FR+26}
    ds_read_b128 v[{FR+20}:{FR+23}], v{FR+26} offset:64
    """)
    spin(PROG, 8, 6, FR + 26, sleep=2, two=True)
    e("s_mov_b32 s61, 0")
    stamp(7)
    R = FR
    g.label("L_m1l")
    e(f"""
    s_and_b32 s55, s61, {m1sm}
    s_cmp_eq_u32 s55, {m1sm}
    s_cselect_b32 s55, 0, s3
    s_add_u32 s55, s55, s54
    buffer_load_dwordx4 v[{R}:{R+3}], v{FR+24}, s[36:39], s55 offen sc1
    buffer_load_dwordx4 v[{R+4}:{R+7}], v{FR+24}, s[36:39], s55 offen offset:2048 sc1
    s_waitcnt vmcnt(0)
    """)
    for i in range(8):
        e(f"v_xor_b32 v{R+i}, s{56 + i % 4}, v{R+i}")
    e(f"""
    v_or3_b32 v6, v{R}, v{R+1}, v{R+2}
    v_or3_b32 v6, v6, v{R+3}, v{R+4}
    v_or3_b32 v6, v6, v{R+5}, v{R+6}
    v_or_b32 v6, v6, v{R+7}
    """)
    check(6, "L_m1g", "L_m1l", spin_limit)
    g.label("L_m1g")
    stamp(10)
    e(f"""
    v_pk_mul_f32 v[{R}:{R+1}], v[{R}:{R+1}], v[{FR+16}:{FR+17}]
    v_pk_mul_f32 v[{R+2}:{R+3}], v[{R+2}:{R+3}], v[{FR+18}:{FR+19}]
    v_pk_fma_f32 v[{R}:{R+1}], v[{R+4}:{R+5}], v[{FR+20}:{FR+21}], v[{R}:{R+1}]
    v_pk_fma_f32 v[{R+2}:{R+3}], v[{R+6}:{R+7}], v[{FR+22}:{FR+23}], v[{R+2}:{R+3}]
    """)
    xsum4(R, R + 4, sws=("v_permlane32_swap_b32",))
    e(f"""
    v_cvt_pk_bf16_f32 v{R+8}, v{R}, v{R+1}
    v_cvt_pk_bf16_f32 v{R+9}, v{R+2}, v{R+3}
    s_nop 0
    v_cndmask_b32 v{R+8}, v{R+8}, v{R+9}, s[6:7]
    ds_write_b16 v{FR+25}, v{R+8}
    ds_write_b16_d16_hi v{FR+25}, v{R+8} offset:256
    s_waitcnt lgkmcnt(0)
    s_barrier
    """)
    stamp(8)
    AF = FR; OA0 = FR + 16
    for j in range(4):
        e(f"ds_read_b128 v[{AF+4*j}:{AF+4*j+3}], v4 offset:{64*j}")
    OA1 = WB + 32
    def epi(OA, t0, h):
        L = []
        for r in range(4):
            L.append(f"v_cndmask_b32 v{t0+r}, v{OA+r}, v{OA+4+r}, s[4:5]")
            L.append(f"v_cndmask_b32 v{t0+4+r}, v{OA+8+r}, v{OA+12+r}, s[4:5]")
        for r in range(4):
            L.append(f"v_cndmask_b32 v{t0+r}, v{t0+r}, v{t0+4+r}, s[6:7]")
        for r in range(4):
            L.append(f"v_and_b32 v{t0+r}, s98, v{t0+r}"); L.append(f"v_or_b32 v{t0+r}, s{56+r}, v{t0+r}")
        L.append(f"buffer_store_dwordx4 v[{t0}:{t0+3}], v5, s[36:39], s96 offen offset:{128*h} sc1")
        return L
    for j in range(4):
        e(f"s_waitcnt lgkmcnt({3-j})")
        for q in range(4):
            c = "0" if j == 0 else f"v[{OA0+4*q}:{OA0+4*q+3}]"
            b = WB + 32 * j + 4 * q
            e(f"v_mfma_f32_16x16x32_bf16 v[{OA0+4*q}:{OA0+4*q+3}], v[{AF+4*j}:{AF+4*j+3}], v[{b}:{b+3}], {c}")
    ep0 = epi(OA0, WB, 0)
    n = 0
    for j in range(4):
        for q in range(4):
            c = "0" if j == 0 else f"v[{OA1+4*q}:{OA1+4*q+3}]"
            b = WB + 32 * j + 4 * (4 + q)
            e(f"v_mfma_f32_16x16x32_bf16 v[{OA1+4*q}:{OA1+4*q+3}], v[{AF+4*j}:{AF+4*j+3}], v[{b}:{b+3}], {c}")
            n += 1
            if n >= 8:
                for _ in range(3):
                    if ep0: e(ep0.pop(0))
    while ep0: e(ep0.pop(0))
    g.nop(8)
    for ln in epi(OA1, WB + 8, 1): e(ln)
    stamp(9)
    if ackwait: e("s_waitcnt vmcnt(0)")
    if wb:
        e(f"s_and_b32 s50, s41, {wb - 1}\ns_lshl_b32 s50, s50, 4\ns_add_u32 s50, s50, s44\ns_cmp_lg_u32 s50, 10\ns_cbranch_scc1 L_nowb\nbuffer_wbl2 sc1")
        g.label("L_nowb")
    e(f"v_mov_b32 v6, {SYN}\nv_mov_b32 v7, 1\ns_mov_b64 exec, 1\nds_add_u32 v6, v7 offset:{C_M2}\ns_mov_b64 exec, -1")
    stamp_store()

    hdr = f"""; Fused GQA decode block (q-proj -> split-KV attention -> out-proj) in ONE launch, 256 workgroups x 12 waves.
; @launch grid=(256,1,1) block=({64*NW},1,1) lds={LDS_TOTAL}
.amdgcn_target "amdgcn-amd-amdhsa--gfx950"
.text
.globl {KNAME}
.p2align 8
.type {KNAME},@function
{KNAME}:
"""
    ftr = f"""L_done:
    s_endpgm
.section .rodata,"a"
.p2align 6
.amdhsa_kernel {KNAME}
  .amdhsa_next_free_vgpr 168
  .amdhsa_next_free_sgpr 102
  .amdhsa_accum_offset 168
  .amdhsa_group_segment_fixed_size 0
  .amdhsa_kernarg_size 64
  .amdhsa_user_sgpr_count 2
  .amdhsa_user_sgpr_kernarg_segment_ptr 1
  .amdhsa_system_sgpr_workgroup_id_x 1
  .amdhsa_float_denorm_mode_32 3
.end_amdhsa_kernel
"""
    body = "\n".join(l for l in g.text().split("\n") if l.strip()) + "\n"
    return hdr + body + ftr

if __name__ == "__main__":
    open("g38.s", "w").write(gen())
    open("g38_st.s", "w").write(gen(stamps=True))
    open("g38_cas.s", "w").write(gen(cas=True))
    open("g38_w.s", "w").write(gen(WS=(28, 20, 16, 16, 16, 16, 14, 12)))
```

```python
import sys
from gen1 import G, KNAME

STATS = 0x80000
TOK = 0xA0000
MSG1 = 0x100000
MSG2 = 0x300000
QWS = 0x600000
DBGA = 0x800000
FAST = 0x1000000
AUX1 = 131072
AUX2 = 147456
MX = AUX2
LS = AUX2 + 512
SCL = AUX2 + 1024
NON = AUX2 + 1536
SYN = AUX2 + 1600
PROG = 0
C_PART, F_PD, F_Q, C_M, C_L, F_N, F_SCL = [8 + 4 * i for i in range(7)]
C_KR = 40
C_M2 = 56
F_QC = 60
OB = AUX2 + 2048
QL = AUX2 + 4096
RED = AUX2 + 8192
LDS_TOTAL = 163840
TAGB = 11
TMASK = (1 << TAGB) - 1
QTB = 7
QMASK = (1 << QTB) - 1
NW = 12

def gen(stamps=False, spin_limit=20000, THW=8, WS=(32, 32, 20, 18, 16, 14, 12, 10), wo_start=1, wopol="", wqpol="", xpol="",
        kvpol="nt", ldprio=3, ld_early=0, forceslow=False, probe=False, qsm=15, ssm=15, m1sm=31, prest=False, overlay=True, pend=False, ackwait=True, m2sleep=0, nwait=0, wb=0, cas=True, snonce=0):
    g = G()
    e = g.e
    nst = [0]
    def stamp(idx=None):
        if not stamps: return
        i = nst[0] if idx is None else idx
        if idx is None: nst[0] += 1
        assert i < 14
        e(f"s_memrealtime s[100:101]\ns_waitcnt lgkmcnt(0)\ns_mov_b32 s{80+i}, s100")
    def stamp_store():
        if not stamps: return
        e(f"s_mul_i32 s50, s2, {NW}\ns_add_u32 s50, s50, s44\ns_lshl_b32 s50, s50, 6\ns_add_u32 s50, s50, {DBGA}\nv_mov_b32 v24, 0\ns_mov_b64 exec, 1")
        for i in range(0, 16, 4):
            for k in range(4): e(f"v_mov_b32 v{28+k}, s{80+i+k}")
            e(f"buffer_store_dwordx4 v[28:31], v24, s[36:39], s50 offen offset:{4*i}\ns_nop 1")
    def xreduce(r, tmp, op):
        for sw in ("v_permlane32_swap_b32", "v_permlane16_swap_b32"):
            e(f"v_mov_b32 v{tmp}, v{r}\ns_nop 1\n{sw} v{r}, v{tmp}\ns_nop 0\n{op} v{r}, v{r}, v{tmp}")
    def xsum4(a, t, sws=("v_permlane32_swap_b32", "v_permlane16_swap_b32")):
        for sw in sws:
            for i in range(4): e(f"v_mov_b32 v{t+i}, v{a+i}")
            e("s_nop 0")
            for i in range(4): e(f"{sw} v{a+i}, v{t+i}")
            e("s_nop 0")
            e(f"v_pk_add_f32 v[{a}:{a+1}], v[{a}:{a+1}], v[{t}:{t+1}]\nv_pk_add_f32 v[{a+2}:{a+3}], v[{a+2}:{a+3}], v[{t+2}:{t+3}]")
    def spin(word, val, vsyn, vtmp, sleep=1, two=False):
        l1, l2 = g.newlabel("Lsp"), g.newlabel("Lspd")
        e("s_mov_b32 s61, 0")
        g.label(l1)
        if two:
            e(f"ds_read_b64 v[{vtmp}:{vtmp+1}], v{vsyn} offset:{word}\ns_waitcnt lgkmcnt(0)\nv_min_u32 v{vtmp}, v{vtmp}, v{vtmp+1}\ns_nop 0")
        else:
            e(f"ds_read_b32 v{vtmp}, v{vsyn} offset:{word}\ns_waitcnt lgkmcnt(0)")
        e(f"""
        v_readfirstlane_b32 s60, v{vtmp}
        s_nop 3
        s_cmp_ge_u32 s60, {val}
        s_cbranch_scc1 {l2}
        {f's_sleep {sleep}' if sleep else ''}
        s_add_u32 s61, s61, 1
        s_cmp_lt_u32 s61, {spin_limit * 20}
        s_cbranch_scc1 {l1}
        """)
        g.label(l2)
    def arrive(word, vsyn, vone):
        e(f"s_waitcnt lgkmcnt(0)\ns_mov_b64 exec, 1\nds_add_u32 v{vsyn}, v{vone} offset:{word}\ns_mov_b64 exec, -1")
    def srd(d, p, size):
        e(f"s_mov_b32 s{d}, s{p}\ns_mov_b32 s{d+1}, s{p+1}\ns_mov_b32 s{d+2}, {size}\ns_mov_b32 s{d+3}, 0x00020000")
    def stags(lo, hi):
        e(f"""
        s_and_b32 s56, s{lo}, {TMASK}
        s_bfe_u32 s57, s{lo}, {TAGB | (TAGB << 16)}
        s_lshr_b64 s[58:59], s[{lo}:{hi}], {2*TAGB}
        s_and_b32 s58, s58, {TMASK}
        s_bfe_u32 s59, s{hi}, {(3*TAGB-32) | (TAGB << 16)}
        """)
    def qtags(lo):
        for i in range(4):
            e(f"s_bfe_u32 s{56+i}, s{lo}, {(QTB*i) | (QTB << 16)}")
        e("s_xor_b32 s56, s56, 1")
    def check(vreg, lok, lloop, lim, slp=0, mask=TMASK):
        e(f"""
        v_and_b32 v{vreg}, {mask}, v{vreg}
        v_cmp_eq_u32 vcc, 0, v{vreg}
        s_nop 3
        s_cmp_eq_u64 vcc, -1
        s_cbranch_scc1 {lok}
        {f's_sleep {slp}' if slp else ''}
        s_add_u32 s61, s61, 1
        s_cmp_lt_u32 s61, {lim}
        s_cbranch_scc1 {lloop}
        """)
    WB = 8
    def wo_issue(i, tagp):
        j, ee = i // 8, i % 8
        r = WB + 32 * (j + 1) + 4 * ee
        off = (32 * j + ee) * 1024
        e(f"s_add_u32 s50, s97, {off & ~4095}")
        g.vm(f"buffer_load_dwordx4 v[{r}:{r+3}], v4, s[24:27], s50 offen offset:{off & 4095} {wopol}", f"{tagp}{i}")
    e(f"""
    s_cmp_ge_u32 s2, 256
    s_cbranch_scc1 L_done
    s_load_dwordx16 s[64:79], s[0:1], 0
    s_memrealtime s[98:99]
    v_and_b32 v1, 63, v0
    v_lshrrev_b32 v4, 6, v0
    v_and_b32 v2, 15, v0
    v_bfe_u32 v3, v0, 4, 2
    v_readfirstlane_b32 s44, v4
    s_and_b32 s40, s2, 7
    s_lshr_b32 s41, s2, 3
    s_lshr_b32 s42, s41, 2
    s_and_b32 s43, s41, 3
    s_lshl_b32 s45, s42, 3
    s_add_u32 s45, s45, s40
    s_lshl_b32 s51, s40, 2
    s_add_u32 s51, s51, s43
    s_lshl_b32 s63, s51, 8
    s_mov_b32 s3, {FAST}
    v_mov_b32 v6, {SYN}
    s_cmp_lt_u32 s44, 8
    s_cbranch_scc1 L_cw
    s_sub_u32 s48, s44, 8
    v_lshlrev_b32 v4, 13, v3
    v_lshl_add_u32 v4, v2, 4, v4
    s_lshl_b32 s97, s63, 9
    s_lshl_b32 s50, s48, 8
    s_add_u32 s97, s97, s50
    s_bitcmp0_b32 s44, 0
    s_cbranch_scc1 L_op
    """)
    e(f"""
    s_setprio {ldprio}
    s_lshr_b32 s49, s48, 1
    s_lshl_b32 s46, s45, 2
    s_add_u32 s46, s46, s43
    s_lshl_b32 s46, s46, 17
    s_lshl_b32 s47, s49, 16
    s_add_u32 s46, s46, s47
    s_lshl_b32 s50, s49, 2
    v_add_u32 v7, s50, v6
    s_add_u32 s94, s41, s40
    v_xor_b32 v8, v2, v3
    v_lshlrev_b32 v8, 4, v8
    v_lshl_add_u32 v8, v3, 8, v8
    v_lshlrev_b32 v12, 1, v3
    v_xor_b32 v12, v2, v12
    v_lshlrev_b32 v12, 4, v12
    v_lshl_add_u32 v12, v3, 8, v12
    v_xor_b32 v9, 64, v8
    v_xor_b32 v10, 0x80, v8
    v_xor_b32 v11, 0xc0, v8
    v_xor_b32 v13, 0x80, v12
    s_add_u32 s95, s42, s49
    """)
    for x in range(4):
        e(f"s_add_u32 s50, s94, {x}\ns_and_b32 s50, s50, 3\ns_lshl_b32 s50, s50, 12\ns_add_u32 s{52+x}, s50, s46")
        e(f"s_add_u32 s50, s95, {x}\ns_and_b32 s50, s50, 3\ns_lshl_b32 s{56+x}, s50, 10")
    e("s_waitcnt lgkmcnt(0)")
    srd(12, 66, 0x2000000); srd(16, 68, 0x2000000); srd(24, 72, 0x400000); srd(36, 78, 0x10000000)
    stamp(0)
    if not ld_early: e("s_barrier")
    kv = []; woi = [0]; sig = [0]; known = [0]
    for ph in range(2):
        for t in range(4):
            if ph == 0 and t == 3: spin(F_PD, 1, 6, 15)
            if ph == 1: spin(C_KR + 4 * t, 8, 6, 15)
            for k in range(4):
                for u in range(4):
                    n = len(kv)
                    if ld_early and n == ld_early: e("s_barrier")
                    Wc = WS[n // 16]
                    if n >= Wc and n - Wc + 1 > known[0]:
                        g.wait(kv[n - Wc]); known[0] = n - Wc + 1
                    e(f"s_add_u32 m0, s47, {16384*u + 4096*t + 1024*k}\ns_add_u32 s50, s{52 + (t+u)%4}, s{56 + (k+u)%4}\ns_add_u32 s50, s50, {16384*u}")
                    if ph == 0:
                        g.vm(f"buffer_load_dwordx4 v{8+k}, s[12:15], s50 offen {kvpol} lds", f"kv{n}")
                    else:
                        g.vm(f"buffer_load_dwordx4 v{12+(k&1)}, s[16:19], s50 offen {kvpol} lds", f"kv{n}")
                    kv.append(f"kv{n}")
                    while sig[0] < 8 and known[0] >= 16 * (sig[0] + 1):
                        sig[0] += 1
                        e(f"v_mov_b32 v14, {sig[0]}\nds_write_b32 v7, v14 offset:{PROG}")
                    gi = ph * 4 + t
                    if gi >= wo_start and woi[0] < 32 and (n % (3 if wo_start <= 1 else 2) == 0 or gi >= 6):
                        wo_issue(woi[0], "wl"); woi[0] += 1
    assert woi[0] == 32, woi[0]
    stamp(4)
    g.wait("wl31")
    e("s_branch L_tr2")
    drain = []
    while sig[0] < 8:
        drain.append((g.nvm - g.pos[kv[16 * (sig[0] + 1) - 1]], sig[0] + 1))
        sig[0] += 1

    g.label("L_cw")
    e(f"""
    s_lshl_b32 s47, s44, 14
    s_and_b32 s52, s43, 1
    s_lshr_b32 s53, s43, 1
    s_lshl_b32 s46, s52, 2
    s_add_u32 s46, s46, s44
    s_and_b32 s46, s46, 7
    s_lshl_b32 s50, s53, 3
    s_add_u32 s46, s46, s50
    v_lshrrev_b32 v14, 2, v1
    v_and_b32 v15, 3, v1
    v_lshlrev_b32 v15, 4, v15
    v_lshl_add_u32 v16, v14, 10, v15
    v_lshl_add_u32 v14, v14, 13, v15
    s_lshl_b32 s50, s46, 18
    s_lshl_b32 s51, s40, 10
    s_add_u32 s50, s50, s51
    s_lshl_b32 s51, s42, 7
    s_add_u32 s50, s50, s51
    s_lshl_b32 s51, s52, 6
    s_add_u32 s50, s50, s51
    s_lshl_b32 s51, s44, 11
    s_add_u32 s62, s51, {AUX1}
    s_lshl_b32 s51, s46, 6
    s_waitcnt lgkmcnt(0)
    """)
    srd(20, 70, 0x400000); srd(8, 64, 32768)
    stamp()
    e(f"""
    s_mov_b32 m0, s62
    s_add_u32 s54, s50, 0x20000
    buffer_load_dwordx4 v14, s[20:23], s50 offen {wqpol} lds
    s_add_u32 m0, s62, 1024
    s_add_u32 s55, s51, 16384
    buffer_load_dwordx4 v14, s[20:23], s54 offen {wqpol} lds
    s_add_u32 m0, s47, 12288
    s_nop 0
    buffer_load_dwordx4 v16, s[8:11], s51 offen {xpol} lds
    s_add_u32 m0, s47, 13312
    s_nop 0
    buffer_load_dwordx4 v16, s[8:11], s55 offen {xpol} lds
    s_barrier
    """)
    srd(28, 74, 32768); srd(36, 78, 0x10000000)
    e(f"""
    v_lshrrev_b32 v24, 2, v2
    v_lshl_add_u32 v24, v3, 3, v24
    v_lshlrev_b32 v24, 6, v24
    v_and_b32 v25, 3, v1
    v_lshl_add_u32 v24, v25, 3, v24
    v_add_u32 v24, s62, v24
    v_lshlrev_b32 v25, 6, v2
    v_lshl_add_u32 v25, v3, 4, v25
    v_add_u32 v25, s47, v25
    v_lshlrev_b32 v27, 4, v1
    v_add_u32 v27, s47, v27
    v_mov_b32 v20, {SYN}
    v_mov_b32 v21, 1
    s_lshr_b32 s50, s44, 2
    s_lshl_b32 s50, s50, 2
    v_add_u32 v19, s50, v20
    v_lshlrev_b32 v16, 13, v3
    v_lshl_add_u32 v16, v2, 4, v16
    s_lshl_b32 s50, s45, 15
    s_lshl_b32 s51, s43, 11
    s_add_u32 s50, s50, s51
    s_lshl_b32 s51, s44, 8
    s_add_u32 s50, s50, s51
    s_add_u32 s50, s50, {MSG1}
    v_add_u32 v16, s50, v16
    v_lshlrev_b32 v17, 8, v2
    v_lshl_add_u32 v17, v3, 4, v17
    v_add_u32 v17, {QL}, v17
    v_mov_b32 v18, {NON}
    v_xor_b32 v12, v2, v3
    v_lshlrev_b32 v12, 4, v12
    v_lshlrev_b32 v13, 8, v2
    v_add_u32 v13, s47, v13
    v_add_u32 v28, v13, v12
    v_xor_b32 v29, 64, v12
    v_add_u32 v29, v13, v29
    v_xor_b32 v30, 0x80, v12
    v_add_u32 v30, v13, v30
    v_xor_b32 v31, 0xc0, v12
    v_add_u32 v31, v13, v31
    v_mov_b32 v160, 0
    v_mov_b32 v161, 0
    v_mov_b32 v162, 0
    v_mov_b32 v163, 0
    s_waitcnt vmcnt(0)
    """)
    if prest: e("buffer_store_dwordx4 v[160:163], v16, s[36:39], s3 offen")
    stamp()
    XF = 96; WF = 104; QA = 112
    for ct in range(2):
        e(f"ds_read_b64_tr_b16 v[{WF+4*ct}:{WF+4*ct+1}], v24 offset:{32*ct}")
        e(f"ds_read_b64_tr_b16 v[{WF+4*ct+2}:{WF+4*ct+3}], v24 offset:{32*ct+256}")
    for rt in range(2):
        e(f"ds_read_b128 v[{XF+4*rt}:{XF+4*rt+3}], v25 offset:{12288 + 1024*rt}")
    e("s_waitcnt lgkmcnt(0)")
    for ct in range(2):
        for rt in range(2):
            q = QA + 4 * (2 * ct + rt)
            e(f"v_mfma_f32_16x16x32_bf16 v[{q}:{q+3}], v[{WF+4*ct}:{WF+4*ct+3}], v[{XF+4*rt}:{XF+4*rt+3}], 0")
    g.nop(8)
    for i in range(4):
        e(f"ds_write_b128 v27, v[{QA+4*i}:{QA+4*i+3}] offset:{12288 + 1024*i}")
    arrive(C_PART, 20, 21)
    stamp()
    KF = 32
    for t in range(4):
        spin(PROG, t + 1, 19, 22, sleep=2)
        for j in range(4):
            r = KF + 16 * t + 4 * j
            e(f"ds_read_b128 v[{r}:{r+3}], v{28+j} offset:{4096*t}")
        arrive(C_KR + 4 * t, 20, 21)
    stamp()
    spin(F_Q, 1, 20, 22, sleep=2)
    e("s_mov_b32 s94, s60")
    stamp()
    QF = 96; SA = 112; T = 128
    for j in range(4):
        e(f"ds_read_b128 v[{QF+4*j}:{QF+4*j+3}], v17 offset:{64*j}")
    e("ds_read_b64 v[22:23], v18")
    for j in range(4):
        e(f"s_waitcnt lgkmcnt({4-j})")
        for t in range(4):
            r = KF + 16 * t + 4 * j
            c = "0" if j == 0 else f"v[{SA+4*t}:{SA+4*t+3}]"
            e(f"v_mfma_f32_16x16x32_bf16 v[{SA+4*t}:{SA+4*t+3}], v[{r}:{r+3}], v[{QF+4*j}:{QF+4*j+3}], {c}")
    e(f"""
    s_waitcnt lgkmcnt(0)
    v_and_b32 v4, {TMASK}, v22
    v_bfe_u32 v5, v22, {TAGB}, {TAGB}
    v_alignbit_b32 v6, v23, v22, {2*TAGB}
    v_and_b32 v6, {TMASK}, v6
    v_bfe_u32 v7, v23, {3*TAGB-32}, {TAGB}
    s_mov_b32 s50, 0x3db504f3
    s_mov_b32 s51, 0xffff0000
    s_mov_b32 s99, 0x3fb8aa3b
    s_nop 1
    """)
    for p in range(8):
        a = SA + 2 * p
        e(f"""
        v_cvt_pk_bf16_f32 v{T}, v{a}, v{a+1}
        v_lshlrev_b32 v{a}, 16, v{T}
        v_and_b32 v{a+1}, s51, v{T}
        v_mul_f32 v{a}, s50, v{a}
        v_mul_f32 v{a+1}, s50, v{a+1}
        v_cvt_pk_bf16_f32 v{T}, v{a}, v{a+1}
        v_lshlrev_b32 v{a}, 16, v{T}
        v_and_b32 v{a+1}, s51, v{T}
        """)
    e(f"v_max3_f32 v{T}, v{SA}, v{SA+1}, v{SA+2}")
    for i in range(3, 15, 2):
        e(f"v_max3_f32 v{T}, v{T}, v{SA+i}, v{SA+i+1}")
    e(f"v_max_f32 v{T}, v{T}, v{SA+15}")
    xreduce(T, T + 1, "v_max_f32")
    e(f"""
    v_lshlrev_b32 v12, 5, v2
    v_add_u32 v12, {MX}, v12
    s_lshl_b32 s50, s44, 2
    v_add_u32 v13, s50, v12
    ds_write_b32 v13, v{T}
    """)
    arrive(C_M, 20, 21)
    spin(C_M, 8, 20, 22)
    e(f"ds_read_b128 v[{T+4}:{T+7}], v12\nds_read_b128 v[{T+8}:{T+11}], v12 offset:16\ns_waitcnt lgkmcnt(0)")
    e(f"""
    v_max3_f32 v{T}, v{T+4}, v{T+5}, v{T+6}
    v_max3_f32 v{T}, v{T}, v{T+7}, v{T+8}
    v_max3_f32 v{T}, v{T}, v{T+9}, v{T+10}
    v_max_f32 v{T}, v{T}, v{T+11}
    v_mul_f32 v23, s99, v{T}
    """)
    for i in range(16):
        e(f"v_fma_f32 v{SA+i}, v{SA+i}, s99, -v23")
    for i in range(16):
        e(f"v_exp_f32 v{SA+i}, v{SA+i}")
    e("s_nop 0")
    e(f"v_lshlrev_b32 v14, 3, v1\nv_add_u32 v14, s62, v14")
    for t in range(4):
        a = SA + 4 * t
        e(f"v_cvt_pk_bf16_f32 v{T+2*t}, v{a}, v{a+1}\nv_cvt_pk_bf16_f32 v{T+2*t+1}, v{a+2}, v{a+3}")
        e(f"ds_write_b64 v14, v[{T+2*t}:{T+2*t+1}] offset:{512*t}")
    for st in (8, 4, 2):
        for i in range(0, st, 2):
            a = SA + i; b = SA + i + st
            e(f"v_pk_add_f32 v[{a}:{a+1}], v[{a}:{a+1}], v[{b}:{b+1}]")
    e(f"v_add_f32 v{SA}, v{SA}, v{SA+1}")
    xreduce(SA, SA + 1, "v_add_f32")
    e(f"ds_write_b32 v13, v{SA} offset:512")
    arrive(C_L, 20, 21)
    PF = 32; BF = 112; PVA = 160; SC = 164
    e(f"""
    v_lshrrev_b32 v24, 2, v2
    v_lshl_add_u32 v24, v3, 2, v24
    v_and_b32 v25, 7, v24
    v_lshlrev_b32 v25, 1, v25
    v_bfe_u32 v27, v1, 1, 1
    s_lshl_b32 s50, s44, 1
    v_add_u32 v27, s50, v27
    v_xor_b32 v25, v25, v27
    v_lshlrev_b32 v25, 4, v25
    v_lshl_add_u32 v25, v24, 8, v25
    v_and_b32 v27, 1, v1
    v_lshl_add_u32 v25, v27, 3, v25
    v_add_u32 v26, 0x10000, v25
    v_lshlrev_b32 v27, 3, v1
    v_add_u32 v27, {AUX1}, v27
    v_and_b32 v30, 1, v3
    v_lshlrev_b32 v30, 4, v30
    v_cmp_le_u32 s[6:7], 2, v3
    v_lshlrev_b32 v19, 4, v3
    v_add_u32 v19, {SCL}, v19
    s_mov_b32 s98, {(~TMASK) & 0xffffffff}
    """)
    spin(C_L, 8, 20, 22)
    stamp()
    lnp = g.newlabel("Lnp")
    A = 128
    e(f"""
    s_cmp_lg_u32 s44, 1
    s_cbranch_scc1 {lnp}
    ds_read_b128 v[{A+8}:{A+11}], v12 offset:512
    ds_read_b128 v[{A+12}:{A+15}], v12 offset:528
    ds_read_b64 v[{A+18}:{A+19}], v18
    v_lshlrev_b32 v{A+21}, 4, v2
    s_lshl_b32 s50, s45, 10
    s_add_u32 s50, s50, {STATS}
    s_lshl_b32 s51, s43, 8
    s_add_u32 s51, s51, s50
    v_mov_b32 v{A+16}, v23
    s_waitcnt lgkmcnt(0)
    v_pk_add_f32 v[{A+8}:{A+9}], v[{A+8}:{A+9}], v[{A+10}:{A+11}]
    v_pk_add_f32 v[{A+12}:{A+13}], v[{A+12}:{A+13}], v[{A+14}:{A+15}]
    v_pk_add_f32 v[{A+8}:{A+9}], v[{A+8}:{A+9}], v[{A+12}:{A+13}]
    v_add_f32 v{A+17}, v{A+8}, v{A+9}
    s_mov_b64 exec, 0xffff
    s_add_u32 s55, s51, s3
    buffer_store_dwordx4 v[{A+16}:{A+19}], v{A+21}, s[36:39], s55 offen
    s_cmp_eq_u32 s94, 2
    s_cbranch_scc1 L_std
    buffer_store_dwordx4 v[{A+16}:{A+19}], v{A+21}, s[36:39], s51 offen sc1
    """)
    g.label("L_std")
    e("s_mov_b64 exec, -1")
    g.label(lnp)
    for k in range(4):
        for i in range(4):
            r = PF + 16 * k + 4 * i
            e(f"ds_read2st64_b64 v[{r}:{r+3}], v27 offset0:{8*i+k} offset1:{8*i+4+k}")
        if k == 1: e("s_waitcnt lgkmcnt(0)")
    first = [True]
    def pv_phase(k):
        for i in range(4):
            for hf in range(2):
                u = 2 * i + hf
                r = BF + 4 * i + 2 * hf
                e(f"ds_read_b64_tr_b16 v[{r}:{r+1}], v{25 if u < 4 else 26} offset:{(u % 4) * 16384 + 4096 * k}")
        for i in range(4):
            e(f"s_waitcnt lgkmcnt({6 - 2*i})")
            c = "0" if first[0] else f"v[{PVA}:{PVA+3}]"
            first[0] = False
            e(f"v_mfma_f32_16x16x32_bf16 v[{PVA}:{PVA+3}], v[{PF+16*k+4*i}:{PF+16*k+4*i+3}], v[{BF+4*i}:{BF+4*i+3}], {c}")
    for k in range(3):
        spin(PROG, 5 + k, 20, 22, sleep=2, two=True)
        pv_phase(k)
    stamp()
    spin(F_QC, 1, 20, 22, sleep=1)
    stamp()
    spin(PROG, 8, 20, 22, sleep=0, two=True)
    stamp()
    pv_phase(3)
    g.nop(8)
    for i in range(4):
        e(f"v_and_or_b32 v{PVA+i}, v{PVA+i}, s98, v{4+i}")
    lsd = g.newlabel("Lsd")
    e(f"""
    buffer_store_dwordx4 v[{PVA}:{PVA+3}], v16, s[36:39], s3 offen
    s_cmp_eq_u32 s94, 2
    s_cbranch_scc1 {lsd}
    buffer_store_dwordx4 v[{PVA}:{PVA+3}], v16, s[36:39], 0 offen sc1
    """)
    g.label(lsd)
    stamp()
    nst[0] = 12
    lend = g.newlabel("Lend")
    e(f"s_cmp_lg_u32 s44, 0\ns_cbranch_scc1 {lend}")
    e(f"""
    v_lshlrev_b32 v24, 4, v1
    s_lshl_b32 s50, s42, 18
    s_lshl_b32 s51, s63, 5
    s_add_u32 s50, s50, s51
    s_add_u32 s50, s50, {MSG2}
    s_add_u32 s51, s50, 4096
    v_lshlrev_b32 v25, 10, v3
    v_and_b32 v26, 3, v2
    v_lshl_add_u32 v25, v26, 1, v25
    v_bfe_u32 v26, v2, 2, 1
    v_lshl_add_u32 v25, v26, 4, v25
    v_lshrrev_b32 v26, 3, v2
    v_lshl_add_u32 v25, v26, 3, v25
    s_lshl_b32 s96, s42, 12
    s_lshr_b32 s97, s63, 3
    s_add_u32 s96, s96, s97
    s_barrier
    """)
    spin(C_M2, 4, 20, 22, sleep=1)
    e("s_mov_b32 s61, 0")
    if pend:
        ll, lg = g.newlabel("Lm2l"), g.newlabel("Lm2g")
        FB = 32; RB = 64
        e("s_mov_b32 s52, 0xff")
        g.label(ll)
        for i in range(8):
            lk = g.newlabel("Lp")
            e(f"s_bitcmp0_b32 s52, {i}\ns_cbranch_scc1 {lk}\nbuffer_load_dwordx4 v[{RB+4*i}:{RB+4*i+3}], v24, s[36:39], s{50 + i // 4} offen offset:{(i % 4) * 1024} sc1")
            g.label(lk)
        e("s_waitcnt vmcnt(0)")
        for i in range(8):
            lk = g.newlabel("Lp")
            e(f"""
            s_bitcmp0_b32 s52, {i}
            s_cbranch_scc1 {lk}
            v_xor_b32 v{FB+4*i}, v{RB+4*i}, v4
            v_xor_b32 v{FB+4*i+1}, v{RB+4*i+1}, v5
            v_xor_b32 v{FB+4*i+2}, v{RB+4*i+2}, v6
            v_xor_b32 v{FB+4*i+3}, v{RB+4*i+3}, v7
            v_or3_b32 v28, v{FB+4*i}, v{FB+4*i+1}, v{FB+4*i+2}
            v_or_b32 v28, v28, v{FB+4*i+3}
            v_and_b32 v28, {TMASK}, v28
            v_cmp_eq_u32 vcc, 0, v28
            s_nop 3
            s_cmp_eq_u64 vcc, -1
            s_cbranch_scc0 {lk}
            s_bitset0_b32 s52, {i}
            """)
            g.label(lk)
        e(f"""
        s_cmp_eq_u32 s52, 0
        s_cbranch_scc1 {lg}
        s_add_u32 s61, s61, 1
        s_cmp_lt_u32 s61, {spin_limit}
        s_cbranch_scc1 {ll}
        """)
    else:
        ll, lg = g.newlabel("Lm2l"), g.newlabel("Lm2g")
        g.label(ll)
        FB = 32
        for i in range(8):
            e(f"buffer_load_dwordx4 v[{FB+4*i}:{FB+4*i+3}], v24, s[36:39], s{50 + i // 4} offen offset:{(i % 4) * 1024} sc1")
        e("s_waitcnt vmcnt(0)")
        for i in range(32):
            e(f"v_xor_b32 v{FB+i}, v{FB+i}, v{4 + i % 4}")
        e(f"v_or3_b32 v28, v{FB}, v{FB+1}, v{FB+2}")
        for i in range(3, 31, 2):
            e(f"v_or3_b32 v28, v28, v{FB+i}, v{FB+i+1}")
        e(f"v_or_b32 v28, v28, v{FB+31}")
        check(28, lg, ll, spin_limit, m2sleep)
    g.label(lg)
    stamp()
    for st in (4, 2, 1):
        for w in range(st):
            a = FB + 4 * w; b = FB + 4 * (w + st)
            e(f"v_pk_add_f32 v[{a}:{a+1}], v[{a}:{a+1}], v[{b}:{b+1}]\nv_pk_add_f32 v[{a+2}:{a+3}], v[{a+2}:{a+3}], v[{b+2}:{b+3}]")
    xsum4(FB, FB + 4)
    e(f"""
    v_cvt_pk_bf16_f32 v28, v{FB}, v{FB+1}
    v_cvt_pk_bf16_f32 v29, v{FB+2}, v{FB+3}
    s_nop 0
    v_cndmask_b32 v28, v28, v29, s[6:7]
    v_lshrrev_b32 v28, v30, v28
    buffer_store_short v28, v25, s[28:31], s96 offen
    """)
    g.label(lend)
    stamp()
    stamp_store()
    e("s_endpgm")

    g.label("L_op")
    e(f"""
    s_setprio 3
    v_mov_b32 v5, 0
    v_mov_b32 v21, 1
    v_mov_b32 v17, {NON}
    v_lshlrev_b32 v24, 4, v1
    v_mov_b32 v27, 0
    s_mov_b32 s46, {QWS}
    s_mov_b32 s47, {QWS}
    s_waitcnt lgkmcnt(0)
    """)
    srd(36, 78, 0x10000000); srd(24, 72, 0x400000)
    stamp(0)
    e("s_cmp_lg_u32 s44, 8\ns_cbranch_scc1 L_w10")
    e(f"""
    v_lshlrev_b32 v7, 2, v2
    v_add_u32 v7, {SYN}, v7
    ds_write_b32 v7, v5
    s_lshl_b32 s50, s45, 15
    s_lshl_b32 s51, s43, 12
    s_add_u32 s50, s50, s51
    s_add_u32 s50, s50, {MSG1 + FAST}
    s_add_u32 s51, s50, 16384
    """)
    if not overlay:
        e(f"s_lshl_b32 s52, s45, 14\ns_lshl_b32 s53, s43, 12\ns_add_u32 s52, s52, s53\ns_add_u32 s52, s52, {QWS + FAST}")
        for i in range(4): e(f"buffer_load_dwordx4 v[32:35], v24, s[36:39], s52 offen offset:{i * 1024} sc1")
    for i in range(4): e(f"buffer_load_dwordx4 v[32:35], v24, s[36:39], s50 offen offset:{i * 1024} sc1")
    e("s_waitcnt lgkmcnt(0)\ns_barrier")
    for i in range(4): e(f"buffer_load_dwordx4 v[32:35], v24, s[36:39], s51 offen offset:{i * 1024} sc1")
    e(f"""
    v_add_u32 v26, 12288, v24
    v_add_u32 v25, 0x10000, v26
    v_lshrrev_b32 v27, 2, v2
    v_lshlrev_b32 v27, 17, v27
    v_and_b32 v28, 3, v2
    v_lshl_add_u32 v27, v28, 9, v27
    v_lshl_add_u32 v27, v3, 4, v27
    s_lshl_b32 s52, s40, 14
    s_lshr_b32 s53, s43, 1
    s_lshl_b32 s53, s53, 13
    s_add_u32 s52, s52, s53
    s_lshr_b32 s53, s42, 1
    s_lshl_b32 s53, s53, 11
    s_add_u32 s52, s52, s53
    s_and_b32 s53, s42, 1
    s_lshl_b32 s53, s53, 8
    s_add_u32 s52, s52, s53
    s_and_b32 s53, s43, 1
    s_lshl_b32 s53, s53, 7
    s_add_u32 s52, s52, s53
    s_lshl_b32 s53, s40, 14
    s_add_u32 s54, s52, s53
    s_add_u32 s54, s54, {MSG1 + FAST if overlay else 0}
    s_add_u32 s55, s54, 0x100000
    v_lshrrev_b32 v29, 2, v2
    v_lshl_add_u32 v29, v29, 17, v27
    s_add_u32 s52, s52, {QWS}
    s_add_u32 s53, s52, 0x80000
    OVL
    s_mov_b32 s96, {(~QMASK) & 0xffffffff}
    v_mov_b32 v32, 0
    v_mov_b32 v33, 0
    v_mov_b32 v34, 0
    v_mov_b32 v35, 0
    s_lshl_b32 s50, s45, 10
    s_lshl_b32 s51, s43, 8
    s_add_u32 s50, s50, s51
    s_add_u32 s50, s50, {STATS + FAST}
    v_lshlrev_b32 v28, 4, v2
    """.replace("OVL", "s_nop 0" if overlay else "s_add_u32 s54, s52, s3\ns_add_u32 s55, s53, s3\nv_mov_b32 v29, v27"))
    e(f"""
    s_lshl_b32 s50, s45, 10
    s_add_u32 s50, s50, {STATS + FAST}
    buffer_load_dwordx4 v[32:35], v24, s[36:39], s50 offen sc1
    s_lshl_b32 s50, s45, 7
    s_add_u32 s50, s50, {TOK + FAST}
    buffer_load_dword v32, v5, s[36:39], s50 offen sc1
    """)
    if prest:
        for ct in range(2):
            for rt in range(2):
                e(f"buffer_store_dwordx4 v[32:35], v27, s[36:39], s{54 + rt} offen offset:{64*ct}")
        e("buffer_store_dwordx4 v[32:35], v28, s[36:39], s50 offen")
    spin(C_PART, 8, 6, 7)
    e("s_waitcnt vmcnt(0)")
    stamp(2)
    RT = 32
    for i in range(4):
        for w in range(8):
            r = RT + 32 * i + 4 * w
            e(f"ds_read_b128 v[{r}:{r+3}], v{26 if w < 4 else 25} offset:{(w % 4)*16384+i*1024}")
        e("s_waitcnt lgkmcnt(0)")
    e(f"ds_write_b32 v6, v21 offset:{F_PD}")
    for i in range(4):
        for st in (4, 2, 1):
            for w in range(st):
                a = RT + 32 * i + 4 * w; b = a + 4 * st
                e(f"v_pk_add_f32 v[{a}:{a+1}], v[{a}:{a+1}], v[{b}:{b+1}]\nv_pk_add_f32 v[{a+2}:{a+3}], v[{a+2}:{a+3}], v[{b+2}:{b+3}]")
        for r in range(4):
            a = RT + 32 * i + r
            e(f"v_add_u32 v{a}, {1 << (QTB-1)}, v{a}\nv_and_b32 v{a}, s96, v{a}")
    spin(F_N, 1, 6, 7)
    e(f"""
    ds_read_b64 v[10:11], v17
    s_waitcnt lgkmcnt(0)
    v_readfirstlane_b32 s98, v10
    v_readfirstlane_b32 s99, v11
    s_nop 3
    """)
    qtags(98)
    stamp(1)
    e("s_getreg_b32 s51, hwreg(HW_REG_XCC_ID)\ns_and_b32 s51, s51, 15\ns_add_u32 s51, s51, 1\ns_xor_b32 s51, s51, s57")
    for i in range(4):
        for r in range(4):
            a = RT + 32 * i + r
            e(f"v_or_b32 v{8+4*i+r}, s{56+r}, v{a}")
            e(f"v_or_b32 v{a}, s{51 if r == 1 else 56+r}, v{a}")
    for ct in range(2):
        for rt in range(2):
            a = RT + 32 * (2 * ct + rt)
            e(f"buffer_store_dwordx4 v[{a}:{a+3}], v29, s[36:39], s{54 + rt} offen offset:{64*ct}")
    e("s_mov_b32 s46, s52\ns_mov_b32 s47, s53\ns_nop 1")
    stamp(3)
    e("s_branch L_wo")
    g.label("L_w10")
    srd(32, 76, 256)
    e(f"""
    s_lshl_b64 s[98:99], s[98:99], 1
    s_or_b32 s98, s98, 1
    s_or_b32 s99, s99, 0x80000000
    s_cmp_lg_u32 s2, 0
    s_cbranch_scc1 L_n0
    LEAD
    """.replace("LEAD", """v_mov_b32 v28, s98
    v_mov_b32 v29, s99
    v_mov_b32 v30, 0
    v_mov_b32 v31, 0
    s_mov_b64 exec, 1
    buffer_atomic_cmpswap_x2 v[28:31], v5, s[32:35], 0 offen sc0 sc1
    s_mov_b64 exec, -1
    s_barrier
    s_waitcnt vmcnt(0)
    v_readfirstlane_b32 s50, v28
    v_readfirstlane_b32 s51, v29
    s_nop 3
    s_cmp_lt_i32 s51, 0
    s_cselect_b32 s98, s50, s98
    s_cselect_b32 s99, s51, s99
    s_branch L_n1""" if cas else """v_mov_b32 v22, s98
    v_mov_b32 v23, s99
    s_mov_b64 exec, 1
    buffer_store_dwordx2 v[22:23], v5, s[32:35], 0 offen sc0 sc1
    s_mov_b64 exec, -1
    s_barrier
    s_branch L_n1"""))
    g.label("L_n0")
    if snonce:
        e("s_barrier\ns_mov_b32 s61, 0")
        g.label("L_auxn")
        e(f"""
        s_sleep {snonce}
        s_load_dwordx2 s[98:99], s[76:77], 0 glc
        s_waitcnt lgkmcnt(0)
        s_cmp_lt_i32 s99, 0
        s_cbranch_scc1 L_n1
        s_add_u32 s61, s61, 1
        s_cmp_lt_u32 s61, {spin_limit}
        s_cbranch_scc1 L_auxn
        """)
    else:
        if nwait:
            e("s_barrier")
            spin(C_PART, nwait, 6, 7)
            e("buffer_load_dwordx2 v[22:23], v5, s[32:35], 0 offen sc1\ns_mov_b32 s61, 0")
        else:
            e("buffer_load_dwordx2 v[22:23], v5, s[32:35], 0 offen sc1\ns_barrier\ns_mov_b32 s61, 0")
        g.label("L_auxn")
        e(f"""
        s_waitcnt vmcnt(0)
        v_readfirstlane_b32 s98, v22
        v_readfirstlane_b32 s99, v23
        s_nop 3
        s_cmp_lt_i32 s99, 0
        s_cbranch_scc1 L_n1
        buffer_load_dwordx2 v[22:23], v5, s[32:35], 0 offen sc1
        s_add_u32 s61, s61, 1
        s_cmp_lt_u32 s61, {spin_limit}
        s_cbranch_scc1 L_auxn
        """)
    g.label("L_n1")
    stamp(1)
    e(f"""
    v_mov_b32 v22, s98
    v_mov_b32 v23, s99
    ds_write_b64 v17, v[22:23]
    s_waitcnt lgkmcnt(0)
    ds_write_b32 v6, v21 offset:{F_N}
    s_lshl_b32 s50, s45, 14
    s_add_u32 s50, s50, {QWS}
    s_lshl_b32 s51, s45, {15 if overlay else 14}
    s_add_u32 s51, s51, {MSG1 + FAST if overlay else QWS + FAST}
    v_lshlrev_b32 v16, 3, v1
    v_add_u32 v16, {QL}, v16
    v_lshrrev_b32 v18, 5, v1
    v_lshlrev_b32 v18, 13, v18
    v_bfe_u32 v19, v1, 3, 2
    v_lshl_add_u32 v18, v19, 11, v18
    v_and_b32 v19, 7, v1
    v_lshl_add_u32 v18, v19, 6, v18
    """)
    qtags(98)
    e("s_getreg_b32 s53, hwreg(HW_REG_XCC_ID)\ns_and_b32 s53, s53, 15\ns_add_u32 s53, s53, 1\ns_xor_b32 s53, s53, s57\ns_mov_b32 s52, s57")
    spin(F_PD, 1, 6, 7)
    e("s_mov_b32 s61, 0")
    stamp(3)
    g.label("L_aux4")
    e(f"s_and_b32 s54, s61, {qsm}\ns_cmp_eq_u32 s54, {qsm}\ns_cselect_b32 s54, s50, s51\ns_cselect_b32 s57, s52, s53\ns_cselect_b32 s49, 1, {1 if forceslow else 2}")
    if probe:
        e(f"""
        buffer_load_dwordx4 v[{RT}:{RT+3}], v18, s[36:39], s54 offen sc1
        s_waitcnt vmcnt(0)
        v_xor_b32 v{RT}, s56, v{RT}
        v_xor_b32 v{RT+1}, s57, v{RT+1}
        v_xor_b32 v{RT+2}, s58, v{RT+2}
        v_xor_b32 v{RT+3}, s59, v{RT+3}
        v_or3_b32 v7, v{RT}, v{RT+1}, v{RT+2}
        v_or_b32 v7, v7, v{RT+3}
        """)
        check(7, "L_aux4b", "L_aux4", spin_limit, mask=QMASK)
        g.label("L_aux4b")
    for i in range(16):
        if i % 4 == 0: e(f"s_add_u32 s55, s54, {1024*i}")
        e(f"buffer_load_dwordx4 v[{RT+4*i}:{RT+4*i+3}], v24, s[36:39], s55 offen offset:{(i % 4) * 1024} sc1")
    e("s_waitcnt vmcnt(0)")
    for i in range(64):
        e(f"v_xor_b32 v{RT+i}, s{56 + i % 4}, v{RT+i}")
    e(f"v_or3_b32 v7, v{RT}, v{RT+1}, v{RT+2}")
    for i in range(3, 63, 2):
        e(f"v_or3_b32 v7, v7, v{RT+i}, v{RT+i+1}")
    e(f"v_or_b32 v7, v7, v{RT+63}")
    check(7, "L_aux5", "L_aux4", spin_limit, mask=QMASK)
    g.label("L_aux5")
    for i in range(8):
        a = RT + 4 * i; b = a + 32
        e(f"""
        v_pk_add_f32 v[{a}:{a+1}], v[{a}:{a+1}], v[{b}:{b+1}]
        v_pk_add_f32 v[{a+2}:{a+3}], v[{a+2}:{a+3}], v[{b+2}:{b+3}]
        v_cvt_pk_bf16_f32 v{a}, v{a}, v{a+1}
        v_cvt_pk_bf16_f32 v{a+1}, v{a+2}, v{a+3}
        ds_write_b64 v16, v[{a}:{a+1}] offset:{512*i}
        """)
    e(f"v_mov_b32 v21, s49\ns_waitcnt lgkmcnt(0)\nds_write_b32 v6, v21 offset:{F_Q}\ns_waitcnt lgkmcnt(0)")
    e(f"""
    s_lshl_b32 s46, s45, 7
    s_add_u32 s46, s46, {TOK}
    s_lshl_b32 s50, s43, 4
    s_add_u32 s50, s50, s46
    s_add_u32 s51, s50, s3
    s_mov_b64 exec, 1
    buffer_store_dwordx2 v[22:23], v5, s[36:39], s51 offen
    s_cmp_eq_u32 s49, 2
    s_cbranch_scc1 L_tk1
    buffer_store_dwordx2 v[22:23], v5, s[36:39], s50 offen sc1
    """)
    g.label("L_tk1")
    e("s_mov_b64 exec, -1")
    stamp(4)
    g.label("L_wo")
    e("s_setprio 1")
    for i in range(32):
        if i >= THW: g.wait(f"wa{i-THW}")
        wo_issue(i, "wa")
    stamp(5)
    FR = WB; A = FR
    e(f"""
    s_cmp_lg_u32 s44, 8
    s_cbranch_scc1 L_tr
    s_setprio 3
    s_mov_b32 s61, 0
    """)
    g.label("L_dq")
    e(f"""
    ds_read_b64 v[28:29], v6 offset:{PROG}
    ds_read_b32 v30, v6 offset:{F_Q}
    s_waitcnt lgkmcnt(0)
    v_min_u32 v28, v28, v29
    v_readfirstlane_b32 s60, v30
    v_readfirstlane_b32 s50, v28
    s_nop 3
    s_cmp_eq_u32 s60, 2
    s_cbranch_scc1 L_dq2
    s_cmp_eq_u32 s60, 1
    s_cbranch_scc1 L_dq1
    s_cmp_ge_u32 s50, 8
    s_cbranch_scc1 L_dq1
    s_sleep 2
    s_add_u32 s61, s61, 1
    s_cmp_lt_u32 s61, {spin_limit * 20}
    s_cbranch_scc1 L_dq
    """)
    g.label("L_dq1")
    for ct in range(2):
        for rt in range(2):
            a2 = 8 + 4 * (2 * ct + rt)
            e(f"buffer_store_dwordx4 v[{a2}:{a2+3}], v27, s[36:39], s{46 + rt} offen offset:{64*ct} sc1")
    e("s_waitcnt vmcnt(0)")
    g.label("L_dq2")
    spin(F_Q, 1, 6, 7)
    e(f"""
    s_lshl_b32 s46, s45, 7
    s_add_u32 s46, s46, {TOK}
    v_lshlrev_b32 v28, 4, v3
    v_mov_b32 v29, 1
    s_mov_b32 s61, 0
    """)
    g.label("L_tk2")
    e(f"""
    s_and_b32 s55, s61, {ssm}
    s_cmp_eq_u32 s55, {ssm}
    s_cselect_b32 s55, 0, s3
    s_add_u32 s55, s55, s46
    buffer_load_dwordx2 v[30:31], v28, s[36:39], s55 offen sc1
    s_waitcnt vmcnt(0)
    v_xor_b32 v30, s98, v30
    v_xor_b32 v31, s99, v31
    v_or_b32 v30, v30, v31
    v_cmp_eq_u32 vcc, 0, v30
    s_nop 3
    s_cmp_eq_u64 vcc, -1
    s_cbranch_scc1 L_tk3
    s_add_u32 s61, s61, 1
    s_cmp_lt_u32 s61, {spin_limit}
    s_cbranch_scc1 L_tk2
    """)
    g.label("L_tk3")
    e(f"ds_write_b32 v6, v29 offset:{F_QC}\ns_waitcnt lgkmcnt(0)")
    e(f"""
    v_lshlrev_b32 v{FR+21}, 4, v2
    s_lshl_b32 s50, s45, 10
    s_add_u32 s50, s50, {STATS}
    v_lshl_add_u32 v{FR+22}, v3, 8, v{FR+21}
    v_lshlrev_b32 v{FR+23}, 2, v1
    v_add_u32 v{FR+23}, {SCL}, v{FR+23}
    v_mov_b32 v{FR+24}, 1
    """)
    spin(C_L, 8, 6, 7)
    e("s_mov_b32 s61, 0")
    g.label("L_st6")
    e(f"""
    s_and_b32 s55, s61, {ssm}
    s_cmp_eq_u32 s55, {ssm}
    s_cselect_b32 s55, 0, s3
    s_add_u32 s55, s55, s50
    buffer_load_dwordx4 v[{A}:{A+3}], v{FR+22}, s[36:39], s55 offen sc1
    s_waitcnt vmcnt(0)
    v_xor_b32 v{A+2}, s98, v{A+2}
    v_xor_b32 v{A+3}, s99, v{A+3}
    v_or_b32 v{A+2}, v{A+2}, v{A+3}
    v_cmp_eq_u32 vcc, 0, v{A+2}
    s_nop 3
    s_cmp_eq_u64 vcc, -1
    s_cbranch_scc1 L_st7
    s_add_u32 s61, s61, 1
    s_cmp_lt_u32 s61, {spin_limit}
    s_cbranch_scc1 L_st6
    """)
    g.label("L_st7")
    stamp(6)
    e(f"v_mov_b32 v{A+4}, v{A}")
    xreduce(A + 4, A + 5, "v_max_f32")
    e(f"""
    v_sub_f32 v{A}, v{A}, v{A+4}
    v_exp_f32 v{A+5}, v{A}
    s_nop 0
    v_mul_f32 v{A}, v{A+5}, v{A+1}
    """)
    xreduce(A, A + 1, "v_add_f32")
    e(f"""
    v_rcp_f32 v{A}, v{A}
    s_nop 0
    v_mul_f32 v{A+5}, v{A+5}, v{A}
    ds_write_b32 v{FR+23}, v{A+5}
    s_waitcnt lgkmcnt(0)
    ds_write_b32 v6, v{FR+24} offset:{F_SCL}
    s_waitcnt lgkmcnt(0)
    """)
    g.label("L_tr")
    e("s_setprio 0\ns_waitcnt vmcnt(0)")
    g.label("L_tr2")
    e("s_mov_b32 s52, 0x05040100\ns_mov_b32 s53, 0x07060302")
    for j in range(4):
        src = WB + 32 * (j + 1); dst = WB + 32 * j
        for jc in range(8):
            for p in range(4):
                a = src + 4 * (2 * p) + (jc >> 1); b = src + 4 * (2 * p + 1) + (jc >> 1)
                e(f"v_perm_b32 v{dst+4*jc+p}, v{b}, v{a}, s{52 + (jc & 1)}")
    FR = WB + 128
    spin(F_N, 1, 6, FR + 26)
    e(f"""
    v_mov_b32 v{FR+28}, {NON}
    v_and_b32 v4, 3, v2
    v_lshlrev_b32 v4, 8, v4
    v_lshl_add_u32 v4, v3, 4, v4
    v_add_u32 v4, {OB}, v4
    ds_read_b64 v[{FR+26}:{FR+27}], v{FR+28}
    v_lshrrev_b32 v{FR+29}, 1, v2
    v_lshlrev_b32 v{FR+29}, 13, v{FR+29}
    v_and_b32 v0, 1, v2
    v_lshl_add_u32 v{FR+29}, v0, 6, v{FR+29}
    v_lshl_add_u32 v{FR+29}, v3, 4, v{FR+29}
    s_lshl_b32 s50, s42, 18
    s_lshl_b32 s51, s48, 16
    s_add_u32 s50, s50, s51
    s_add_u32 s50, s50, s63
    s_add_u32 s96, s50, {MSG2}
    v_and_b32 v0, 1, v3
    v_cmp_eq_u32 s[4:5], 1, v0
    v_cmp_le_u32 s[6:7], 2, v3
    s_mov_b32 s98, {(~TMASK) & 0xffffffff}
    v_lshrrev_b32 v0, 5, v1
    v_and_b32 v{FR+25}, 31, v1
    v_lshlrev_b32 v{FR+24}, 12, v0
    v_lshl_add_u32 v{FR+24}, v{FR+25}, 4, v{FR+24}
    s_lshl_b32 s50, s45, 15
    s_lshl_b32 s51, s43, 13
    s_add_u32 s50, s50, s51
    s_lshl_b32 s51, s48, 9
    s_add_u32 s50, s50, s51
    s_add_u32 s54, s50, {MSG1}
    v_lshlrev_b32 v{FR+25}, 1, v{FR+25}
    v_lshl_add_u32 v{FR+25}, v0, 9, v{FR+25}
    s_lshl_b32 s50, s48, 6
    s_add_u32 s50, s50, {OB}
    v_add_u32 v{FR+25}, s50, v{FR+25}
    s_waitcnt lgkmcnt(0)
    v_readfirstlane_b32 s50, v{FR+26}
    v_readfirstlane_b32 s51, v{FR+27}
    s_nop 3
    """)
    stags(50, 51)
    e("s_bitcmp0_b32 s44, 0\ns_cbranch_scc1 L_nodrain")
    for cnt, val in drain:
        e(f"s_waitcnt vmcnt({cnt})\nv_mov_b32 v5, {val}\nds_write_b32 v7, v5 offset:{PROG}")
    stamp(5)
    e("s_setprio 0")
    g.label("L_nodrain")
    e(f"v_mov_b32 v5, v{FR+29}")
    spin(F_SCL, 1, 6, FR + 26, sleep=2)
    e(f"""
    v_lshrrev_b32 v{FR+26}, 5, v1
    v_lshlrev_b32 v{FR+26}, 7, v{FR+26}
    s_lshl_b32 s50, s43, 4
    s_add_u32 s50, s50, {SCL}
    v_add_u32 v{FR+26}, s50, v{FR+26}
    ds_read_b128 v[{FR+16}:{FR+19}], v{FR+26}
    ds_read_b128 v[{FR+20}:{FR+23}], v{FR+26} offset:64
    """)
    spin(PROG, 8, 6, FR + 26, sleep=2, two=True)
    e("s_mov_b32 s61, 0")
    stamp(7)
    R = FR
    g.label("L_m1l")
    e(f"""
    s_and_b32 s55, s61, {m1sm}
    s_cmp_eq_u32 s55, {m1sm}
    s_cselect_b32 s55, 0, s3
    s_add_u32 s55, s55, s54
    buffer_load_dwordx4 v[{R}:{R+3}], v{FR+24}, s[36:39], s55 offen sc1
    buffer_load_dwordx4 v[{R+4}:{R+7}], v{FR+24}, s[36:39], s55 offen offset:2048 sc1
    s_waitcnt vmcnt(0)
    """)
    for i in range(8):
        e(f"v_xor_b32 v{R+i}, s{56 + i % 4}, v{R+i}")
    e(f"""
    v_or3_b32 v6, v{R}, v{R+1}, v{R+2}
    v_or3_b32 v6, v6, v{R+3}, v{R+4}
    v_or3_b32 v6, v6, v{R+5}, v{R+6}
    v_or_b32 v6, v6, v{R+7}
    """)
    check(6, "L_m1g", "L_m1l", spin_limit)
    g.label("L_m1g")
    stamp(10)
    e(f"""
    v_pk_mul_f32 v[{R}:{R+1}], v[{R}:{R+1}], v[{FR+16}:{FR+17}]
    v_pk_mul_f32 v[{R+2}:{R+3}], v[{R+2}:{R+3}], v[{FR+18}:{FR+19}]
    v_pk_fma_f32 v[{R}:{R+1}], v[{R+4}:{R+5}], v[{FR+20}:{FR+21}], v[{R}:{R+1}]
    v_pk_fma_f32 v[{R+2}:{R+3}], v[{R+6}:{R+7}], v[{FR+22}:{FR+23}], v[{R+2}:{R+3}]
    """)
    xsum4(R, R + 4, sws=("v_permlane32_swap_b32",))
    e(f"""
    v_cvt_pk_bf16_f32 v{R+8}, v{R}, v{R+1}
    v_cvt_pk_bf16_f32 v{R+9}, v{R+2}, v{R+3}
    s_nop 0
    v_cndmask_b32 v{R+8}, v{R+8}, v{R+9}, s[6:7]
    ds_write_b16 v{FR+25}, v{R+8}
    ds_write_b16_d16_hi v{FR+25}, v{R+8} offset:256
    s_waitcnt lgkmcnt(0)
    s_barrier
    """)
    stamp(8)
    AF = FR; OA0 = FR + 16
    for j in range(4):
        e(f"ds_read_b128 v[{AF+4*j}:{AF+4*j+3}], v4 offset:{64*j}")
    OA1 = WB + 32
    def epi(OA, t0, h):
        L = []
        for r in range(4):
            L.append(f"v_cndmask_b32 v{t0+r}, v{OA+r}, v{OA+4+r}, s[4:5]")
            L.append(f"v_cndmask_b32 v{t0+4+r}, v{OA+8+r}, v{OA+12+r}, s[4:5]")
        for r in range(4):
            L.append(f"v_cndmask_b32 v{t0+r}, v{t0+r}, v{t0+4+r}, s[6:7]")
        for r in range(4):
            L.append(f"v_and_b32 v{t0+r}, s98, v{t0+r}"); L.append(f"v_or_b32 v{t0+r}, s{56+r}, v{t0+r}")
        L.append(f"buffer_store_dwordx4 v[{t0}:{t0+3}], v5, s[36:39], s96 offen offset:{128*h} sc1")
        return L
    for j in range(4):
        e(f"s_waitcnt lgkmcnt({3-j})")
        for q in range(4):
            c = "0" if j == 0 else f"v[{OA0+4*q}:{OA0+4*q+3}]"
            b = WB + 32 * j + 4 * q
            e(f"v_mfma_f32_16x16x32_bf16 v[{OA0+4*q}:{OA0+4*q+3}], v[{AF+4*j}:{AF+4*j+3}], v[{b}:{b+3}], {c}")
    ep0 = epi(OA0, WB, 0)
    n = 0
    for j in range(4):
        for q in range(4):
            c = "0" if j == 0 else f"v[{OA1+4*q}:{OA1+4*q+3}]"
            b = WB + 32 * j + 4 * (4 + q)
            e(f"v_mfma_f32_16x16x32_bf16 v[{OA1+4*q}:{OA1+4*q+3}], v[{AF+4*j}:{AF+4*j+3}], v[{b}:{b+3}], {c}")
            n += 1
            if n >= 8:
                for _ in range(3):
                    if ep0: e(ep0.pop(0))
    while ep0: e(ep0.pop(0))
    g.nop(8)
    for ln in epi(OA1, WB + 8, 1): e(ln)
    stamp(9)
    if ackwait: e("s_waitcnt vmcnt(0)")
    if wb:
        e(f"s_and_b32 s50, s41, {wb - 1}\ns_lshl_b32 s50, s50, 4\ns_add_u32 s50, s50, s44\ns_cmp_lg_u32 s50, 10\ns_cbranch_scc1 L_nowb\nbuffer_wbl2 sc1")
        g.label("L_nowb")
    e(f"v_mov_b32 v6, {SYN}\nv_mov_b32 v7, 1\ns_mov_b64 exec, 1\nds_add_u32 v6, v7 offset:{C_M2}\ns_mov_b64 exec, -1")
    stamp_store()

    hdr = f"""; Fused GQA decode block (q-proj -> split-KV attention -> out-proj) in ONE launch, 256 workgroups x 12 waves.
; @launch grid=(256,1,1) block=({64*NW},1,1) lds={LDS_TOTAL}
.amdgcn_target "amdgcn-amd-amdhsa--gfx950"
.text
.globl {KNAME}
.p2align 8
.type {KNAME},@function
{KNAME}:
"""
    ftr = f"""L_done:
    s_endpgm
.section .rodata,"a"
.p2align 6
.amdhsa_kernel {KNAME}
  .amdhsa_next_free_vgpr 168
  .amdhsa_next_free_sgpr 102
  .amdhsa_accum_offset 168
  .amdhsa_group_segment_fixed_size 0
  .amdhsa_kernarg_size 64
  .amdhsa_user_sgpr_count 2
  .amdhsa_user_sgpr_kernarg_segment_ptr 1
  .amdhsa_system_sgpr_workgroup_id_x 1
  .amdhsa_float_denorm_mode_32 3
.end_amdhsa_kernel
"""
    body = "\n".join(l for l in g.text().split("\n") if l.strip()) + "\n"
    return hdr + body + ftr

if __name__ == "__main__":
    open("g39.s", "w").write(gen())
    open("g39_st.s", "w").write(gen(stamps=True))
```

```python
import sys
from gen1 import G, KNAME

STATS = 0x80000
TOK = 0xA0000
MSG1 = 0x100000
MSG2 = 0x300000
QWS = 0x600000
DBGA = 0x800000
FAST = 0x1000000
AUX1 = 131072
AUX2 = 147456
MX = AUX2
LS = AUX2 + 512
SCL = AUX2 + 1024
NON = AUX2 + 1536
SYN = AUX2 + 1600
PROG = 0
C_PART, F_PD, F_Q, C_M, C_L, F_N, F_SCL = [8 + 4 * i for i in range(7)]
C_KR = 40
C_M2 = 56
F_QC = 60
OB = AUX2 + 2048
QL = AUX2 + 4096
RED = AUX2 + 8192
LDS_TOTAL = 163840
TAGB = 11
TMASK = (1 << TAGB) - 1
QTB = 7
QMASK = (1 << QTB) - 1
NW = 12

def gen(stamps=False, spin_limit=20000, THW=8, WS=(32, 32, 20, 18, 16, 14, 12, 10), wo_start=1, wopol="", wqpol="", xpol="",
        kvpol="nt", ldprio=3, ld_early=0, forceslow=False, probe=False, qsm=15, ssm=15, m1sm=31, prest=False, overlay=True, pend=False, ackwait=True, m2sleep=0, nwait=0, wb=0, cas=False, snonce=0, early_lead=True, npipe=4, psleep=4):
    g = G()
    e = g.e
    nst = [0]
    def stamp(idx=None):
        if not stamps: return
        i = nst[0] if idx is None else idx
        if idx is None: nst[0] += 1
        assert i < 14
        e(f"s_memrealtime s[100:101]\ns_waitcnt lgkmcnt(0)\ns_mov_b32 s{80+i}, s100")
    def stamp_store():
        if not stamps: return
        e(f"s_mul_i32 s50, s2, {NW}\ns_add_u32 s50, s50, s44\ns_lshl_b32 s50, s50, 6\ns_add_u32 s50, s50, {DBGA}\nv_mov_b32 v24, 0\ns_mov_b64 exec, 1")
        for i in range(0, 16, 4):
            for k in range(4): e(f"v_mov_b32 v{28+k}, s{80+i+k}")
            e(f"buffer_store_dwordx4 v[28:31], v24, s[36:39], s50 offen offset:{4*i}\ns_nop 1")
    def xreduce(r, tmp, op):
        for sw in ("v_permlane32_swap_b32", "v_permlane16_swap_b32"):
            e(f"v_mov_b32 v{tmp}, v{r}\ns_nop 1\n{sw} v{r}, v{tmp}\ns_nop 0\n{op} v{r}, v{r}, v{tmp}")
    def xsum4(a, t, sws=("v_permlane32_swap_b32", "v_permlane16_swap_b32")):
        for sw in sws:
            for i in range(4): e(f"v_mov_b32 v{t+i}, v{a+i}")
            e("s_nop 0")
            for i in range(4): e(f"{sw} v{a+i}, v{t+i}")
            e("s_nop 0")
            e(f"v_pk_add_f32 v[{a}:{a+1}], v[{a}:{a+1}], v[{t}:{t+1}]\nv_pk_add_f32 v[{a+2}:{a+3}], v[{a+2}:{a+3}], v[{t+2}:{t+3}]")
    def spin(word, val, vsyn, vtmp, sleep=1, two=False):
        l1, l2 = g.newlabel("Lsp"), g.newlabel("Lspd")
        e("s_mov_b32 s61, 0")
        g.label(l1)
        if two:
            e(f"ds_read_b64 v[{vtmp}:{vtmp+1}], v{vsyn} offset:{word}\ns_waitcnt lgkmcnt(0)\nv_min_u32 v{vtmp}, v{vtmp}, v{vtmp+1}\ns_nop 0")
        else:
            e(f"ds_read_b32 v{vtmp}, v{vsyn} offset:{word}\ns_waitcnt lgkmcnt(0)")
        e(f"""
        v_readfirstlane_b32 s60, v{vtmp}
        s_nop 3
        s_cmp_ge_u32 s60, {val}
        s_cbranch_scc1 {l2}
        {f's_sleep {sleep}' if sleep else ''}
        s_add_u32 s61, s61, 1
        s_cmp_lt_u32 s61, {spin_limit * 20}
        s_cbranch_scc1 {l1}
        """)
        g.label(l2)
    def arrive(word, vsyn, vone):
        e(f"s_waitcnt lgkmcnt(0)\ns_mov_b64 exec, 1\nds_add_u32 v{vsyn}, v{vone} offset:{word}\ns_mov_b64 exec, -1")
    def srd(d, p, size):
        e(f"s_mov_b32 s{d}, s{p}\ns_mov_b32 s{d+1}, s{p+1}\ns_mov_b32 s{d+2}, {size}\ns_mov_b32 s{d+3}, 0x00020000")
    def stags(lo, hi):
        e(f"""
        s_and_b32 s56, s{lo}, {TMASK}
        s_bfe_u32 s57, s{lo}, {TAGB | (TAGB << 16)}
        s_lshr_b64 s[58:59], s[{lo}:{hi}], {2*TAGB}
        s_and_b32 s58, s58, {TMASK}
        s_bfe_u32 s59, s{hi}, {(3*TAGB-32) | (TAGB << 16)}
        """)
    def qtags(lo):
        for i in range(4):
            e(f"s_bfe_u32 s{56+i}, s{lo}, {(QTB*i) | (QTB << 16)}")
        e("s_xor_b32 s56, s56, 1")
    def check(vreg, lok, lloop, lim, slp=0, mask=TMASK):
        e(f"""
        v_and_b32 v{vreg}, {mask}, v{vreg}
        v_cmp_eq_u32 vcc, 0, v{vreg}
        s_nop 3
        s_cmp_eq_u64 vcc, -1
        s_cbranch_scc1 {lok}
        {f's_sleep {slp}' if slp else ''}
        s_add_u32 s61, s61, 1
        s_cmp_lt_u32 s61, {lim}
        s_cbranch_scc1 {lloop}
        """)
    WB = 8
    def wo_issue(i, tagp):
        j, ee = i // 8, i % 8
        r = WB + 32 * (j + 1) + 4 * ee
        off = (32 * j + ee) * 1024
        e(f"s_add_u32 s50, s97, {off & ~4095}")
        g.vm(f"buffer_load_dwordx4 v[{r}:{r+3}], v4, s[24:27], s50 offen offset:{off & 4095} {wopol}", f"{tagp}{i}")
    e(f"""
    s_cmp_ge_u32 s2, 256
    s_cbranch_scc1 L_done
    s_load_dwordx16 s[64:79], s[0:1], 0
    s_memrealtime s[98:99]
    v_and_b32 v1, 63, v0
    v_lshrrev_b32 v4, 6, v0
    v_and_b32 v2, 15, v0
    v_bfe_u32 v3, v0, 4, 2
    v_readfirstlane_b32 s44, v4
    s_and_b32 s40, s2, 7
    s_lshr_b32 s41, s2, 3
    s_lshr_b32 s42, s41, 2
    s_and_b32 s43, s41, 3
    s_lshl_b32 s45, s42, 3
    s_add_u32 s45, s45, s40
    s_lshl_b32 s51, s40, 2
    s_add_u32 s51, s51, s43
    s_lshl_b32 s63, s51, 8
    s_mov_b32 s3, {FAST}
    v_mov_b32 v6, {SYN}
    s_cmp_lt_u32 s44, 8
    s_cbranch_scc1 L_cw
    s_sub_u32 s48, s44, 8
    v_lshlrev_b32 v4, 13, v3
    v_lshl_add_u32 v4, v2, 4, v4
    s_lshl_b32 s97, s63, 9
    s_lshl_b32 s50, s48, 8
    s_add_u32 s97, s97, s50
    s_bitcmp0_b32 s44, 0
    s_cbranch_scc1 L_op
    """)
    e(f"""
    s_setprio {ldprio}
    s_lshr_b32 s49, s48, 1
    s_lshl_b32 s46, s45, 2
    s_add_u32 s46, s46, s43
    s_lshl_b32 s46, s46, 17
    s_lshl_b32 s47, s49, 16
    s_add_u32 s46, s46, s47
    s_lshl_b32 s50, s49, 2
    v_add_u32 v7, s50, v6
    s_add_u32 s94, s41, s40
    v_xor_b32 v8, v2, v3
    v_lshlrev_b32 v8, 4, v8
    v_lshl_add_u32 v8, v3, 8, v8
    v_lshlrev_b32 v12, 1, v3
    v_xor_b32 v12, v2, v12
    v_lshlrev_b32 v12, 4, v12
    v_lshl_add_u32 v12, v3, 8, v12
    v_xor_b32 v9, 64, v8
    v_xor_b32 v10, 0x80, v8
    v_xor_b32 v11, 0xc0, v8
    v_xor_b32 v13, 0x80, v12
    s_add_u32 s95, s42, s49
    """)
    for x in range(4):
        e(f"s_add_u32 s50, s94, {x}\ns_and_b32 s50, s50, 3\ns_lshl_b32 s50, s50, 12\ns_add_u32 s{52+x}, s50, s46")
        e(f"s_add_u32 s50, s95, {x}\ns_and_b32 s50, s50, 3\ns_lshl_b32 s{56+x}, s50, 10")
    e("s_waitcnt lgkmcnt(0)")
    srd(12, 66, 0x2000000); srd(16, 68, 0x2000000); srd(24, 72, 0x400000); srd(36, 78, 0x10000000)
    stamp(0)
    if not ld_early: e("s_barrier")
    kv = []; woi = [0]; sig = [0]; known = [0]
    for ph in range(2):
        for t in range(4):
            if ph == 0 and t == 3: spin(F_PD, 1, 6, 15)
            if ph == 1: spin(C_KR + 4 * t, 8, 6, 15)
            for k in range(4):
                for u in range(4):
                    n = len(kv)
                    if ld_early and n == ld_early: e("s_barrier")
                    Wc = WS[n // 16]
                    if n >= Wc and n - Wc + 1 > known[0]:
                        g.wait(kv[n - Wc]); known[0] = n - Wc + 1
                    e(f"s_add_u32 m0, s47, {16384*u + 4096*t + 1024*k}\ns_add_u32 s50, s{52 + (t+u)%4}, s{56 + (k+u)%4}\ns_add_u32 s50, s50, {16384*u}")
                    if ph == 0:
                        g.vm(f"buffer_load_dwordx4 v{8+k}, s[12:15], s50 offen {kvpol} lds", f"kv{n}")
                    else:
                        g.vm(f"buffer_load_dwordx4 v{12+(k&1)}, s[16:19], s50 offen {kvpol} lds", f"kv{n}")
                    kv.append(f"kv{n}")
                    while sig[0] < 8 and known[0] >= 16 * (sig[0] + 1):
                        sig[0] += 1
                        e(f"v_mov_b32 v14, {sig[0]}\nds_write_b32 v7, v14 offset:{PROG}")
                    gi = ph * 4 + t
                    if gi >= wo_start and woi[0] < 32 and (n % (3 if wo_start <= 1 else 2) == 0 or gi >= 6):
                        wo_issue(woi[0], "wl"); woi[0] += 1
    assert woi[0] == 32, woi[0]
    stamp(4)
    g.wait("wl31")
    e("s_branch L_tr2")
    drain = []
    while sig[0] < 8:
        drain.append((g.nvm - g.pos[kv[16 * (sig[0] + 1) - 1]], sig[0] + 1))
        sig[0] += 1

    g.label("L_cw")
    e(f"""
    s_lshl_b32 s47, s44, 14
    s_and_b32 s52, s43, 1
    s_lshr_b32 s53, s43, 1
    s_lshl_b32 s46, s52, 2
    s_add_u32 s46, s46, s44
    s_and_b32 s46, s46, 7
    s_lshl_b32 s50, s53, 3
    s_add_u32 s46, s46, s50
    v_lshrrev_b32 v14, 2, v1
    v_and_b32 v15, 3, v1
    v_lshlrev_b32 v15, 4, v15
    v_lshl_add_u32 v16, v14, 10, v15
    v_lshl_add_u32 v14, v14, 13, v15
    s_lshl_b32 s50, s46, 18
    s_lshl_b32 s51, s40, 10
    s_add_u32 s50, s50, s51
    s_lshl_b32 s51, s42, 7
    s_add_u32 s50, s50, s51
    s_lshl_b32 s51, s52, 6
    s_add_u32 s50, s50, s51
    s_lshl_b32 s51, s44, 11
    s_add_u32 s62, s51, {AUX1}
    s_lshl_b32 s51, s46, 6
    s_waitcnt lgkmcnt(0)
    """)
    if early_lead:
        e("s_or_b32 s54, s2, s44\ns_cmp_lg_u32 s54, 0\ns_cbranch_scc1 L_nolead")
        srd(32, 76, 256)
        e("""
        s_lshl_b64 s[98:99], s[98:99], 1
        s_or_b32 s98, s98, 1
        s_or_b32 s99, s99, 0x80000000
        v_mov_b32 v22, s98
        v_mov_b32 v23, s99
        v_mov_b32 v24, 0
        s_mov_b64 exec, 1
        buffer_store_dwordx2 v[22:23], v24, s[32:35], 0 offen sc0 sc1
        s_mov_b64 exec, -1
        """)
        g.label("L_nolead")
    srd(20, 70, 0x400000); srd(8, 64, 32768)
    stamp()
    e(f"""
    s_mov_b32 m0, s62
    s_add_u32 s54, s50, 0x20000
    buffer_load_dwordx4 v14, s[20:23], s50 offen {wqpol} lds
    s_add_u32 m0, s62, 1024
    s_add_u32 s55, s51, 16384
    buffer_load_dwordx4 v14, s[20:23], s54 offen {wqpol} lds
    s_add_u32 m0, s47, 12288
    s_nop 0
    buffer_load_dwordx4 v16, s[8:11], s51 offen {xpol} lds
    s_add_u32 m0, s47, 13312
    s_nop 0
    buffer_load_dwordx4 v16, s[8:11], s55 offen {xpol} lds
    s_barrier
    """)
    srd(28, 74, 32768); srd(36, 78, 0x10000000)
    e(f"""
    v_lshrrev_b32 v24, 2, v2
    v_lshl_add_u32 v24, v3, 3, v24
    v_lshlrev_b32 v24, 6, v24
    v_and_b32 v25, 3, v1
    v_lshl_add_u32 v24, v25, 3, v24
    v_add_u32 v24, s62, v24
    v_lshlrev_b32 v25, 6, v2
    v_lshl_add_u32 v25, v3, 4, v25
    v_add_u32 v25, s47, v25
    v_lshlrev_b32 v27, 4, v1
    v_add_u32 v27, s47, v27
    v_mov_b32 v20, {SYN}
    v_mov_b32 v21, 1
    s_lshr_b32 s50, s44, 2
    s_lshl_b32 s50, s50, 2
    v_add_u32 v19, s50, v20
    v_lshlrev_b32 v16, 13, v3
    v_lshl_add_u32 v16, v2, 4, v16
    s_lshl_b32 s50, s45, 15
    s_lshl_b32 s51, s43, 11
    s_add_u32 s50, s50, s51
    s_lshl_b32 s51, s44, 8
    s_add_u32 s50, s50, s51
    s_add_u32 s50, s50, {MSG1}
    v_add_u32 v16, s50, v16
    v_lshlrev_b32 v17, 8, v2
    v_lshl_add_u32 v17, v3, 4, v17
    v_add_u32 v17, {QL}, v17
    v_mov_b32 v18, {NON}
    v_xor_b32 v12, v2, v3
    v_lshlrev_b32 v12, 4, v12
    v_lshlrev_b32 v13, 8, v2
    v_add_u32 v13, s47, v13
    v_add_u32 v28, v13, v12
    v_xor_b32 v29, 64, v12
    v_add_u32 v29, v13, v29
    v_xor_b32 v30, 0x80, v12
    v_add_u32 v30, v13, v30
    v_xor_b32 v31, 0xc0, v12
    v_add_u32 v31, v13, v31
    v_mov_b32 v160, 0
    v_mov_b32 v161, 0
    v_mov_b32 v162, 0
    v_mov_b32 v163, 0
    s_waitcnt vmcnt(0)
    """)
    if prest: e("buffer_store_dwordx4 v[160:163], v16, s[36:39], s3 offen")
    stamp()
    XF = 96; WF = 104; QA = 112
    for ct in range(2):
        e(f"ds_read_b64_tr_b16 v[{WF+4*ct}:{WF+4*ct+1}], v24 offset:{32*ct}")
        e(f"ds_read_b64_tr_b16 v[{WF+4*ct+2}:{WF+4*ct+3}], v24 offset:{32*ct+256}")
    for rt in range(2):
        e(f"ds_read_b128 v[{XF+4*rt}:{XF+4*rt+3}], v25 offset:{12288 + 1024*rt}")
    e("s_waitcnt lgkmcnt(0)")
    for ct in range(2):
        for rt in range(2):
            q = QA + 4 * (2 * ct + rt)
            e(f"v_mfma_f32_16x16x32_bf16 v[{q}:{q+3}], v[{WF+4*ct}:{WF+4*ct+3}], v[{XF+4*rt}:{XF+4*rt+3}], 0")
    g.nop(8)
    for i in range(4):
        e(f"ds_write_b128 v27, v[{QA+4*i}:{QA+4*i+3}] offset:{12288 + 1024*i}")
    arrive(C_PART, 20, 21)
    stamp()
    KF = 32
    for t in range(4):
        spin(PROG, t + 1, 19, 22, sleep=2)
        for j in range(4):
            r = KF + 16 * t + 4 * j
            e(f"ds_read_b128 v[{r}:{r+3}], v{28+j} offset:{4096*t}")
        arrive(C_KR + 4 * t, 20, 21)
    stamp()
    spin(F_Q, 1, 20, 22, sleep=2)
    e("s_mov_b32 s94, s60")
    stamp()
    QF = 96; SA = 112; T = 128
    for j in range(4):
        e(f"ds_read_b128 v[{QF+4*j}:{QF+4*j+3}], v17 offset:{64*j}")
    e("ds_read_b64 v[22:23], v18")
    for j in range(4):
        e(f"s_waitcnt lgkmcnt({4-j})")
        for t in range(4):
            r = KF + 16 * t + 4 * j
            c = "0" if j == 0 else f"v[{SA+4*t}:{SA+4*t+3}]"
            e(f"v_mfma_f32_16x16x32_bf16 v[{SA+4*t}:{SA+4*t+3}], v[{r}:{r+3}], v[{QF+4*j}:{QF+4*j+3}], {c}")
    e(f"""
    s_waitcnt lgkmcnt(0)
    v_and_b32 v4, {TMASK}, v22
    v_bfe_u32 v5, v22, {TAGB}, {TAGB}
    v_alignbit_b32 v6, v23, v22, {2*TAGB}
    v_and_b32 v6, {TMASK}, v6
    v_bfe_u32 v7, v23, {3*TAGB-32}, {TAGB}
    s_mov_b32 s50, 0x3db504f3
    s_mov_b32 s51, 0xffff0000
    s_mov_b32 s99, 0x3fb8aa3b
    s_nop 1
    """)
    for p in range(8):
        a = SA + 2 * p
        e(f"""
        v_cvt_pk_bf16_f32 v{T}, v{a}, v{a+1}
        v_lshlrev_b32 v{a}, 16, v{T}
        v_and_b32 v{a+1}, s51, v{T}
        v_mul_f32 v{a}, s50, v{a}
        v_mul_f32 v{a+1}, s50, v{a+1}
        v_cvt_pk_bf16_f32 v{T}, v{a}, v{a+1}
        v_lshlrev_b32 v{a}, 16, v{T}
        v_and_b32 v{a+1}, s51, v{T}
        """)
    e(f"v_max3_f32 v{T}, v{SA}, v{SA+1}, v{SA+2}")
    for i in range(3, 15, 2):
        e(f"v_max3_f32 v{T}, v{T}, v{SA+i}, v{SA+i+1}")
    e(f"v_max_f32 v{T}, v{T}, v{SA+15}")
    xreduce(T, T + 1, "v_max_f32")
    e(f"""
    v_lshlrev_b32 v12, 5, v2
    v_add_u32 v12, {MX}, v12
    s_lshl_b32 s50, s44, 2
    v_add_u32 v13, s50, v12
    ds_write_b32 v13, v{T}
    """)
    arrive(C_M, 20, 21)
    spin(C_M, 8, 20, 22)
    e(f"ds_read_b128 v[{T+4}:{T+7}], v12\nds_read_b128 v[{T+8}:{T+11}], v12 offset:16\ns_waitcnt lgkmcnt(0)")
    e(f"""
    v_max3_f32 v{T}, v{T+4}, v{T+5}, v{T+6}
    v_max3_f32 v{T}, v{T}, v{T+7}, v{T+8}
    v_max3_f32 v{T}, v{T}, v{T+9}, v{T+10}
    v_max_f32 v{T}, v{T}, v{T+11}
    v_mul_f32 v23, s99, v{T}
    """)
    for i in range(16):
        e(f"v_fma_f32 v{SA+i}, v{SA+i}, s99, -v23")
    for i in range(16):
        e(f"v_exp_f32 v{SA+i}, v{SA+i}")
    e("s_nop 0")
    e(f"v_lshlrev_b32 v14, 3, v1\nv_add_u32 v14, s62, v14")
    for t in range(4):
        a = SA + 4 * t
        e(f"v_cvt_pk_bf16_f32 v{T+2*t}, v{a}, v{a+1}\nv_cvt_pk_bf16_f32 v{T+2*t+1}, v{a+2}, v{a+3}")
        e(f"ds_write_b64 v14, v[{T+2*t}:{T+2*t+1}] offset:{512*t}")
    for st in (8, 4, 2):
        for i in range(0, st, 2):
            a = SA + i; b = SA + i + st
            e(f"v_pk_add_f32 v[{a}:{a+1}], v[{a}:{a+1}], v[{b}:{b+1}]")
    e(f"v_add_f32 v{SA}, v{SA}, v{SA+1}")
    xreduce(SA, SA + 1, "v_add_f32")
    e(f"ds_write_b32 v13, v{SA} offset:512")
    arrive(C_L, 20, 21)
    PF = 32; BF = 112; PVA = 160; SC = 164
    e(f"""
    v_lshrrev_b32 v24, 2, v2
    v_lshl_add_u32 v24, v3, 2, v24
    v_and_b32 v25, 7, v24
    v_lshlrev_b32 v25, 1, v25
    v_bfe_u32 v27, v1, 1, 1
    s_lshl_b32 s50, s44, 1
    v_add_u32 v27, s50, v27
    v_xor_b32 v25, v25, v27
    v_lshlrev_b32 v25, 4, v25
    v_lshl_add_u32 v25, v24, 8, v25
    v_and_b32 v27, 1, v1
    v_lshl_add_u32 v25, v27, 3, v25
    v_add_u32 v26, 0x10000, v25
    v_lshlrev_b32 v27, 3, v1
    v_add_u32 v27, {AUX1}, v27
    v_and_b32 v30, 1, v3
    v_lshlrev_b32 v30, 4, v30
    v_cmp_le_u32 s[6:7], 2, v3
    v_lshlrev_b32 v19, 4, v3
    v_add_u32 v19, {SCL}, v19
    s_mov_b32 s98, {(~TMASK) & 0xffffffff}
    """)
    spin(C_L, 8, 20, 22)
    stamp()
    lnp = g.newlabel("Lnp")
    A = 128
    e(f"""
    s_cmp_lg_u32 s44, 1
    s_cbranch_scc1 {lnp}
    ds_read_b128 v[{A+8}:{A+11}], v12 offset:512
    ds_read_b128 v[{A+12}:{A+15}], v12 offset:528
    ds_read_b64 v[{A+18}:{A+19}], v18
    v_lshlrev_b32 v{A+21}, 4, v2
    s_lshl_b32 s50, s45, 10
    s_add_u32 s50, s50, {STATS}
    s_lshl_b32 s51, s43, 8
    s_add_u32 s51, s51, s50
    v_mov_b32 v{A+16}, v23
    s_waitcnt lgkmcnt(0)
    v_pk_add_f32 v[{A+8}:{A+9}], v[{A+8}:{A+9}], v[{A+10}:{A+11}]
    v_pk_add_f32 v[{A+12}:{A+13}], v[{A+12}:{A+13}], v[{A+14}:{A+15}]
    v_pk_add_f32 v[{A+8}:{A+9}], v[{A+8}:{A+9}], v[{A+12}:{A+13}]
    v_add_f32 v{A+17}, v{A+8}, v{A+9}
    s_mov_b64 exec, 0xffff
    s_add_u32 s55, s51, s3
    buffer_store_dwordx4 v[{A+16}:{A+19}], v{A+21}, s[36:39], s55 offen
    s_cmp_eq_u32 s94, 2
    s_cbranch_scc1 L_std
    buffer_store_dwordx4 v[{A+16}:{A+19}], v{A+21}, s[36:39], s51 offen sc1
    """)
    g.label("L_std")
    e("s_mov_b64 exec, -1")
    g.label(lnp)
    for k in range(4):
        for i in range(4):
            r = PF + 16 * k + 4 * i
            e(f"ds_read2st64_b64 v[{r}:{r+3}], v27 offset0:{8*i+k} offset1:{8*i+4+k}")
        if k == 1: e("s_waitcnt lgkmcnt(0)")
    first = [True]
    def pv_phase(k):
        for i in range(4):
            for hf in range(2):
                u = 2 * i + hf
                r = BF + 4 * i + 2 * hf
                e(f"ds_read_b64_tr_b16 v[{r}:{r+1}], v{25 if u < 4 else 26} offset:{(u % 4) * 16384 + 4096 * k}")
        for i in range(4):
            e(f"s_waitcnt lgkmcnt({6 - 2*i})")
            c = "0" if first[0] else f"v[{PVA}:{PVA+3}]"
            first[0] = False
            e(f"v_mfma_f32_16x16x32_bf16 v[{PVA}:{PVA+3}], v[{PF+16*k+4*i}:{PF+16*k+4*i+3}], v[{BF+4*i}:{BF+4*i+3}], {c}")
    for k in range(3):
        spin(PROG, 5 + k, 20, 22, sleep=2, two=True)
        pv_phase(k)
    stamp()
    spin(F_QC, 1, 20, 22, sleep=1)
    stamp()
    spin(PROG, 8, 20, 22, sleep=0, two=True)
    stamp()
    pv_phase(3)
    g.nop(8)
    for i in range(4):
        e(f"v_and_or_b32 v{PVA+i}, v{PVA+i}, s98, v{4+i}")
    lsd = g.newlabel("Lsd")
    e(f"""
    buffer_store_dwordx4 v[{PVA}:{PVA+3}], v16, s[36:39], s3 offen
    s_cmp_eq_u32 s94, 2
    s_cbranch_scc1 {lsd}
    buffer_store_dwordx4 v[{PVA}:{PVA+3}], v16, s[36:39], 0 offen sc1
    """)
    g.label(lsd)
    stamp()
    nst[0] = 12
    lend = g.newlabel("Lend")
    e(f"s_cmp_lg_u32 s44, 0\ns_cbranch_scc1 {lend}")
    e(f"""
    v_lshlrev_b32 v24, 4, v1
    s_lshl_b32 s50, s42, 18
    s_lshl_b32 s51, s63, 5
    s_add_u32 s50, s50, s51
    s_add_u32 s50, s50, {MSG2}
    s_add_u32 s51, s50, 4096
    v_lshlrev_b32 v25, 10, v3
    v_and_b32 v26, 3, v2
    v_lshl_add_u32 v25, v26, 1, v25
    v_bfe_u32 v26, v2, 2, 1
    v_lshl_add_u32 v25, v26, 4, v25
    v_lshrrev_b32 v26, 3, v2
    v_lshl_add_u32 v25, v26, 3, v25
    s_lshl_b32 s96, s42, 12
    s_lshr_b32 s97, s63, 3
    s_add_u32 s96, s96, s97
    s_barrier
    """)
    spin(C_M2, 4, 20, 22, sleep=1)
    e("s_mov_b32 s61, 0")
    if pend:
        ll, lg = g.newlabel("Lm2l"), g.newlabel("Lm2g")
        FB = 32; RB = 64
        e("s_mov_b32 s52, 0xff")
        g.label(ll)
        for i in range(8):
            lk = g.newlabel("Lp")
            e(f"s_bitcmp0_b32 s52, {i}\ns_cbranch_scc1 {lk}\nbuffer_load_dwordx4 v[{RB+4*i}:{RB+4*i+3}], v24, s[36:39], s{50 + i // 4} offen offset:{(i % 4) * 1024} sc1")
            g.label(lk)
        e("s_waitcnt vmcnt(0)")
        for i in range(8):
            lk = g.newlabel("Lp")
            e(f"""
            s_bitcmp0_b32 s52, {i}
            s_cbranch_scc1 {lk}
            v_xor_b32 v{FB+4*i}, v{RB+4*i}, v4
            v_xor_b32 v{FB+4*i+1}, v{RB+4*i+1}, v5
            v_xor_b32 v{FB+4*i+2}, v{RB+4*i+2}, v6
            v_xor_b32 v{FB+4*i+3}, v{RB+4*i+3}, v7
            v_or3_b32 v28, v{FB+4*i}, v{FB+4*i+1}, v{FB+4*i+2}
            v_or_b32 v28, v28, v{FB+4*i+3}
            v_and_b32 v28, {TMASK}, v28
            v_cmp_eq_u32 vcc, 0, v28
            s_nop 3
            s_cmp_eq_u64 vcc, -1
            s_cbranch_scc0 {lk}
            s_bitset0_b32 s52, {i}
            """)
            g.label(lk)
        e(f"""
        s_cmp_eq_u32 s52, 0
        s_cbranch_scc1 {lg}
        s_add_u32 s61, s61, 1
        s_cmp_lt_u32 s61, {spin_limit}
        s_cbranch_scc1 {ll}
        """)
    else:
        ll, lg = g.newlabel("Lm2l"), g.newlabel("Lm2g")
        g.label(ll)
        FB = 32
        for i in range(8):
            e(f"buffer_load_dwordx4 v[{FB+4*i}:{FB+4*i+3}], v24, s[36:39], s{50 + i // 4} offen offset:{(i % 4) * 1024} sc1")
        e("s_waitcnt vmcnt(0)")
        for i in range(32):
            e(f"v_xor_b32 v{FB+i}, v{FB+i}, v{4 + i % 4}")
        e(f"v_or3_b32 v28, v{FB}, v{FB+1}, v{FB+2}")
        for i in range(3, 31, 2):
            e(f"v_or3_b32 v28, v28, v{FB+i}, v{FB+i+1}")
        e(f"v_or_b32 v28, v28, v{FB+31}")
        check(28, lg, ll, spin_limit, m2sleep)
    g.label(lg)
    stamp()
    for st in (4, 2, 1):
        for w in range(st):
            a = FB + 4 * w; b = FB + 4 * (w + st)
            e(f"v_pk_add_f32 v[{a}:{a+1}], v[{a}:{a+1}], v[{b}:{b+1}]\nv_pk_add_f32 v[{a+2}:{a+3}], v[{a+2}:{a+3}], v[{b+2}:{b+3}]")
    xsum4(FB, FB + 4)
    e(f"""
    v_cvt_pk_bf16_f32 v28, v{FB}, v{FB+1}
    v_cvt_pk_bf16_f32 v29, v{FB+2}, v{FB+3}
    s_nop 0
    v_cndmask_b32 v28, v28, v29, s[6:7]
    v_lshrrev_b32 v28, v30, v28
    buffer_store_short v28, v25, s[28:31], s96 offen
    """)
    g.label(lend)
    stamp()
    stamp_store()
    e("s_endpgm")

    g.label("L_op")
    e(f"""
    s_setprio 3
    v_mov_b32 v5, 0
    v_mov_b32 v21, 1
    v_mov_b32 v17, {NON}
    v_lshlrev_b32 v24, 4, v1
    v_mov_b32 v27, 0
    s_mov_b32 s46, {QWS}
    s_mov_b32 s47, {QWS}
    s_waitcnt lgkmcnt(0)
    """)
    srd(36, 78, 0x10000000); srd(24, 72, 0x400000)
    stamp(0)
    e("s_cmp_lg_u32 s44, 8\ns_cbranch_scc1 L_w10")
    e(f"""
    v_lshlrev_b32 v7, 2, v2
    v_add_u32 v7, {SYN}, v7
    ds_write_b32 v7, v5
    s_lshl_b32 s50, s45, 15
    s_lshl_b32 s51, s43, 12
    s_add_u32 s50, s50, s51
    s_add_u32 s50, s50, {MSG1 + FAST}
    s_add_u32 s51, s50, 16384
    """)
    if not overlay:
        e(f"s_lshl_b32 s52, s45, 14\ns_lshl_b32 s53, s43, 12\ns_add_u32 s52, s52, s53\ns_add_u32 s52, s52, {QWS + FAST}")
        for i in range(4): e(f"buffer_load_dwordx4 v[32:35], v24, s[36:39], s52 offen offset:{i * 1024} sc1")
    for i in range(4): e(f"buffer_load_dwordx4 v[32:35], v24, s[36:39], s50 offen offset:{i * 1024} sc1")
    e("s_waitcnt lgkmcnt(0)\ns_barrier")
    for i in range(4): e(f"buffer_load_dwordx4 v[32:35], v24, s[36:39], s51 offen offset:{i * 1024} sc1")
    e(f"""
    v_add_u32 v26, 12288, v24
    v_add_u32 v25, 0x10000, v26
    v_lshrrev_b32 v27, 2, v2
    v_lshlrev_b32 v27, 17, v27
    v_and_b32 v28, 3, v2
    v_lshl_add_u32 v27, v28, 9, v27
    v_lshl_add_u32 v27, v3, 4, v27
    s_lshl_b32 s52, s40, 14
    s_lshr_b32 s53, s43, 1
    s_lshl_b32 s53, s53, 13
    s_add_u32 s52, s52, s53
    s_lshr_b32 s53, s42, 1
    s_lshl_b32 s53, s53, 11
    s_add_u32 s52, s52, s53
    s_and_b32 s53, s42, 1
    s_lshl_b32 s53, s53, 8
    s_add_u32 s52, s52, s53
    s_and_b32 s53, s43, 1
    s_lshl_b32 s53, s53, 7
    s_add_u32 s52, s52, s53
    s_lshl_b32 s53, s40, 14
    s_add_u32 s54, s52, s53
    s_add_u32 s54, s54, {MSG1 + FAST if overlay else 0}
    s_add_u32 s55, s54, 0x100000
    v_lshrrev_b32 v29, 2, v2
    v_lshl_add_u32 v29, v29, 17, v27
    s_add_u32 s52, s52, {QWS}
    s_add_u32 s53, s52, 0x80000
    OVL
    s_mov_b32 s96, {(~QMASK) & 0xffffffff}
    v_mov_b32 v32, 0
    v_mov_b32 v33, 0
    v_mov_b32 v34, 0
    v_mov_b32 v35, 0
    s_lshl_b32 s50, s45, 10
    s_lshl_b32 s51, s43, 8
    s_add_u32 s50, s50, s51
    s_add_u32 s50, s50, {STATS + FAST}
    v_lshlrev_b32 v28, 4, v2
    """.replace("OVL", "s_nop 0" if overlay else "s_add_u32 s54, s52, s3\ns_add_u32 s55, s53, s3\nv_mov_b32 v29, v27"))
    e(f"""
    s_lshl_b32 s50, s45, 10
    s_add_u32 s50, s50, {STATS + FAST}
    buffer_load_dwordx4 v[32:35], v24, s[36:39], s50 offen sc1
    s_lshl_b32 s50, s45, 7
    s_add_u32 s50, s50, {TOK + FAST}
    buffer_load_dword v32, v5, s[36:39], s50 offen sc1
    """)
    if prest:
        for ct in range(2):
            for rt in range(2):
                e(f"buffer_store_dwordx4 v[32:35], v27, s[36:39], s{54 + rt} offen offset:{64*ct}")
        e("buffer_store_dwordx4 v[32:35], v28, s[36:39], s50 offen")
    spin(C_PART, 8, 6, 7)
    e("s_waitcnt vmcnt(0)")
    stamp(2)
    RT = 32
    for i in range(4):
        for w in range(8):
            r = RT + 32 * i + 4 * w
            e(f"ds_read_b128 v[{r}:{r+3}], v{26 if w < 4 else 25} offset:{(w % 4)*16384+i*1024}")
        e("s_waitcnt lgkmcnt(0)")
    e(f"ds_write_b32 v6, v21 offset:{F_PD}")
    for i in range(4):
        for st in (4, 2, 1):
            for w in range(st):
                a = RT + 32 * i + 4 * w; b = a + 4 * st
                e(f"v_pk_add_f32 v[{a}:{a+1}], v[{a}:{a+1}], v[{b}:{b+1}]\nv_pk_add_f32 v[{a+2}:{a+3}], v[{a+2}:{a+3}], v[{b+2}:{b+3}]")
        for r in range(4):
            a = RT + 32 * i + r
            e(f"v_add_u32 v{a}, {1 << (QTB-1)}, v{a}\nv_and_b32 v{a}, s96, v{a}")
    spin(F_N, 1, 6, 7)
    e(f"""
    ds_read_b64 v[10:11], v17
    s_waitcnt lgkmcnt(0)
    v_readfirstlane_b32 s98, v10
    v_readfirstlane_b32 s99, v11
    s_nop 3
    """)
    qtags(98)
    stamp(1)
    e("s_getreg_b32 s51, hwreg(HW_REG_XCC_ID)\ns_and_b32 s51, s51, 15\ns_add_u32 s51, s51, 1\ns_xor_b32 s51, s51, s57")
    for i in range(4):
        for r in range(4):
            a = RT + 32 * i + r
            e(f"v_or_b32 v{8+4*i+r}, s{56+r}, v{a}")
            e(f"v_or_b32 v{a}, s{51 if r == 1 else 56+r}, v{a}")
    for ct in range(2):
        for rt in range(2):
            a = RT + 32 * (2 * ct + rt)
            e(f"buffer_store_dwordx4 v[{a}:{a+3}], v29, s[36:39], s{54 + rt} offen offset:{64*ct}")
    e("s_mov_b32 s46, s52\ns_mov_b32 s47, s53\ns_nop 1")
    stamp(3)
    e("s_branch L_wo")
    if early_lead:
        g.label("L_w10")
        srd(32, 76, 256)
        e("buffer_load_dwordx2 v[32:33], v5, s[32:35], 0 offen sc1\ns_barrier")
        for i in range(1, npipe):
            e(f"s_sleep {psleep}\nbuffer_load_dwordx2 v[{32+2*i}:{33+2*i}], v5, s[32:35], 0 offen sc1")
        e("s_mov_b32 s61, 0")
        g.label("L_auxn")
        for i in range(npipe):
            e(f"""
            s_waitcnt vmcnt({npipe-1})
            v_readfirstlane_b32 s98, v{32+2*i}
            v_readfirstlane_b32 s99, v{33+2*i}
            s_nop 3
            s_cmp_lt_i32 s99, 0
            s_cbranch_scc1 L_n1
            buffer_load_dwordx2 v[{32+2*i}:{33+2*i}], v5, s[32:35], 0 offen sc1
            """)
        e(f"""
        s_add_u32 s61, s61, 1
        s_cmp_lt_u32 s61, {spin_limit // 2}
        s_cbranch_scc1 L_auxn
        """)
    else:
        g.label("L_w10")
        srd(32, 76, 256)
        e(f"""
        s_lshl_b64 s[98:99], s[98:99], 1
        s_or_b32 s98, s98, 1
        s_or_b32 s99, s99, 0x80000000
        s_cmp_lg_u32 s2, 0
        s_cbranch_scc1 L_n0
        LEAD
        """.replace("LEAD", """v_mov_b32 v28, s98
        v_mov_b32 v29, s99
        v_mov_b32 v30, 0
        v_mov_b32 v31, 0
        s_mov_b64 exec, 1
        buffer_atomic_cmpswap_x2 v[28:31], v5, s[32:35], 0 offen sc0 sc1
        s_mov_b64 exec, -1
        s_barrier
        s_waitcnt vmcnt(0)
        v_readfirstlane_b32 s50, v28
        v_readfirstlane_b32 s51, v29
        s_nop 3
        s_cmp_lt_i32 s51, 0
        s_cselect_b32 s98, s50, s98
        s_cselect_b32 s99, s51, s99
        s_branch L_n1""" if cas else """v_mov_b32 v22, s98
        v_mov_b32 v23, s99
        s_mov_b64 exec, 1
        buffer_store_dwordx2 v[22:23], v5, s[32:35], 0 offen sc0 sc1
        s_mov_b64 exec, -1
        s_barrier
        s_branch L_n1"""))
        g.label("L_n0")
        if snonce:
            e("s_barrier\ns_mov_b32 s61, 0")
            g.label("L_auxn")
            e(f"""
            s_sleep {snonce}
            s_load_dwordx2 s[98:99], s[76:77], 0 glc
            s_waitcnt lgkmcnt(0)
            s_cmp_lt_i32 s99, 0
            s_cbranch_scc1 L_n1
            s_add_u32 s61, s61, 1
            s_cmp_lt_u32 s61, {spin_limit}
            s_cbranch_scc1 L_auxn
            """)
        else:
            if nwait:
                e("s_barrier")
                spin(C_PART, nwait, 6, 7)
                e("buffer_load_dwordx2 v[22:23], v5, s[32:35], 0 offen sc1\ns_mov_b32 s61, 0")
            else:
                e("buffer_load_dwordx2 v[22:23], v5, s[32:35], 0 offen sc1\ns_barrier\ns_mov_b32 s61, 0")
            g.label("L_auxn")
            e(f"""
            s_waitcnt vmcnt(0)
            v_readfirstlane_b32 s98, v22
            v_readfirstlane_b32 s99, v23
            s_nop 3
            s_cmp_lt_i32 s99, 0
            s_cbranch_scc1 L_n1
            buffer_load_dwordx2 v[22:23], v5, s[32:35], 0 offen sc1
            s_add_u32 s61, s61, 1
            s_cmp_lt_u32 s61, {spin_limit}
            s_cbranch_scc1 L_auxn
            """)
    g.label("L_n1")
    stamp(1)
    e(f"""
    v_mov_b32 v22, s98
    v_mov_b32 v23, s99
    ds_write_b64 v17, v[22:23]
    s_waitcnt lgkmcnt(0)
    ds_write_b32 v6, v21 offset:{F_N}
    s_lshl_b32 s50, s45, 14
    s_add_u32 s50, s50, {QWS}
    s_lshl_b32 s51, s45, {15 if overlay else 14}
    s_add_u32 s51, s51, {MSG1 + FAST if overlay else QWS + FAST}
    v_lshlrev_b32 v16, 3, v1
    v_add_u32 v16, {QL}, v16
    v_lshrrev_b32 v18, 5, v1
    v_lshlrev_b32 v18, 13, v18
    v_bfe_u32 v19, v1, 3, 2
    v_lshl_add_u32 v18, v19, 11, v18
    v_and_b32 v19, 7, v1
    v_lshl_add_u32 v18, v19, 6, v18
    """)
    qtags(98)
    e("s_getreg_b32 s53, hwreg(HW_REG_XCC_ID)\ns_and_b32 s53, s53, 15\ns_add_u32 s53, s53, 1\ns_xor_b32 s53, s53, s57\ns_mov_b32 s52, s57")
    spin(F_PD, 1, 6, 7)
    e("s_mov_b32 s61, 0")
    stamp(3)
    g.label("L_aux4")
    e(f"s_and_b32 s54, s61, {qsm}\ns_cmp_eq_u32 s54, {qsm}\ns_cselect_b32 s54, s50, s51\ns_cselect_b32 s57, s52, s53\ns_cselect_b32 s49, 1, {1 if forceslow else 2}")
    if probe:
        e(f"""
        buffer_load_dwordx4 v[{RT}:{RT+3}], v18, s[36:39], s54 offen sc1
        s_waitcnt vmcnt(0)
        v_xor_b32 v{RT}, s56, v{RT}
        v_xor_b32 v{RT+1}, s57, v{RT+1}
        v_xor_b32 v{RT+2}, s58, v{RT+2}
        v_xor_b32 v{RT+3}, s59, v{RT+3}
        v_or3_b32 v7, v{RT}, v{RT+1}, v{RT+2}
        v_or_b32 v7, v7, v{RT+3}
        """)
        check(7, "L_aux4b", "L_aux4", spin_limit, mask=QMASK)
        g.label("L_aux4b")
    for i in range(16):
        if i % 4 == 0: e(f"s_add_u32 s55, s54, {1024*i}")
        e(f"buffer_load_dwordx4 v[{RT+4*i}:{RT+4*i+3}], v24, s[36:39], s55 offen offset:{(i % 4) * 1024} sc1")
    e("s_waitcnt vmcnt(0)")
    for i in range(64):
        e(f"v_xor_b32 v{RT+i}, s{56 + i % 4}, v{RT+i}")
    e(f"v_or3_b32 v7, v{RT}, v{RT+1}, v{RT+2}")
    for i in range(3, 63, 2):
        e(f"v_or3_b32 v7, v7, v{RT+i}, v{RT+i+1}")
    e(f"v_or_b32 v7, v7, v{RT+63}")
    check(7, "L_aux5", "L_aux4", spin_limit, mask=QMASK)
    g.label("L_aux5")
    for i in range(8):
        a = RT + 4 * i; b = a + 32
        e(f"""
        v_pk_add_f32 v[{a}:{a+1}], v[{a}:{a+1}], v[{b}:{b+1}]
        v_pk_add_f32 v[{a+2}:{a+3}], v[{a+2}:{a+3}], v[{b+2}:{b+3}]
        v_cvt_pk_bf16_f32 v{a}, v{a}, v{a+1}
        v_cvt_pk_bf16_f32 v{a+1}, v{a+2}, v{a+3}
        ds_write_b64 v16, v[{a}:{a+1}] offset:{512*i}
        """)
    e(f"v_mov_b32 v21, s49\ns_waitcnt lgkmcnt(0)\nds_write_b32 v6, v21 offset:{F_Q}\ns_waitcnt lgkmcnt(0)")
    e(f"""
    s_lshl_b32 s46, s45, 7
    s_add_u32 s46, s46, {TOK}
    s_lshl_b32 s50, s43, 4
    s_add_u32 s50, s50, s46
    s_add_u32 s51, s50, s3
    s_mov_b64 exec, 1
    buffer_store_dwordx2 v[22:23], v5, s[36:39], s51 offen
    s_cmp_eq_u32 s49, 2
    s_cbranch_scc1 L_tk1
    buffer_store_dwordx2 v[22:23], v5, s[36:39], s50 offen sc1
    """)
    g.label("L_tk1")
    e("s_mov_b64 exec, -1")
    stamp(4)
    g.label("L_wo")
    e("s_setprio 1")
    for i in range(32):
        if i >= THW: g.wait(f"wa{i-THW}")
        wo_issue(i, "wa")
    stamp(5)
    FR = WB; A = FR
    e(f"""
    s_cmp_lg_u32 s44, 8
    s_cbranch_scc1 L_tr
    s_setprio 3
    s_mov_b32 s61, 0
    """)
    g.label("L_dq")
    e(f"""
    ds_read_b64 v[28:29], v6 offset:{PROG}
    ds_read_b32 v30, v6 offset:{F_Q}
    s_waitcnt lgkmcnt(0)
    v_min_u32 v28, v28, v29
    v_readfirstlane_b32 s60, v30
    v_readfirstlane_b32 s50, v28
    s_nop 3
    s_cmp_eq_u32 s60, 2
    s_cbranch_scc1 L_dq2
    s_cmp_eq_u32 s60, 1
    s_cbranch_scc1 L_dq1
    s_cmp_ge_u32 s50, 8
    s_cbranch_scc1 L_dq1
    s_sleep 2
    s_add_u32 s61, s61, 1
    s_cmp_lt_u32 s61, {spin_limit * 20}
    s_cbranch_scc1 L_dq
    """)
    g.label("L_dq1")
    for ct in range(2):
        for rt in range(2):
            a2 = 8 + 4 * (2 * ct + rt)
            e(f"buffer_store_dwordx4 v[{a2}:{a2+3}], v27, s[36:39], s{46 + rt} offen offset:{64*ct} sc1")
    e("s_waitcnt vmcnt(0)")
    g.label("L_dq2")
    spin(F_Q, 1, 6, 7)
    e(f"""
    s_lshl_b32 s46, s45, 7
    s_add_u32 s46, s46, {TOK}
    v_lshlrev_b32 v28, 4, v3
    v_mov_b32 v29, 1
    s_mov_b32 s61, 0
    """)
    g.label("L_tk2")
    e(f"""
    s_and_b32 s55, s61, {ssm}
    s_cmp_eq_u32 s55, {ssm}
    s_cselect_b32 s55, 0, s3
    s_add_u32 s55, s55, s46
    buffer_load_dwordx2 v[30:31], v28, s[36:39], s55 offen sc1
    s_waitcnt vmcnt(0)
    v_xor_b32 v30, s98, v30
    v_xor_b32 v31, s99, v31
    v_or_b32 v30, v30, v31
    v_cmp_eq_u32 vcc, 0, v30
    s_nop 3
    s_cmp_eq_u64 vcc, -1
    s_cbranch_scc1 L_tk3
    s_add_u32 s61, s61, 1
    s_cmp_lt_u32 s61, {spin_limit}
    s_cbranch_scc1 L_tk2
    """)
    g.label("L_tk3")
    e(f"ds_write_b32 v6, v29 offset:{F_QC}\ns_waitcnt lgkmcnt(0)")
    e(f"""
    v_lshlrev_b32 v{FR+21}, 4, v2
    s_lshl_b32 s50, s45, 10
    s_add_u32 s50, s50, {STATS}
    v_lshl_add_u32 v{FR+22}, v3, 8, v{FR+21}
    v_lshlrev_b32 v{FR+23}, 2, v1
    v_add_u32 v{FR+23}, {SCL}, v{FR+23}
    v_mov_b32 v{FR+24}, 1
    """)
    spin(C_L, 8, 6, 7)
    e("s_mov_b32 s61, 0")
    g.label("L_st6")
    e(f"""
    s_and_b32 s55, s61, {ssm}
    s_cmp_eq_u32 s55, {ssm}
    s_cselect_b32 s55, 0, s3
    s_add_u32 s55, s55, s50
    buffer_load_dwordx4 v[{A}:{A+3}], v{FR+22}, s[36:39], s55 offen sc1
    s_waitcnt vmcnt(0)
    v_xor_b32 v{A+2}, s98, v{A+2}
    v_xor_b32 v{A+3}, s99, v{A+3}
    v_or_b32 v{A+2}, v{A+2}, v{A+3}
    v_cmp_eq_u32 vcc, 0, v{A+2}
    s_nop 3
    s_cmp_eq_u64 vcc, -1
    s_cbranch_scc1 L_st7
    s_add_u32 s61, s61, 1
    s_cmp_lt_u32 s61, {spin_limit}
    s_cbranch_scc1 L_st6
    """)
    g.label("L_st7")
    stamp(6)
    e(f"v_mov_b32 v{A+4}, v{A}")
    xreduce(A + 4, A + 5, "v_max_f32")
    e(f"""
    v_sub_f32 v{A}, v{A}, v{A+4}
    v_exp_f32 v{A+5}, v{A}
    s_nop 0
    v_mul_f32 v{A}, v{A+5}, v{A+1}
    """)
    xreduce(A, A + 1, "v_add_f32")
    e(f"""
    v_rcp_f32 v{A}, v{A}
    s_nop 0
    v_mul_f32 v{A+5}, v{A+5}, v{A}
    ds_write_b32 v{FR+23}, v{A+5}
    s_waitcnt lgkmcnt(0)
    ds_write_b32 v6, v{FR+24} offset:{F_SCL}
    s_waitcnt lgkmcnt(0)
    """)
    g.label("L_tr")
    e("s_setprio 0\ns_waitcnt vmcnt(0)")
    g.label("L_tr2")
    e("s_mov_b32 s52, 0x05040100\ns_mov_b32 s53, 0x07060302")
    for j in range(4):
        src = WB + 32 * (j + 1); dst = WB + 32 * j
        for jc in range(8):
            for p in range(4):
                a = src + 4 * (2 * p) + (jc >> 1); b = src + 4 * (2 * p + 1) + (jc >> 1)
                e(f"v_perm_b32 v{dst+4*jc+p}, v{b}, v{a}, s{52 + (jc & 1)}")
    FR = WB + 128
    spin(F_N, 1, 6, FR + 26)
    e(f"""
    v_mov_b32 v{FR+28}, {NON}
    v_and_b32 v4, 3, v2
    v_lshlrev_b32 v4, 8, v4
    v_lshl_add_u32 v4, v3, 4, v4
    v_add_u32 v4, {OB}, v4
    ds_read_b64 v[{FR+26}:{FR+27}], v{FR+28}
    v_lshrrev_b32 v{FR+29}, 1, v2
    v_lshlrev_b32 v{FR+29}, 13, v{FR+29}
    v_and_b32 v0, 1, v2
    v_lshl_add_u32 v{FR+29}, v0, 6, v{FR+29}
    v_lshl_add_u32 v{FR+29}, v3, 4, v{FR+29}
    s_lshl_b32 s50, s42, 18
    s_lshl_b32 s51, s48, 16
    s_add_u32 s50, s50, s51
    s_add_u32 s50, s50, s63
    s_add_u32 s96, s50, {MSG2}
    v_and_b32 v0, 1, v3
    v_cmp_eq_u32 s[4:5], 1, v0
    v_cmp_le_u32 s[6:7], 2, v3
    s_mov_b32 s98, {(~TMASK) & 0xffffffff}
    v_lshrrev_b32 v0, 5, v1
    v_and_b32 v{FR+25}, 31, v1
    v_lshlrev_b32 v{FR+24}, 12, v0
    v_lshl_add_u32 v{FR+24}, v{FR+25}, 4, v{FR+24}
    s_lshl_b32 s50, s45, 15
    s_lshl_b32 s51, s43, 13
    s_add_u32 s50, s50, s51
    s_lshl_b32 s51, s48, 9
    s_add_u32 s50, s50, s51
    s_add_u32 s54, s50, {MSG1}
    v_lshlrev_b32 v{FR+25}, 1, v{FR+25}
    v_lshl_add_u32 v{FR+25}, v0, 9, v{FR+25}
    s_lshl_b32 s50, s48, 6
    s_add_u32 s50, s50, {OB}
    v_add_u32 v{FR+25}, s50, v{FR+25}
    s_waitcnt lgkmcnt(0)
    v_readfirstlane_b32 s50, v{FR+26}
    v_readfirstlane_b32 s51, v{FR+27}
    s_nop 3
    """)
    stags(50, 51)
    e("s_bitcmp0_b32 s44, 0\ns_cbranch_scc1 L_nodrain")
    for cnt, val in drain:
        e(f"s_waitcnt vmcnt({cnt})\nv_mov_b32 v5, {val}\nds_write_b32 v7, v5 offset:{PROG}")
    stamp(5)
    e("s_setprio 0")
    g.label("L_nodrain")
    e(f"v_mov_b32 v5, v{FR+29}")
    spin(F_SCL, 1, 6, FR + 26, sleep=2)
    e(f"""
    v_lshrrev_b32 v{FR+26}, 5, v1
    v_lshlrev_b32 v{FR+26}, 7, v{FR+26}
    s_lshl_b32 s50, s43, 4
    s_add_u32 s50, s50, {SCL}
    v_add_u32 v{FR+26}, s50, v{FR+26}
    ds_read_b128 v[{FR+16}:{FR+19}], v{FR+26}
    ds_read_b128 v[{FR+20}:{FR+23}], v{FR+26} offset:64
    """)
    spin(PROG, 8, 6, FR + 26, sleep=2, two=True)
    e("s_mov_b32 s61, 0")
    stamp(7)
    R = FR
    g.label("L_m1l")
    e(f"""
    s_and_b32 s55, s61, {m1sm}
    s_cmp_eq_u32 s55, {m1sm}
    s_cselect_b32 s55, 0, s3
    s_add_u32 s55, s55, s54
    buffer_load_dwordx4 v[{R}:{R+3}], v{FR+24}, s[36:39], s55 offen sc1
    buffer_load_dwordx4 v[{R+4}:{R+7}], v{FR+24}, s[36:39], s55 offen offset:2048 sc1
    s_waitcnt vmcnt(0)
    """)
    for i in range(8):
        e(f"v_xor_b32 v{R+i}, s{56 + i % 4}, v{R+i}")
    e(f"""
    v_or3_b32 v6, v{R}, v{R+1}, v{R+2}
    v_or3_b32 v6, v6, v{R+3}, v{R+4}
    v_or3_b32 v6, v6, v{R+5}, v{R+6}
    v_or_b32 v6, v6, v{R+7}
    """)
    check(6, "L_m1g", "L_m1l", spin_limit)
    g.label("L_m1g")
    stamp(10)
    e(f"""
    v_pk_mul_f32 v[{R}:{R+1}], v[{R}:{R+1}], v[{FR+16}:{FR+17}]
    v_pk_mul_f32 v[{R+2}:{R+3}], v[{R+2}:{R+3}], v[{FR+18}:{FR+19}]
    v_pk_fma_f32 v[{R}:{R+1}], v[{R+4}:{R+5}], v[{FR+20}:{FR+21}], v[{R}:{R+1}]
    v_pk_fma_f32 v[{R+2}:{R+3}], v[{R+6}:{R+7}], v[{FR+22}:{FR+23}], v[{R+2}:{R+3}]
    """)
    xsum4(R, R + 4, sws=("v_permlane32_swap_b32",))
    e(f"""
    v_cvt_pk_bf16_f32 v{R+8}, v{R}, v{R+1}
    v_cvt_pk_bf16_f32 v{R+9}, v{R+2}, v{R+3}
    s_nop 0
    v_cndmask_b32 v{R+8}, v{R+8}, v{R+9}, s[6:7]
    ds_write_b16 v{FR+25}, v{R+8}
    ds_write_b16_d16_hi v{FR+25}, v{R+8} offset:256
    s_waitcnt lgkmcnt(0)
    s_barrier
    """)
    stamp(8)
    AF = FR; OA0 = FR + 16
    for j in range(4):
        e(f"ds_read_b128 v[{AF+4*j}:{AF+4*j+3}], v4 offset:{64*j}")
    OA1 = WB + 32
    def epi(OA, t0, h):
        L = []
        for r in range(4):
            L.append(f"v_cndmask_b32 v{t0+r}, v{OA+r}, v{OA+4+r}, s[4:5]")
            L.append(f"v_cndmask_b32 v{t0+4+r}, v{OA+8+r}, v{OA+12+r}, s[4:5]")
        for r in range(4):
            L.append(f"v_cndmask_b32 v{t0+r}, v{t0+r}, v{t0+4+r}, s[6:7]")
        for r in range(4):
            L.append(f"v_and_b32 v{t0+r}, s98, v{t0+r}"); L.append(f"v_or_b32 v{t0+r}, s{56+r}, v{t0+r}")
        L.append(f"buffer_store_dwordx4 v[{t0}:{t0+3}], v5, s[36:39], s96 offen offset:{128*h} sc1")
        return L
    for j in range(4):
        e(f"s_waitcnt lgkmcnt({3-j})")
        for q in range(4):
            c = "0" if j == 0 else f"v[{OA0+4*q}:{OA0+4*q+3}]"
            b = WB + 32 * j + 4 * q
            e(f"v_mfma_f32_16x16x32_bf16 v[{OA0+4*q}:{OA0+4*q+3}], v[{AF+4*j}:{AF+4*j+3}], v[{b}:{b+3}], {c}")
    ep0 = epi(OA0, WB, 0)
    n = 0
    for j in range(4):
        for q in range(4):
            c = "0" if j == 0 else f"v[{OA1+4*q}:{OA1+4*q+3}]"
            b = WB + 32 * j + 4 * (4 + q)
            e(f"v_mfma_f32_16x16x32_bf16 v[{OA1+4*q}:{OA1+4*q+3}], v[{AF+4*j}:{AF+4*j+3}], v[{b}:{b+3}], {c}")
            n += 1
            if n >= 8:
                for _ in range(3):
                    if ep0: e(ep0.pop(0))
    while ep0: e(ep0.pop(0))
    g.nop(8)
    for ln in epi(OA1, WB + 8, 1): e(ln)
    stamp(9)
    if ackwait: e("s_waitcnt vmcnt(0)")
    if wb:
        e(f"s_and_b32 s50, s41, {wb - 1}\ns_lshl_b32 s50, s50, 4\ns_add_u32 s50, s50, s44\ns_cmp_lg_u32 s50, 10\ns_cbranch_scc1 L_nowb\nbuffer_wbl2 sc1")
        g.label("L_nowb")
    e(f"v_mov_b32 v6, {SYN}\nv_mov_b32 v7, 1\ns_mov_b64 exec, 1\nds_add_u32 v6, v7 offset:{C_M2}\ns_mov_b64 exec, -1")
    stamp_store()

    hdr = f"""; Fused GQA decode block (q-proj -> split-KV attention -> out-proj) in ONE launch, 256 workgroups x 12 waves.
; @launch grid=(256,1,1) block=({64*NW},1,1) lds={LDS_TOTAL}
.amdgcn_target "amdgcn-amd-amdhsa--gfx950"
.text
.globl {KNAME}
.p2align 8
.type {KNAME},@function
{KNAME}:
"""
    ftr = f"""L_done:
    s_endpgm
.section .rodata,"a"
.p2align 6
.amdhsa_kernel {KNAME}
  .amdhsa_next_free_vgpr 168
  .amdhsa_next_free_sgpr 102
  .amdhsa_accum_offset 168
  .amdhsa_group_segment_fixed_size 0
  .amdhsa_kernarg_size 64
  .amdhsa_user_sgpr_count 2
  .amdhsa_user_sgpr_kernarg_segment_ptr 1
  .amdhsa_system_sgpr_workgroup_id_x 1
  .amdhsa_float_denorm_mode_32 3
.end_amdhsa_kernel
"""
    body = "\n".join(l for l in g.text().split("\n") if l.strip()) + "\n"
    return hdr + body + ftr

if __name__ == "__main__":
    open("g40.s", "w").write(gen())
    open("g40_st.s", "w").write(gen(stamps=True))
    open("g40_old.s", "w").write(gen(early_lead=False))
    open("g40_p1.s", "w").write(gen(npipe=1))
    open("g40_p6.s", "w").write(gen(npipe=6, psleep=3))
    open("g40_w24.s", "w").write(gen(WS=(24, 24, 20, 18, 16, 14, 12, 10)))
```

```python
import sys
from gen1 import G, KNAME

STATS = 0x80000
TOK = 0xA0000
MSG1 = 0x100000
MSG2 = 0x300000
QWS = 0x600000
DBGA = 0x800000
FAST = 0x1000000
AUX1 = 131072
AUX2 = 147456
MX = AUX2
LS = AUX2 + 512
SCL = AUX2 + 1024
NON = AUX2 + 1536
SYN = AUX2 + 1600
PROG = 0
C_PART, F_PD, F_Q, C_M, C_L, F_N, F_SCL = [8 + 4 * i for i in range(7)]
C_KR = 40
C_M2 = 56
F_QC = 60
OB = AUX2 + 2048
QL = AUX2 + 4096
RED = AUX2 + 8192
LDS_TOTAL = 163840
TAGB = 11
TMASK = (1 << TAGB) - 1
QTB = 7
QMASK = (1 << QTB) - 1
NW = 12

def gen(stamps=False, spin_limit=20000, THW=8, WS=(32, 32, 20, 18, 16, 14, 12, 10), wo_start=1, wopol="", wqpol="", xpol="",
        kvpol="nt", ldprio=3, ld_early=0, forceslow=False, probe=False, qsm=15, ssm=15, m1sm=31, prest=False, overlay=True, pend=False, ackwait=True, m2sleep=0, nwait=0, wb=0, cas=False, snonce=0, early_lead=False, npipe=4, psleep=4, qat=2, slp=2):
    g = G()
    e = g.e
    nst = [0]
    def stamp(idx=None):
        if not stamps: return
        i = nst[0] if idx is None else idx
        if idx is None: nst[0] += 1
        assert i < 14
        e(f"s_memrealtime s[100:101]\ns_waitcnt lgkmcnt(0)\ns_mov_b32 s{80+i}, s100")
    def stamp_store():
        if not stamps: return
        e(f"s_mul_i32 s50, s2, {NW}\ns_add_u32 s50, s50, s44\ns_lshl_b32 s50, s50, 6\ns_add_u32 s50, s50, {DBGA}\nv_mov_b32 v24, 0\ns_mov_b64 exec, 1")
        for i in range(0, 16, 4):
            for k in range(4): e(f"v_mov_b32 v{28+k}, s{80+i+k}")
            e(f"buffer_store_dwordx4 v[28:31], v24, s[36:39], s50 offen offset:{4*i}\ns_nop 1")
    def xreduce(r, tmp, op):
        for sw in ("v_permlane32_swap_b32", "v_permlane16_swap_b32"):
            e(f"v_mov_b32 v{tmp}, v{r}\ns_nop 1\n{sw} v{r}, v{tmp}\ns_nop 0\n{op} v{r}, v{r}, v{tmp}")
    def xsum4(a, t, sws=("v_permlane32_swap_b32", "v_permlane16_swap_b32")):
        for sw in sws:
            for i in range(4): e(f"v_mov_b32 v{t+i}, v{a+i}")
            e("s_nop 0")
            for i in range(4): e(f"{sw} v{a+i}, v{t+i}")
            e("s_nop 0")
            e(f"v_pk_add_f32 v[{a}:{a+1}], v[{a}:{a+1}], v[{t}:{t+1}]\nv_pk_add_f32 v[{a+2}:{a+3}], v[{a+2}:{a+3}], v[{t+2}:{t+3}]")
    def spin(word, val, vsyn, vtmp, sleep=1, two=False):
        l1, l2 = g.newlabel("Lsp"), g.newlabel("Lspd")
        e("s_mov_b32 s61, 0")
        g.label(l1)
        if two:
            e(f"ds_read_b64 v[{vtmp}:{vtmp+1}], v{vsyn} offset:{word}\ns_waitcnt lgkmcnt(0)\nv_min_u32 v{vtmp}, v{vtmp}, v{vtmp+1}\ns_nop 0")
        else:
            e(f"ds_read_b32 v{vtmp}, v{vsyn} offset:{word}\ns_waitcnt lgkmcnt(0)")
        e(f"""
        v_readfirstlane_b32 s60, v{vtmp}
        s_nop 3
        s_cmp_ge_u32 s60, {val}
        s_cbranch_scc1 {l2}
        {f's_sleep {sleep}' if sleep else ''}
        s_add_u32 s61, s61, 1
        s_cmp_lt_u32 s61, {spin_limit * 20}
        s_cbranch_scc1 {l1}
        """)
        g.label(l2)
    def arrive(word, vsyn, vone):
        e(f"s_waitcnt lgkmcnt(0)\ns_mov_b64 exec, 1\nds_add_u32 v{vsyn}, v{vone} offset:{word}\ns_mov_b64 exec, -1")
    def srd(d, p, size):
        e(f"s_mov_b32 s{d}, s{p}\ns_mov_b32 s{d+1}, s{p+1}\ns_mov_b32 s{d+2}, {size}\ns_mov_b32 s{d+3}, 0x00020000")
    def stags(lo, hi):
        e(f"""
        s_and_b32 s56, s{lo}, {TMASK}
        s_bfe_u32 s57, s{lo}, {TAGB | (TAGB << 16)}
        s_lshr_b64 s[58:59], s[{lo}:{hi}], {2*TAGB}
        s_and_b32 s58, s58, {TMASK}
        s_bfe_u32 s59, s{hi}, {(3*TAGB-32) | (TAGB << 16)}
        """)
    def qtags(lo):
        for i in range(4):
            e(f"s_bfe_u32 s{56+i}, s{lo}, {(QTB*i) | (QTB << 16)}")
        e("s_xor_b32 s56, s56, 1")
    def check(vreg, lok, lloop, lim, slp=0, mask=TMASK):
        e(f"""
        v_and_b32 v{vreg}, {mask}, v{vreg}
        v_cmp_eq_u32 vcc, 0, v{vreg}
        s_nop 3
        s_cmp_eq_u64 vcc, -1
        s_cbranch_scc1 {lok}
        {f's_sleep {slp}' if slp else ''}
        s_add_u32 s61, s61, 1
        s_cmp_lt_u32 s61, {lim}
        s_cbranch_scc1 {lloop}
        """)
    WB = 8
    WR = 40
    def wo_issue(i, tagp):
        j, ee = i // 8, i % 8
        r = WR + 16 * (j + 1) + 2 * ee
        off = (32 * j + ee) * 1024
        e(f"s_add_u32 s50, s97, {off & ~4095}")
        g.vm(f"buffer_load_dwordx2 v[{r}:{r+1}], v4, s[24:27], s50 offen offset:{off & 4095} {wopol}", f"{tagp}{i}")
    e(f"""
    s_cmp_ge_u32 s2, 256
    s_cbranch_scc1 L_done
    s_load_dwordx16 s[64:79], s[0:1], 0
    s_memrealtime s[98:99]
    v_and_b32 v1, 63, v0
    v_lshrrev_b32 v4, 6, v0
    v_and_b32 v2, 15, v0
    v_bfe_u32 v3, v0, 4, 2
    v_readfirstlane_b32 s44, v4
    s_and_b32 s40, s2, 7
    s_lshr_b32 s41, s2, 3
    s_lshr_b32 s42, s41, 2
    s_and_b32 s43, s41, 3
    s_lshl_b32 s45, s42, 3
    s_add_u32 s45, s45, s40
    s_lshl_b32 s51, s40, 2
    s_add_u32 s51, s51, s43
    s_lshl_b32 s63, s51, 8
    s_mov_b32 s3, {FAST}
    v_mov_b32 v6, {SYN}
    s_cmp_lt_u32 s44, 8
    s_cbranch_scc1 L_cw
    s_sub_u32 s48, s44, 8
    v_lshlrev_b32 v4, 13, v3
    v_lshl_add_u32 v4, v2, 3, v4
    s_lshl_b32 s97, s63, 9
    s_lshl_b32 s50, s48, 7
    s_add_u32 s97, s97, s50
    s_and_b32 s50, s42, 1
    s_lshl_b32 s50, s50, 9
    s_add_u32 s97, s97, s50
    s_bitcmp0_b32 s44, 0
    s_cbranch_scc1 L_op
    """)
    e(f"""
    s_setprio {ldprio}
    s_lshr_b32 s49, s48, 1
    s_lshl_b32 s46, s45, 2
    s_add_u32 s46, s46, s43
    s_lshl_b32 s46, s46, 17
    s_lshl_b32 s47, s49, 16
    s_add_u32 s46, s46, s47
    s_lshl_b32 s50, s49, 2
    v_add_u32 v7, s50, v6
    s_add_u32 s94, s41, s40
    v_xor_b32 v8, v2, v3
    v_lshlrev_b32 v8, 4, v8
    v_lshl_add_u32 v8, v3, 8, v8
    v_lshlrev_b32 v12, 1, v3
    v_xor_b32 v12, v2, v12
    v_lshlrev_b32 v12, 4, v12
    v_lshl_add_u32 v12, v3, 8, v12
    v_xor_b32 v9, 64, v8
    v_xor_b32 v10, 0x80, v8
    v_xor_b32 v11, 0xc0, v8
    v_xor_b32 v13, 0x80, v12
    s_add_u32 s95, s42, s49
    """)
    for x in range(4):
        e(f"s_add_u32 s50, s94, {x}\ns_and_b32 s50, s50, 3\ns_lshl_b32 s50, s50, 12\ns_add_u32 s{52+x}, s50, s46")
        e(f"s_add_u32 s50, s95, {x}\ns_and_b32 s50, s50, 3\ns_lshl_b32 s{56+x}, s50, 10")
    e("s_waitcnt lgkmcnt(0)")
    srd(12, 66, 0x2000000); srd(16, 68, 0x2000000); srd(24, 72, 0x400000); srd(36, 78, 0x10000000)
    stamp(0)
    if not ld_early: e("s_barrier")
    kv = []; woi = [0]; sig = [0]; known = [0]
    for ph in range(2):
        for t in range(4):
            if ph == 0 and t == 3: spin(F_PD, 1, 6, 15)
            if ph == 1: spin(C_KR + 4 * t, 8, 6, 15)
            for k in range(4):
                for u in range(4):
                    n = len(kv)
                    if ld_early and n == ld_early: e("s_barrier")
                    Wc = WS[n // 16]
                    if n >= Wc and n - Wc + 1 > known[0]:
                        g.wait(kv[n - Wc]); known[0] = n - Wc + 1
                    e(f"s_add_u32 m0, s47, {16384*u + 4096*t + 1024*k}\ns_add_u32 s50, s{52 + (t+u)%4}, s{56 + (k+u)%4}\ns_add_u32 s50, s50, {16384*u}")
                    if ph == 0:
                        g.vm(f"buffer_load_dwordx4 v{8+k}, s[12:15], s50 offen {kvpol} lds", f"kv{n}")
                    else:
                        g.vm(f"buffer_load_dwordx4 v{12+(k&1)}, s[16:19], s50 offen {kvpol} lds", f"kv{n}")
                    kv.append(f"kv{n}")
                    while sig[0] < 8 and known[0] >= 16 * (sig[0] + 1):
                        sig[0] += 1
                        e(f"v_mov_b32 v14, {sig[0]}\nds_write_b32 v7, v14 offset:{PROG}")
                    gi = ph * 4 + t
                    if gi >= wo_start and woi[0] < 32 and (n % (3 if wo_start <= 1 else 2) == 0 or gi >= 6):
                        wo_issue(woi[0], "wl"); woi[0] += 1
    assert woi[0] == 32, woi[0]
    stamp(4)
    g.wait("wl31")
    e("s_branch L_tr2")
    drain = []
    while sig[0] < 8:
        drain.append((g.nvm - g.pos[kv[16 * (sig[0] + 1) - 1]], sig[0] + 1))
        sig[0] += 1

    g.label("L_cw")
    e(f"""
    s_lshl_b32 s47, s44, 14
    s_and_b32 s52, s43, 1
    s_lshr_b32 s53, s43, 1
    s_lshl_b32 s46, s52, 2
    s_add_u32 s46, s46, s44
    s_and_b32 s46, s46, 7
    s_lshl_b32 s50, s53, 3
    s_add_u32 s46, s46, s50
    v_lshrrev_b32 v14, 2, v1
    v_and_b32 v15, 3, v1
    v_lshlrev_b32 v15, 4, v15
    v_lshl_add_u32 v16, v14, 10, v15
    v_lshl_add_u32 v14, v14, 13, v15
    s_lshl_b32 s50, s46, 18
    s_lshl_b32 s51, s40, 10
    s_add_u32 s50, s50, s51
    s_lshl_b32 s51, s42, 7
    s_add_u32 s50, s50, s51
    s_lshl_b32 s51, s52, 6
    s_add_u32 s50, s50, s51
    s_lshl_b32 s51, s44, 11
    s_add_u32 s62, s51, {AUX1}
    s_lshl_b32 s51, s46, 6
    s_waitcnt lgkmcnt(0)
    """)
    if early_lead:
        e("s_or_b32 s54, s2, s44\ns_cmp_lg_u32 s54, 0\ns_cbranch_scc1 L_nolead")
        srd(32, 76, 256)
        e("""
        s_lshl_b64 s[98:99], s[98:99], 1
        s_or_b32 s98, s98, 1
        s_or_b32 s99, s99, 0x80000000
        v_mov_b32 v22, s98
        v_mov_b32 v23, s99
        v_mov_b32 v24, 0
        s_mov_b64 exec, 1
        buffer_store_dwordx2 v[22:23], v24, s[32:35], 0 offen sc0 sc1
        s_mov_b64 exec, -1
        """)
        g.label("L_nolead")
    srd(20, 70, 0x400000); srd(8, 64, 32768)
    stamp()
    e(f"""
    s_mov_b32 m0, s62
    s_add_u32 s54, s50, 0x20000
    buffer_load_dwordx4 v14, s[20:23], s50 offen {wqpol} lds
    s_add_u32 m0, s62, 1024
    s_add_u32 s55, s51, 16384
    buffer_load_dwordx4 v14, s[20:23], s54 offen {wqpol} lds
    s_add_u32 m0, s47, 12288
    s_nop 0
    buffer_load_dwordx4 v16, s[8:11], s51 offen {xpol} lds
    s_add_u32 m0, s47, 13312
    s_nop 0
    buffer_load_dwordx4 v16, s[8:11], s55 offen {xpol} lds
    s_barrier
    """)
    srd(28, 74, 32768); srd(36, 78, 0x10000000)
    e(f"""
    v_lshrrev_b32 v24, 2, v2
    v_lshl_add_u32 v24, v3, 3, v24
    v_lshlrev_b32 v24, 6, v24
    v_and_b32 v25, 3, v1
    v_lshl_add_u32 v24, v25, 3, v24
    v_add_u32 v24, s62, v24
    v_lshlrev_b32 v25, 6, v2
    v_lshl_add_u32 v25, v3, 4, v25
    v_add_u32 v25, s47, v25
    v_lshlrev_b32 v27, 4, v1
    v_add_u32 v27, s47, v27
    v_mov_b32 v20, {SYN}
    v_mov_b32 v21, 1
    s_lshr_b32 s50, s44, 2
    s_lshl_b32 s50, s50, 2
    v_add_u32 v19, s50, v20
    v_lshlrev_b32 v16, 13, v3
    v_lshl_add_u32 v16, v2, 4, v16
    s_lshl_b32 s50, s45, 15
    s_lshl_b32 s51, s43, 11
    s_add_u32 s50, s50, s51
    s_lshl_b32 s51, s44, 8
    s_add_u32 s50, s50, s51
    s_add_u32 s50, s50, {MSG1}
    v_add_u32 v16, s50, v16
    v_lshlrev_b32 v17, 8, v2
    v_lshl_add_u32 v17, v3, 4, v17
    v_add_u32 v17, {QL}, v17
    v_mov_b32 v18, {NON}
    v_xor_b32 v12, v2, v3
    v_lshlrev_b32 v12, 4, v12
    v_lshlrev_b32 v13, 8, v2
    v_add_u32 v13, s47, v13
    v_add_u32 v28, v13, v12
    v_xor_b32 v29, 64, v12
    v_add_u32 v29, v13, v29
    v_xor_b32 v30, 0x80, v12
    v_add_u32 v30, v13, v30
    v_xor_b32 v31, 0xc0, v12
    v_add_u32 v31, v13, v31
    v_mov_b32 v160, 0
    v_mov_b32 v161, 0
    v_mov_b32 v162, 0
    v_mov_b32 v163, 0
    s_waitcnt vmcnt(0)
    """)
    if prest: e("buffer_store_dwordx4 v[160:163], v16, s[36:39], s3 offen")
    stamp()
    XF = 96; WF = 104; QA = 112
    for ct in range(2):
        e(f"ds_read_b64_tr_b16 v[{WF+4*ct}:{WF+4*ct+1}], v24 offset:{32*ct}")
        e(f"ds_read_b64_tr_b16 v[{WF+4*ct+2}:{WF+4*ct+3}], v24 offset:{32*ct+256}")
    for rt in range(2):
        e(f"ds_read_b128 v[{XF+4*rt}:{XF+4*rt+3}], v25 offset:{12288 + 1024*rt}")
    e("s_waitcnt lgkmcnt(0)")
    for ct in range(2):
        for rt in range(2):
            q = QA + 4 * (2 * ct + rt)
            e(f"v_mfma_f32_16x16x32_bf16 v[{q}:{q+3}], v[{WF+4*ct}:{WF+4*ct+3}], v[{XF+4*rt}:{XF+4*rt+3}], 0")
    g.nop(8)
    for i in range(4):
        e(f"ds_write_b128 v27, v[{QA+4*i}:{QA+4*i+3}] offset:{12288 + 1024*i}")
    arrive(C_PART, 20, 21)
    stamp()
    KF = 32
    for t in range(4):
        spin(PROG, t + 1, 19, 22, sleep=slp)
        for j in range(4):
            r = KF + 16 * t + 4 * j
            e(f"ds_read_b128 v[{r}:{r+3}], v{28+j} offset:{4096*t}")
        arrive(C_KR + 4 * t, 20, 21)
    stamp()
    spin(F_Q, 1, 20, 22, sleep=slp)
    e("s_mov_b32 s94, s60")
    stamp()
    QF = 96; SA = 112; T = 128
    for j in range(4):
        e(f"ds_read_b128 v[{QF+4*j}:{QF+4*j+3}], v17 offset:{64*j}")
    e("ds_read_b64 v[22:23], v18")
    for j in range(4):
        e(f"s_waitcnt lgkmcnt({4-j})")
        for t in range(4):
            r = KF + 16 * t + 4 * j
            c = "0" if j == 0 else f"v[{SA+4*t}:{SA+4*t+3}]"
            e(f"v_mfma_f32_16x16x32_bf16 v[{SA+4*t}:{SA+4*t+3}], v[{r}:{r+3}], v[{QF+4*j}:{QF+4*j+3}], {c}")
    e(f"""
    s_waitcnt lgkmcnt(0)
    v_and_b32 v4, {TMASK}, v22
    v_bfe_u32 v5, v22, {TAGB}, {TAGB}
    v_alignbit_b32 v6, v23, v22, {2*TAGB}
    v_and_b32 v6, {TMASK}, v6
    v_bfe_u32 v7, v23, {3*TAGB-32}, {TAGB}
    s_mov_b32 s50, 0x3db504f3
    s_mov_b32 s51, 0xffff0000
    s_mov_b32 s99, 0x3fb8aa3b
    s_nop 1
    """)
    for p in range(8):
        a = SA + 2 * p
        e(f"""
        v_cvt_pk_bf16_f32 v{T}, v{a}, v{a+1}
        v_lshlrev_b32 v{a}, 16, v{T}
        v_and_b32 v{a+1}, s51, v{T}
        v_mul_f32 v{a}, s50, v{a}
        v_mul_f32 v{a+1}, s50, v{a+1}
        v_cvt_pk_bf16_f32 v{T}, v{a}, v{a+1}
        v_lshlrev_b32 v{a}, 16, v{T}
        v_and_b32 v{a+1}, s51, v{T}
        """)
    e(f"v_max3_f32 v{T}, v{SA}, v{SA+1}, v{SA+2}")
    for i in range(3, 15, 2):
        e(f"v_max3_f32 v{T}, v{T}, v{SA+i}, v{SA+i+1}")
    e(f"v_max_f32 v{T}, v{T}, v{SA+15}")
    xreduce(T, T + 1, "v_max_f32")
    e(f"""
    v_lshlrev_b32 v12, 5, v2
    v_add_u32 v12, {MX}, v12
    s_lshl_b32 s50, s44, 2
    v_add_u32 v13, s50, v12
    ds_write_b32 v13, v{T}
    """)
    arrive(C_M, 20, 21)
    spin(C_M, 8, 20, 22)
    e(f"ds_read_b128 v[{T+4}:{T+7}], v12\nds_read_b128 v[{T+8}:{T+11}], v12 offset:16\ns_waitcnt lgkmcnt(0)")
    e(f"""
    v_max3_f32 v{T}, v{T+4}, v{T+5}, v{T+6}
    v_max3_f32 v{T}, v{T}, v{T+7}, v{T+8}
    v_max3_f32 v{T}, v{T}, v{T+9}, v{T+10}
    v_max_f32 v{T}, v{T}, v{T+11}
    v_mul_f32 v23, s99, v{T}
    """)
    for i in range(16):
        e(f"v_fma_f32 v{SA+i}, v{SA+i}, s99, -v23")
    for i in range(16):
        e(f"v_exp_f32 v{SA+i}, v{SA+i}")
    e("s_nop 0")
    e(f"v_lshlrev_b32 v14, 3, v1\nv_add_u32 v14, s62, v14")
    for t in range(4):
        a = SA + 4 * t
        e(f"v_cvt_pk_bf16_f32 v{T+2*t}, v{a}, v{a+1}\nv_cvt_pk_bf16_f32 v{T+2*t+1}, v{a+2}, v{a+3}")
        e(f"ds_write_b64 v14, v[{T+2*t}:{T+2*t+1}] offset:{512*t}")
    for st in (8, 4, 2):
        for i in range(0, st, 2):
            a = SA + i; b = SA + i + st
            e(f"v_pk_add_f32 v[{a}:{a+1}], v[{a}:{a+1}], v[{b}:{b+1}]")
    e(f"v_add_f32 v{SA}, v{SA}, v{SA+1}")
    xreduce(SA, SA + 1, "v_add_f32")
    e(f"ds_write_b32 v13, v{SA} offset:512")
    arrive(C_L, 20, 21)
    PF = 32; BF = 112; PVA = 160; SC = 164
    e(f"""
    v_lshrrev_b32 v24, 2, v2
    v_lshl_add_u32 v24, v3, 2, v24
    v_and_b32 v25, 7, v24
    v_lshlrev_b32 v25, 1, v25
    v_bfe_u32 v27, v1, 1, 1
    s_lshl_b32 s50, s44, 1
    v_add_u32 v27, s50, v27
    v_xor_b32 v25, v25, v27
    v_lshlrev_b32 v25, 4, v25
    v_lshl_add_u32 v25, v24, 8, v25
    v_and_b32 v27, 1, v1
    v_lshl_add_u32 v25, v27, 3, v25
    v_add_u32 v26, 0x10000, v25
    v_lshlrev_b32 v27, 3, v1
    v_add_u32 v27, {AUX1}, v27
    v_and_b32 v30, 1, v3
    v_lshlrev_b32 v30, 4, v30
    v_cmp_le_u32 s[6:7], 2, v3
    v_lshlrev_b32 v19, 4, v3
    v_add_u32 v19, {SCL}, v19
    s_mov_b32 s98, {(~TMASK) & 0xffffffff}
    """)
    spin(C_L, 8, 20, 22)
    stamp()
    lnp = g.newlabel("Lnp")
    A = 128
    e(f"""
    s_cmp_lg_u32 s44, 1
    s_cbranch_scc1 {lnp}
    ds_read_b128 v[{A+8}:{A+11}], v12 offset:512
    ds_read_b128 v[{A+12}:{A+15}], v12 offset:528
    ds_read_b64 v[{A+18}:{A+19}], v18
    v_lshlrev_b32 v{A+21}, 4, v2
    s_lshl_b32 s50, s45, 10
    s_add_u32 s50, s50, {STATS}
    s_lshl_b32 s51, s43, 8
    s_add_u32 s51, s51, s50
    v_mov_b32 v{A+16}, v23
    s_waitcnt lgkmcnt(0)
    v_pk_add_f32 v[{A+8}:{A+9}], v[{A+8}:{A+9}], v[{A+10}:{A+11}]
    v_pk_add_f32 v[{A+12}:{A+13}], v[{A+12}:{A+13}], v[{A+14}:{A+15}]
    v_pk_add_f32 v[{A+8}:{A+9}], v[{A+8}:{A+9}], v[{A+12}:{A+13}]
    v_add_f32 v{A+17}, v{A+8}, v{A+9}
    s_mov_b64 exec, 0xffff
    s_add_u32 s55, s51, s3
    buffer_store_dwordx4 v[{A+16}:{A+19}], v{A+21}, s[36:39], s55 offen
    s_cmp_eq_u32 s94, 2
    s_cbranch_scc1 L_std
    buffer_store_dwordx4 v[{A+16}:{A+19}], v{A+21}, s[36:39], s51 offen sc1
    """)
    g.label("L_std")
    e("s_mov_b64 exec, -1")
    g.label(lnp)
    for k in range(4):
        for i in range(4):
            r = PF + 16 * k + 4 * i
            e(f"ds_read2st64_b64 v[{r}:{r+3}], v27 offset0:{8*i+k} offset1:{8*i+4+k}")
        if k == 1: e("s_waitcnt lgkmcnt(0)")
    first = [True]
    def pv_phase(k):
        for i in range(4):
            for hf in range(2):
                u = 2 * i + hf
                r = BF + 4 * i + 2 * hf
                e(f"ds_read_b64_tr_b16 v[{r}:{r+1}], v{25 if u < 4 else 26} offset:{(u % 4) * 16384 + 4096 * k}")
        for i in range(4):
            e(f"s_waitcnt lgkmcnt({6 - 2*i})")
            c = "0" if first[0] else f"v[{PVA}:{PVA+3}]"
            first[0] = False
            e(f"v_mfma_f32_16x16x32_bf16 v[{PVA}:{PVA+3}], v[{PF+16*k+4*i}:{PF+16*k+4*i+3}], v[{BF+4*i}:{BF+4*i+3}], {c}")
    for k in range(3):
        spin(PROG, 5 + k, 20, 22, sleep=slp, two=True)
        pv_phase(k)
    stamp()
    spin(F_QC, 1, 20, 22, sleep=1)
    stamp()
    spin(PROG, 8, 20, 22, sleep=0, two=True)
    stamp()
    pv_phase(3)
    g.nop(8)
    for i in range(4):
        e(f"v_and_or_b32 v{PVA+i}, v{PVA+i}, s98, v{4+i}")
    lsd = g.newlabel("Lsd")
    e(f"""
    buffer_store_dwordx4 v[{PVA}:{PVA+3}], v16, s[36:39], s3 offen
    s_cmp_eq_u32 s94, 2
    s_cbranch_scc1 {lsd}
    buffer_store_dwordx4 v[{PVA}:{PVA+3}], v16, s[36:39], 0 offen sc1
    """)
    g.label(lsd)
    stamp()
    nst[0] = 12
    lend = g.newlabel("Lend")
    e(f"s_cmp_lg_u32 s44, 0\ns_cbranch_scc1 {lend}")
    e(f"""
    v_lshlrev_b32 v24, 4, v1
    s_lshl_b32 s50, s42, 18
    s_lshl_b32 s51, s63, 5
    s_add_u32 s50, s50, s51
    s_add_u32 s50, s50, {MSG2}
    s_add_u32 s51, s50, 4096
    v_lshlrev_b32 v25, 10, v3
    v_and_b32 v26, 1, v2
    v_lshl_add_u32 v25, v26, 1, v25
    v_bfe_u32 v26, v2, 1, 2
    v_lshl_add_u32 v25, v26, 3, v25
    v_lshrrev_b32 v26, 3, v2
    v_lshl_add_u32 v25, v26, 2, v25
    s_lshl_b32 s96, s42, 12
    s_lshr_b32 s97, s63, 3
    s_add_u32 s96, s96, s97
    s_barrier
    """)
    spin(C_M2, 4, 20, 22, sleep=1)
    e("s_mov_b32 s61, 0")
    if pend:
        ll, lg = g.newlabel("Lm2l"), g.newlabel("Lm2g")
        FB = 32; RB = 64
        e("s_mov_b32 s52, 0xff")
        g.label(ll)
        for i in range(8):
            lk = g.newlabel("Lp")
            e(f"s_bitcmp0_b32 s52, {i}\ns_cbranch_scc1 {lk}\nbuffer_load_dwordx4 v[{RB+4*i}:{RB+4*i+3}], v24, s[36:39], s{50 + i // 4} offen offset:{(i % 4) * 1024} sc1")
            g.label(lk)
        e("s_waitcnt vmcnt(0)")
        for i in range(8):
            lk = g.newlabel("Lp")
            e(f"""
            s_bitcmp0_b32 s52, {i}
            s_cbranch_scc1 {lk}
            v_xor_b32 v{FB+4*i}, v{RB+4*i}, v4
            v_xor_b32 v{FB+4*i+1}, v{RB+4*i+1}, v5
            v_xor_b32 v{FB+4*i+2}, v{RB+4*i+2}, v6
            v_xor_b32 v{FB+4*i+3}, v{RB+4*i+3}, v7
            v_or3_b32 v28, v{FB+4*i}, v{FB+4*i+1}, v{FB+4*i+2}
            v_or_b32 v28, v28, v{FB+4*i+3}
            v_and_b32 v28, {TMASK}, v28
            v_cmp_eq_u32 vcc, 0, v28
            s_nop 3
            s_cmp_eq_u64 vcc, -1
            s_cbranch_scc0 {lk}
            s_bitset0_b32 s52, {i}
            """)
            g.label(lk)
        e(f"""
        s_cmp_eq_u32 s52, 0
        s_cbranch_scc1 {lg}
        s_add_u32 s61, s61, 1
        s_cmp_lt_u32 s61, {spin_limit}
        s_cbranch_scc1 {ll}
        """)
    else:
        ll, lg = g.newlabel("Lm2l"), g.newlabel("Lm2g")
        g.label(ll)
        FB = 32
        for i in range(8):
            e(f"buffer_load_dwordx4 v[{FB+4*i}:{FB+4*i+3}], v24, s[36:39], s{50 + i // 4} offen offset:{(i % 4) * 1024} sc1")
        e("s_waitcnt vmcnt(0)")
        for i in range(32):
            e(f"v_xor_b32 v{FB+i}, v{FB+i}, v{4 + i % 4}")
        e(f"v_or3_b32 v28, v{FB}, v{FB+1}, v{FB+2}")
        for i in range(3, 31, 2):
            e(f"v_or3_b32 v28, v28, v{FB+i}, v{FB+i+1}")
        e(f"v_or_b32 v28, v28, v{FB+31}")
        check(28, lg, ll, spin_limit, m2sleep)
    g.label(lg)
    stamp()
    for st in (4, 2, 1):
        for w in range(st):
            a = FB + 4 * w; b = FB + 4 * (w + st)
            e(f"v_pk_add_f32 v[{a}:{a+1}], v[{a}:{a+1}], v[{b}:{b+1}]\nv_pk_add_f32 v[{a+2}:{a+3}], v[{a+2}:{a+3}], v[{b+2}:{b+3}]")
    xsum4(FB, FB + 4)
    e(f"""
    v_cvt_pk_bf16_f32 v28, v{FB}, v{FB+1}
    v_cvt_pk_bf16_f32 v29, v{FB+2}, v{FB+3}
    s_nop 0
    v_cndmask_b32 v28, v28, v29, s[6:7]
    v_lshrrev_b32 v28, v30, v28
    buffer_store_short v28, v25, s[28:31], s96 offen
    """)
    g.label(lend)
    stamp()
    stamp_store()
    e("s_endpgm")

    g.label("L_op")
    e(f"""
    s_setprio 3
    v_mov_b32 v5, 0
    v_mov_b32 v21, 1
    v_mov_b32 v17, {NON}
    v_lshlrev_b32 v24, 4, v1
    v_mov_b32 v27, 0
    s_mov_b32 s46, {QWS}
    s_mov_b32 s47, {QWS}
    s_waitcnt lgkmcnt(0)
    """)
    srd(36, 78, 0x10000000); srd(24, 72, 0x400000)
    stamp(0)
    e("s_cmp_lg_u32 s44, 8\ns_cbranch_scc1 L_w10")
    e(f"""
    v_lshlrev_b32 v7, 2, v2
    v_add_u32 v7, {SYN}, v7
    ds_write_b32 v7, v5
    s_lshl_b32 s50, s45, 15
    s_lshl_b32 s51, s43, 12
    s_add_u32 s50, s50, s51
    s_add_u32 s50, s50, {MSG1 + FAST}
    s_add_u32 s51, s50, 16384
    """)
    if not overlay:
        e(f"s_lshl_b32 s52, s45, 14\ns_lshl_b32 s53, s43, 12\ns_add_u32 s52, s52, s53\ns_add_u32 s52, s52, {QWS + FAST}")
        for i in range(4): e(f"buffer_load_dwordx4 v[32:35], v24, s[36:39], s52 offen offset:{i * 1024} sc1")
    for i in range(4): e(f"buffer_load_dwordx4 v[32:35], v24, s[36:39], s50 offen offset:{i * 1024} sc1")
    e("s_waitcnt lgkmcnt(0)\ns_barrier")
    for i in range(4): e(f"buffer_load_dwordx4 v[32:35], v24, s[36:39], s51 offen offset:{i * 1024} sc1")
    e(f"""
    v_add_u32 v26, 12288, v24
    v_add_u32 v25, 0x10000, v26
    v_lshrrev_b32 v27, 2, v2
    v_lshlrev_b32 v27, 17, v27
    v_and_b32 v28, 3, v2
    v_lshl_add_u32 v27, v28, 9, v27
    v_lshl_add_u32 v27, v3, 4, v27
    s_lshl_b32 s52, s40, 14
    s_lshr_b32 s53, s43, 1
    s_lshl_b32 s53, s53, 13
    s_add_u32 s52, s52, s53
    s_lshr_b32 s53, s42, 1
    s_lshl_b32 s53, s53, 11
    s_add_u32 s52, s52, s53
    s_and_b32 s53, s42, 1
    s_lshl_b32 s53, s53, 8
    s_add_u32 s52, s52, s53
    s_and_b32 s53, s43, 1
    s_lshl_b32 s53, s53, 7
    s_add_u32 s52, s52, s53
    s_lshl_b32 s53, s40, 14
    s_add_u32 s54, s52, s53
    s_add_u32 s54, s54, {MSG1 + FAST if overlay else 0}
    s_add_u32 s55, s54, 0x100000
    v_lshrrev_b32 v29, 2, v2
    v_lshl_add_u32 v29, v29, 17, v27
    s_add_u32 s52, s52, {QWS}
    s_add_u32 s53, s52, 0x80000
    OVL
    s_mov_b32 s96, {(~QMASK) & 0xffffffff}
    v_mov_b32 v32, 0
    v_mov_b32 v33, 0
    v_mov_b32 v34, 0
    v_mov_b32 v35, 0
    s_lshl_b32 s50, s45, 10
    s_lshl_b32 s51, s43, 8
    s_add_u32 s50, s50, s51
    s_add_u32 s50, s50, {STATS + FAST}
    v_lshlrev_b32 v28, 4, v2
    """.replace("OVL", "s_nop 0" if overlay else "s_add_u32 s54, s52, s3\ns_add_u32 s55, s53, s3\nv_mov_b32 v29, v27"))
    e(f"""
    s_lshl_b32 s50, s45, 10
    s_add_u32 s50, s50, {STATS + FAST}
    buffer_load_dwordx4 v[32:35], v24, s[36:39], s50 offen sc1
    s_lshl_b32 s50, s45, 7
    s_add_u32 s50, s50, {TOK + FAST}
    buffer_load_dword v32, v5, s[36:39], s50 offen sc1
    """)
    if prest:
        for ct in range(2):
            for rt in range(2):
                e(f"buffer_store_dwordx4 v[32:35], v27, s[36:39], s{54 + rt} offen offset:{64*ct}")
        e("buffer_store_dwordx4 v[32:35], v28, s[36:39], s50 offen")
    spin(C_PART, 8, 6, 7)
    e("s_waitcnt vmcnt(0)")
    stamp(2)
    RT = 32
    for i in range(4):
        for w in range(8):
            r = RT + 32 * i + 4 * w
            e(f"ds_read_b128 v[{r}:{r+3}], v{26 if w < 4 else 25} offset:{(w % 4)*16384+i*1024}")
        e("s_waitcnt lgkmcnt(0)")
    e(f"ds_write_b32 v6, v21 offset:{F_PD}")
    for i in range(4):
        for st in (4, 2, 1):
            for w in range(st):
                a = RT + 32 * i + 4 * w; b = a + 4 * st
                e(f"v_pk_add_f32 v[{a}:{a+1}], v[{a}:{a+1}], v[{b}:{b+1}]\nv_pk_add_f32 v[{a+2}:{a+3}], v[{a+2}:{a+3}], v[{b+2}:{b+3}]")
        for r in range(4):
            a = RT + 32 * i + r
            e(f"v_add_u32 v{a}, {1 << (QTB-1)}, v{a}\nv_and_b32 v{a}, s96, v{a}")
    spin(F_N, 1, 6, 7)
    e(f"""
    ds_read_b64 v[10:11], v17
    s_waitcnt lgkmcnt(0)
    v_readfirstlane_b32 s98, v10
    v_readfirstlane_b32 s99, v11
    s_nop 3
    """)
    qtags(98)
    stamp(1)
    e("s_getreg_b32 s51, hwreg(HW_REG_XCC_ID)\ns_and_b32 s51, s51, 15\ns_add_u32 s51, s51, 1\ns_xor_b32 s51, s51, s57")
    for i in range(4):
        for r in range(4):
            a = RT + 32 * i + r
            e(f"v_or_b32 v{8+4*i+r}, s{56+r}, v{a}")
            e(f"v_or_b32 v{a}, s{51 if r == 1 else 56+r}, v{a}")
    for ct in range(2):
        for rt in range(2):
            a = RT + 32 * (2 * ct + rt)
            e(f"buffer_store_dwordx4 v[{a}:{a+3}], v29, s[36:39], s{54 + rt} offen offset:{64*ct}")
    e("s_mov_b32 s46, s52\ns_mov_b32 s47, s53\ns_nop 1")
    stamp(3)
    e("s_branch L_wo")
    if early_lead:
        g.label("L_w10")
        srd(32, 76, 256)
        e("buffer_load_dwordx2 v[32:33], v5, s[32:35], 0 offen sc1\ns_barrier")
        for i in range(1, npipe):
            e(f"s_sleep {psleep}\nbuffer_load_dwordx2 v[{32+2*i}:{33+2*i}], v5, s[32:35], 0 offen sc1")
        e("s_mov_b32 s61, 0")
        g.label("L_auxn")
        for i in range(npipe):
            e(f"""
            s_waitcnt vmcnt({npipe-1})
            v_readfirstlane_b32 s98, v{32+2*i}
            v_readfirstlane_b32 s99, v{33+2*i}
            s_nop 3
            s_cmp_lt_i32 s99, 0
            s_cbranch_scc1 L_n1
            buffer_load_dwordx2 v[{32+2*i}:{33+2*i}], v5, s[32:35], 0 offen sc1
            """)
        e(f"""
        s_add_u32 s61, s61, 1
        s_cmp_lt_u32 s61, {spin_limit // 2}
        s_cbranch_scc1 L_auxn
        """)
    else:
        g.label("L_w10")
        srd(32, 76, 256)
        e(f"""
        s_lshl_b64 s[98:99], s[98:99], 1
        s_or_b32 s98, s98, 1
        s_or_b32 s99, s99, 0x80000000
        s_cmp_lg_u32 s2, 0
        s_cbranch_scc1 L_n0
        LEAD
        """.replace("LEAD", """v_mov_b32 v28, s98
        v_mov_b32 v29, s99
        v_mov_b32 v30, 0
        v_mov_b32 v31, 0
        s_mov_b64 exec, 1
        buffer_atomic_cmpswap_x2 v[28:31], v5, s[32:35], 0 offen sc0 sc1
        s_mov_b64 exec, -1
        s_barrier
        s_waitcnt vmcnt(0)
        v_readfirstlane_b32 s50, v28
        v_readfirstlane_b32 s51, v29
        s_nop 3
        s_cmp_lt_i32 s51, 0
        s_cselect_b32 s98, s50, s98
        s_cselect_b32 s99, s51, s99
        s_branch L_n1""" if cas else """v_mov_b32 v22, s98
        v_mov_b32 v23, s99
        s_mov_b64 exec, 1
        buffer_store_dwordx2 v[22:23], v5, s[32:35], 0 offen sc0 sc1
        s_mov_b64 exec, -1
        s_barrier
        s_branch L_n1"""))
        g.label("L_n0")
        if snonce:
            e("s_barrier\ns_mov_b32 s61, 0")
            g.label("L_auxn")
            e(f"""
            s_sleep {snonce}
            s_load_dwordx2 s[98:99], s[76:77], 0 glc
            s_waitcnt lgkmcnt(0)
            s_cmp_lt_i32 s99, 0
            s_cbranch_scc1 L_n1
            s_add_u32 s61, s61, 1
            s_cmp_lt_u32 s61, {spin_limit}
            s_cbranch_scc1 L_auxn
            """)
        else:
            if nwait:
                e("s_barrier")
                spin(C_PART, nwait, 6, 7)
                e("buffer_load_dwordx2 v[22:23], v5, s[32:35], 0 offen sc1\ns_mov_b32 s61, 0")
            else:
                e("buffer_load_dwordx2 v[22:23], v5, s[32:35], 0 offen sc1\ns_barrier\ns_mov_b32 s61, 0")
            g.label("L_auxn")
            e(f"""
            s_waitcnt vmcnt(0)
            v_readfirstlane_b32 s98, v22
            v_readfirstlane_b32 s99, v23
            s_nop 3
            s_cmp_lt_i32 s99, 0
            s_cbranch_scc1 L_n1
            buffer_load_dwordx2 v[22:23], v5, s[32:35], 0 offen sc1
            s_add_u32 s61, s61, 1
            s_cmp_lt_u32 s61, {spin_limit}
            s_cbranch_scc1 L_auxn
            """)
    g.label("L_n1")
    stamp(1)
    e(f"""
    v_mov_b32 v22, s98
    v_mov_b32 v23, s99
    ds_write_b64 v17, v[22:23]
    s_waitcnt lgkmcnt(0)
    ds_write_b32 v6, v21 offset:{F_N}
    s_lshl_b32 s50, s45, 14
    s_add_u32 s50, s50, {QWS}
    s_lshl_b32 s51, s45, {15 if overlay else 14}
    s_add_u32 s51, s51, {MSG1 + FAST if overlay else QWS + FAST}
    v_lshlrev_b32 v16, 3, v1
    v_add_u32 v16, {QL}, v16
    v_lshrrev_b32 v18, 5, v1
    v_lshlrev_b32 v18, 13, v18
    v_bfe_u32 v19, v1, 3, 2
    v_lshl_add_u32 v18, v19, 11, v18
    v_and_b32 v19, 7, v1
    v_lshl_add_u32 v18, v19, 6, v18
    """)
    qtags(98)
    e("s_getreg_b32 s53, hwreg(HW_REG_XCC_ID)\ns_and_b32 s53, s53, 15\ns_add_u32 s53, s53, 1\ns_xor_b32 s53, s53, s57\ns_mov_b32 s52, s57")
    spin(F_PD, 1, 6, 7)
    if qat: spin(PROG, qat, 6, 28, sleep=2, two=True)
    e("s_mov_b32 s61, 0")
    stamp(3)
    g.label("L_aux4")
    e(f"s_and_b32 s54, s61, {qsm}\ns_cmp_eq_u32 s54, {qsm}\ns_cselect_b32 s54, s50, s51\ns_cselect_b32 s57, s52, s53\ns_cselect_b32 s49, 1, {1 if forceslow else 2}")
    if probe:
        e(f"""
        buffer_load_dwordx4 v[{RT}:{RT+3}], v18, s[36:39], s54 offen sc1
        s_waitcnt vmcnt(0)
        v_xor_b32 v{RT}, s56, v{RT}
        v_xor_b32 v{RT+1}, s57, v{RT+1}
        v_xor_b32 v{RT+2}, s58, v{RT+2}
        v_xor_b32 v{RT+3}, s59, v{RT+3}
        v_or3_b32 v7, v{RT}, v{RT+1}, v{RT+2}
        v_or_b32 v7, v7, v{RT+3}
        """)
        check(7, "L_aux4b", "L_aux4", spin_limit, mask=QMASK)
        g.label("L_aux4b")
    for i in range(16):
        if i % 4 == 0: e(f"s_add_u32 s55, s54, {1024*i}")
        e(f"buffer_load_dwordx4 v[{RT+4*i}:{RT+4*i+3}], v24, s[36:39], s55 offen offset:{(i % 4) * 1024} sc1")
    e("s_waitcnt vmcnt(0)")
    for i in range(64):
        e(f"v_xor_b32 v{RT+i}, s{56 + i % 4}, v{RT+i}")
    e(f"v_or3_b32 v7, v{RT}, v{RT+1}, v{RT+2}")
    for i in range(3, 63, 2):
        e(f"v_or3_b32 v7, v7, v{RT+i}, v{RT+i+1}")
    e(f"v_or_b32 v7, v7, v{RT+63}")
    check(7, "L_aux5", "L_aux4", spin_limit, mask=QMASK)
    g.label("L_aux5")
    for i in range(8):
        a = RT + 4 * i; b = a + 32
        e(f"""
        v_pk_add_f32 v[{a}:{a+1}], v[{a}:{a+1}], v[{b}:{b+1}]
        v_pk_add_f32 v[{a+2}:{a+3}], v[{a+2}:{a+3}], v[{b+2}:{b+3}]
        v_cvt_pk_bf16_f32 v{a}, v{a}, v{a+1}
        v_cvt_pk_bf16_f32 v{a+1}, v{a+2}, v{a+3}
        ds_write_b64 v16, v[{a}:{a+1}] offset:{512*i}
        """)
    e(f"v_mov_b32 v21, s49\ns_waitcnt lgkmcnt(0)\nds_write_b32 v6, v21 offset:{F_Q}\ns_waitcnt lgkmcnt(0)")
    e(f"""
    s_lshl_b32 s46, s45, 7
    s_add_u32 s46, s46, {TOK}
    s_lshl_b32 s50, s43, 4
    s_add_u32 s50, s50, s46
    s_add_u32 s51, s50, s3
    s_mov_b64 exec, 1
    buffer_store_dwordx2 v[22:23], v5, s[36:39], s51 offen
    s_cmp_eq_u32 s49, 2
    s_cbranch_scc1 L_tk1
    buffer_store_dwordx2 v[22:23], v5, s[36:39], s50 offen sc1
    """)
    g.label("L_tk1")
    e("s_mov_b64 exec, -1")
    stamp(4)
    g.label("L_wo")
    e("s_setprio 1")
    for i in range(32):
        if i >= THW: g.wait(f"wa{i-THW}")
        wo_issue(i, "wa")
    stamp(5)
    FR = WB; A = FR
    e(f"""
    s_cmp_lg_u32 s44, 8
    s_cbranch_scc1 L_tr
    s_setprio 3
    s_mov_b32 s61, 0
    """)
    g.label("L_dq")
    e(f"""
    ds_read_b64 v[28:29], v6 offset:{PROG}
    ds_read_b32 v30, v6 offset:{F_Q}
    s_waitcnt lgkmcnt(0)
    v_min_u32 v28, v28, v29
    v_readfirstlane_b32 s60, v30
    v_readfirstlane_b32 s50, v28
    s_nop 3
    s_cmp_eq_u32 s60, 2
    s_cbranch_scc1 L_dq2
    s_cmp_eq_u32 s60, 1
    s_cbranch_scc1 L_dq1
    s_cmp_ge_u32 s50, 8
    s_cbranch_scc1 L_dq1
    s_sleep 2
    s_add_u32 s61, s61, 1
    s_cmp_lt_u32 s61, {spin_limit * 20}
    s_cbranch_scc1 L_dq
    """)
    g.label("L_dq1")
    for ct in range(2):
        for rt in range(2):
            a2 = 8 + 4 * (2 * ct + rt)
            e(f"buffer_store_dwordx4 v[{a2}:{a2+3}], v27, s[36:39], s{46 + rt} offen offset:{64*ct} sc1")
    e("s_waitcnt vmcnt(0)")
    g.label("L_dq2")
    spin(F_Q, 1, 6, 7)
    e(f"""
    s_lshl_b32 s46, s45, 7
    s_add_u32 s46, s46, {TOK}
    v_lshlrev_b32 v28, 4, v3
    v_mov_b32 v29, 1
    s_mov_b32 s61, 0
    """)
    g.label("L_tk2")
    e(f"""
    s_and_b32 s55, s61, {ssm}
    s_cmp_eq_u32 s55, {ssm}
    s_cselect_b32 s55, 0, s3
    s_add_u32 s55, s55, s46
    buffer_load_dwordx2 v[30:31], v28, s[36:39], s55 offen sc1
    s_waitcnt vmcnt(0)
    v_xor_b32 v30, s98, v30
    v_xor_b32 v31, s99, v31
    v_or_b32 v30, v30, v31
    v_cmp_eq_u32 vcc, 0, v30
    s_nop 3
    s_cmp_eq_u64 vcc, -1
    s_cbranch_scc1 L_tk3
    s_add_u32 s61, s61, 1
    s_cmp_lt_u32 s61, {spin_limit}
    s_cbranch_scc1 L_tk2
    """)
    g.label("L_tk3")
    e(f"ds_write_b32 v6, v29 offset:{F_QC}\ns_waitcnt lgkmcnt(0)")
    e(f"""
    v_lshlrev_b32 v{FR+21}, 4, v2
    s_andn2_b32 s50, s45, 8
    s_lshl_b32 s50, s50, 10
    s_add_u32 s50, s50, {STATS}
    v_lshl_add_u32 v{FR+22}, v3, 8, v{FR+21}
    v_lshlrev_b32 v{FR+23}, 2, v1
    v_add_u32 v{FR+23}, {SCL}, v{FR+23}
    v_mov_b32 v{FR+24}, 1
    """)
    spin(C_L, 8, 6, 7)
    e("s_mov_b32 s61, 0")
    g.label("L_st6")
    e(f"""
    s_and_b32 s55, s61, {ssm}
    s_cmp_eq_u32 s55, {ssm}
    s_cselect_b32 s55, 0, s3
    s_add_u32 s55, s55, s50
    s_add_u32 s54, s55, 8192
    buffer_load_dwordx4 v[{A}:{A+3}], v{FR+22}, s[36:39], s55 offen sc1
    buffer_load_dwordx4 v[{A+8}:{A+11}], v{FR+22}, s[36:39], s54 offen sc1
    s_waitcnt vmcnt(0)
    v_xor_b32 v{A+2}, s98, v{A+2}
    v_xor_b32 v{A+3}, s99, v{A+3}
    v_xor_b32 v{A+10}, s98, v{A+10}
    v_xor_b32 v{A+11}, s99, v{A+11}
    v_or3_b32 v{A+2}, v{A+2}, v{A+3}, v{A+10}
    v_or_b32 v{A+2}, v{A+2}, v{A+11}
    v_cmp_eq_u32 vcc, 0, v{A+2}
    s_nop 3
    s_cmp_eq_u64 vcc, -1
    s_cbranch_scc1 L_st7
    s_add_u32 s61, s61, 1
    s_cmp_lt_u32 s61, {spin_limit}
    s_cbranch_scc1 L_st6
    """)
    g.label("L_st7")
    stamp(6)
    for be in range(2):
        B = A + 8 * be
        e(f"v_mov_b32 v{B+4}, v{B}")
        xreduce(B + 4, B + 5, "v_max_f32")
        e(f"""
        v_sub_f32 v{B}, v{B}, v{B+4}
        v_exp_f32 v{B+5}, v{B}
        s_nop 0
        v_mul_f32 v{B}, v{B+5}, v{B+1}
        """)
        xreduce(B, B + 1, "v_add_f32")
        e(f"""
        v_rcp_f32 v{B}, v{B}
        s_nop 0
        v_mul_f32 v{B+5}, v{B+5}, v{B}
        ds_write_b32 v{FR+23}, v{B+5} offset:{256*be}
        """)
    e(f"""
    s_waitcnt lgkmcnt(0)
    ds_write_b32 v6, v{FR+24} offset:{F_SCL}
    s_waitcnt lgkmcnt(0)
    """)
    g.label("L_tr")
    e("s_setprio 0\ns_waitcnt vmcnt(0)")
    g.label("L_tr2")
    e("s_mov_b32 s52, 0x05040100\ns_mov_b32 s53, 0x07060302")
    for j in range(4):
        src = WR + 16 * (j + 1); dst = WR + 16 * j
        for jc in range(4):
            for p in range(4):
                a = src + 2 * (2 * p) + (jc >> 1); b = src + 2 * (2 * p + 1) + (jc >> 1)
                e(f"v_perm_b32 v{dst+4*jc+p}, v{b}, v{a}, s{52 + (jc & 1)}")
    X = 120
    spin(F_N, 1, 6, X)
    e(f"""
    v_mov_b32 v{X+2}, {NON}
    ds_read_b64 v[{X}:{X+1}], v{X+2}
    v_and_b32 v4, 7, v2
    v_lshlrev_b32 v4, 8, v4
    v_lshl_add_u32 v4, v3, 4, v4
    v_add_u32 v4, {OB}, v4
    v_lshrrev_b32 v{X+3}, 2, v2
    v_lshlrev_b32 v{X+3}, 13, v{X+3}
    v_and_b32 v0, 3, v2
    v_lshl_add_u32 v{X+3}, v0, 5, v{X+3}
    v_lshrrev_b32 v0, 1, v3
    v_lshl_add_u32 v{X+3}, v0, 4, v{X+3}
    v_and_b32 v0, 1, v3
    v_lshl_add_u32 v{X+3}, v0, 18, v{X+3}
    s_andn2_b32 s50, s42, 1
    s_lshl_b32 s50, s50, 18
    s_and_b32 s51, s42, 1
    s_lshl_b32 s51, s51, 17
    s_add_u32 s50, s50, s51
    s_lshl_b32 s51, s48, 15
    s_add_u32 s50, s50, s51
    s_add_u32 s50, s50, s63
    s_add_u32 s96, s50, {MSG2}
    v_cmp_le_u32 s[6:7], 2, v3
    s_mov_b32 s98, {(~TMASK) & 0xffffffff}
    v_lshrrev_b32 v0, 5, v1
    v_and_b32 v{X+5}, 31, v1
    v_lshlrev_b32 v{X+4}, 12, v0
    v_lshl_add_u32 v{X+4}, v{X+5}, 4, v{X+4}
    s_andn2_b32 s50, s45, 8
    s_lshl_b32 s50, s50, 15
    s_lshl_b32 s51, s43, 13
    s_add_u32 s50, s50, s51
    s_lshl_b32 s51, s48, 9
    s_add_u32 s50, s50, s51
    s_add_u32 s54, s50, {MSG1}
    v_lshlrev_b32 v{X+5}, 1, v{X+5}
    v_lshl_add_u32 v{X+5}, v0, 9, v{X+5}
    s_lshl_b32 s50, s48, 6
    s_add_u32 s50, s50, {OB}
    v_add_u32 v{X+5}, s50, v{X+5}
    v_lshlrev_b32 v{X+6}, 7, v0
    s_lshl_b32 s50, s43, 4
    s_add_u32 s50, s50, {SCL}
    v_add_u32 v{X+6}, s50, v{X+6}
    s_waitcnt lgkmcnt(0)
    v_readfirstlane_b32 s50, v{X}
    v_readfirstlane_b32 s51, v{X+1}
    s_nop 3
    """)
    stags(50, 51)
    e("s_bitcmp0_b32 s44, 0\ns_cbranch_scc1 L_nodrain")
    for cnt, val in drain:
        e(f"s_waitcnt vmcnt({cnt})\nv_mov_b32 v5, {val}\nds_write_b32 v7, v5 offset:{PROG}")
    stamp(5)
    e("s_setprio 0")
    g.label("L_nodrain")
    SCV = 8
    spin(F_SCL, 1, 6, X, sleep=2)
    for be in range(2):
        for k in range(2):
            e(f"ds_read_b128 v[{SCV+8*be+4*k}:{SCV+8*be+4*k+3}], v{X+6} offset:{256*be + 64*k}")
    spin(PROG, 8, 6, X, sleep=2, two=True)
    e("s_mov_b32 s61, 0")
    stamp(7)
    R = 128
    g.label("L_m1l")
    e(f"""
    s_and_b32 s55, s61, {m1sm}
    s_cmp_eq_u32 s55, {m1sm}
    s_cselect_b32 s55, 0, s3
    s_add_u32 s55, s55, s54
    s_add_u32 s50, s55, 0x40000
    buffer_load_dwordx4 v[{R}:{R+3}], v{X+4}, s[36:39], s55 offen sc1
    buffer_load_dwordx4 v[{R+4}:{R+7}], v{X+4}, s[36:39], s55 offen offset:2048 sc1
    buffer_load_dwordx4 v[{R+8}:{R+11}], v{X+4}, s[36:39], s50 offen sc1
    buffer_load_dwordx4 v[{R+12}:{R+15}], v{X+4}, s[36:39], s50 offen offset:2048 sc1
    s_waitcnt vmcnt(0)
    """)
    for i in range(16):
        e(f"v_xor_b32 v{R+i}, s{56 + i % 4}, v{R+i}")
    e(f"v_or3_b32 v5, v{R}, v{R+1}, v{R+2}")
    for i in range(3, 15, 2):
        e(f"v_or3_b32 v5, v5, v{R+i}, v{R+i+1}")
    e(f"v_or_b32 v5, v5, v{R+15}")
    check(5, "L_m1g", "L_m1l", spin_limit)
    g.label("L_m1g")
    stamp(10)
    for be in range(2):
        a = R + 8 * be; sc = SCV + 8 * be
        e(f"""
        v_pk_mul_f32 v[{a}:{a+1}], v[{a}:{a+1}], v[{sc}:{sc+1}]
        v_pk_mul_f32 v[{a+2}:{a+3}], v[{a+2}:{a+3}], v[{sc+2}:{sc+3}]
        v_pk_fma_f32 v[{a}:{a+1}], v[{a+4}:{a+5}], v[{sc+4}:{sc+5}], v[{a}:{a+1}]
        v_pk_fma_f32 v[{a+2}:{a+3}], v[{a+6}:{a+7}], v[{sc+6}:{sc+7}], v[{a+2}:{a+3}]
        """)
    for be in range(2):
        a = R + 8 * be
        for i in range(4): e(f"v_mov_b32 v{a+4+i}, v{a+i}")
    for be in range(2):
        a = R + 8 * be
        for i in range(4): e(f"v_permlane32_swap_b32 v{a+i}, v{a+4+i}")
    e("s_nop 0")
    for be in range(2):
        a = R + 8 * be
        e(f"""
        v_pk_add_f32 v[{a}:{a+1}], v[{a}:{a+1}], v[{a+4}:{a+5}]
        v_pk_add_f32 v[{a+2}:{a+3}], v[{a+2}:{a+3}], v[{a+6}:{a+7}]
        v_cvt_pk_bf16_f32 v{a+4}, v{a}, v{a+1}
        v_cvt_pk_bf16_f32 v{a+5}, v{a+2}, v{a+3}
        s_nop 0
        v_cndmask_b32 v{a+4}, v{a+4}, v{a+5}, s[6:7]
        ds_write_b16 v{X+5}, v{a+4} offset:{1024*be}
        ds_write_b16_d16_hi v{X+5}, v{a+4} offset:{1024*be+256}
        """)
    e("s_waitcnt lgkmcnt(0)\ns_barrier")
    stamp(8)
    AF = 144; OA = 104
    for j in range(4):
        e(f"ds_read_b128 v[{AF+4*j}:{AF+4*j+3}], v4 offset:{64*j}")
    for j in range(4):
        e(f"s_waitcnt lgkmcnt({3-j})")
        for q in range(4):
            c = "0" if j == 0 else f"v[{OA+4*q}:{OA+4*q+3}]"
            b = WR + 16 * j + 4 * q
            e(f"v_mfma_f32_16x16x32_bf16 v[{OA+4*q}:{OA+4*q+3}], v[{AF+4*j}:{AF+4*j+3}], v[{b}:{b+3}], {c}")
    g.nop(8)
    for h in range(2):
        t0 = 8 + 4 * h
        for r in range(4):
            e(f"v_cndmask_b32 v{t0+r}, v{OA+8*h+r}, v{OA+8*h+4+r}, s[6:7]")
        for r in range(4):
            e(f"v_and_b32 v{t0+r}, s98, v{t0+r}\nv_or_b32 v{t0+r}, s{56+r}, v{t0+r}")
        e(f"buffer_store_dwordx4 v[{t0}:{t0+3}], v{X+3}, s[36:39], s96 offen offset:{128*h} sc1")
    stamp(9)
    if ackwait: e("s_waitcnt vmcnt(0)")
    if wb:
        e(f"s_and_b32 s50, s41, {wb - 1}\ns_lshl_b32 s50, s50, 4\ns_add_u32 s50, s50, s44\ns_cmp_lg_u32 s50, 10\ns_cbranch_scc1 L_nowb\nbuffer_wbl2 sc1")
        g.label("L_nowb")
    e(f"v_mov_b32 v6, {SYN}\nv_mov_b32 v7, 1\ns_mov_b64 exec, 1\nds_add_u32 v6, v7 offset:{C_M2}\ns_mov_b64 exec, -1")
    stamp_store()

    hdr = f"""; Fused GQA decode block (q-proj -> split-KV attention -> out-proj) in ONE launch, 256 workgroups x 12 waves.
; @launch grid=(256,1,1) block=({64*NW},1,1) lds={LDS_TOTAL}
.amdgcn_target "amdgcn-amd-amdhsa--gfx950"
.text
.globl {KNAME}
.p2align 8
.type {KNAME},@function
{KNAME}:
"""
    ftr = f"""L_done:
    s_endpgm
.section .rodata,"a"
.p2align 6
.amdhsa_kernel {KNAME}
  .amdhsa_next_free_vgpr 168
  .amdhsa_next_free_sgpr 102
  .amdhsa_accum_offset 168
  .amdhsa_group_segment_fixed_size 0
  .amdhsa_kernarg_size 64
  .amdhsa_user_sgpr_count 2
  .amdhsa_user_sgpr_kernarg_segment_ptr 1
  .amdhsa_system_sgpr_workgroup_id_x 1
  .amdhsa_float_denorm_mode_32 3
.end_amdhsa_kernel
"""
    body = "\n".join(l for l in g.text().split("\n") if l.strip()) + "\n"
    return hdr + body + ftr

if __name__ == "__main__":
    open("g42.s", "w").write(gen())
    open("g42_st.s", "w").write(gen(stamps=True))
    open("g42_t12.s", "w").write(gen(THW=12))
    open("g42_t16.s", "w").write(gen(THW=16))
```

```python
import sys
from gen1 import G, KNAME

STATS = 0x80000
TOK = 0xA0000
MSG1 = 0x100000
MSG2 = 0x300000
QWS = 0x600000
DBGA = 0x800000
FAST = 0x1000000
AUX1 = 131072
AUX2 = 147456
MX = AUX2
LS = AUX2 + 512
SCL = AUX2 + 1024
NON = AUX2 + 1536
SYN = AUX2 + 1600
PROG = 0
C_PART, F_PD, F_Q, C_M, C_L, F_N, F_SCL = [8 + 4 * i for i in range(7)]
C_KR = 40
C_M2 = 56
F_QC = 60
OB = AUX2 + 2048
QL = AUX2 + 4096
RED = AUX2 + 8192
LDS_TOTAL = 163840
TAGB = 11
TMASK = (1 << TAGB) - 1
QTB = 7
QMASK = (1 << QTB) - 1
NW = 12

def gen(stamps=False, spin_limit=20000, THW=8, WS=(32, 32, 20, 18, 16, 14, 12, 10), wo_start=1, wopol="", wqpol="", xpol="",
        kvpol="nt", ldprio=3, ld_early=0, forceslow=False, probe=False, qsm=15, ssm=15, m1sm=31, prest=False, overlay=True, pend=False, ackwait=True, m2sleep=0, nwait=0, wb=0, cas=False, snonce=0, early_lead=False, npipe=4, psleep=4, qat=2, slp=2, ptw=0):
    g = G()
    e = g.e
    nst = [0]
    def stamp(idx=None):
        if not stamps: return
        i = nst[0] if idx is None else idx
        if idx is None: nst[0] += 1
        assert i < 14
        e(f"s_memrealtime s[100:101]\ns_waitcnt lgkmcnt(0)\ns_mov_b32 s{80+i}, s100")
    def stamp_store():
        if not stamps: return
        e(f"s_mul_i32 s50, s2, {NW}\ns_add_u32 s50, s50, s44\ns_lshl_b32 s50, s50, 6\ns_add_u32 s50, s50, {DBGA}\nv_mov_b32 v24, 0\ns_mov_b64 exec, 1")
        for i in range(0, 16, 4):
            for k in range(4): e(f"v_mov_b32 v{28+k}, s{80+i+k}")
            e(f"buffer_store_dwordx4 v[28:31], v24, s[36:39], s50 offen offset:{4*i}\ns_nop 1")
    def xreduce(r, tmp, op):
        for sw in ("v_permlane32_swap_b32", "v_permlane16_swap_b32"):
            e(f"v_mov_b32 v{tmp}, v{r}\ns_nop 1\n{sw} v{r}, v{tmp}\ns_nop 0\n{op} v{r}, v{r}, v{tmp}")
    def xsum4(a, t, sws=("v_permlane32_swap_b32", "v_permlane16_swap_b32")):
        for sw in sws:
            for i in range(4): e(f"v_mov_b32 v{t+i}, v{a+i}")
            e("s_nop 0")
            for i in range(4): e(f"{sw} v{a+i}, v{t+i}")
            e("s_nop 0")
            e(f"v_pk_add_f32 v[{a}:{a+1}], v[{a}:{a+1}], v[{t}:{t+1}]\nv_pk_add_f32 v[{a+2}:{a+3}], v[{a+2}:{a+3}], v[{t+2}:{t+3}]")
    def spin(word, val, vsyn, vtmp, sleep=1, two=False):
        l1, l2 = g.newlabel("Lsp"), g.newlabel("Lspd")
        e("s_mov_b32 s61, 0")
        g.label(l1)
        if two:
            e(f"ds_read_b64 v[{vtmp}:{vtmp+1}], v{vsyn} offset:{word}\ns_waitcnt lgkmcnt(0)\nv_min_u32 v{vtmp}, v{vtmp}, v{vtmp+1}\ns_nop 0")
        else:
            e(f"ds_read_b32 v{vtmp}, v{vsyn} offset:{word}\ns_waitcnt lgkmcnt(0)")
        e(f"""
        v_readfirstlane_b32 s60, v{vtmp}
        s_nop 3
        s_cmp_ge_u32 s60, {val}
        s_cbranch_scc1 {l2}
        {f's_sleep {sleep}' if sleep else ''}
        s_add_u32 s61, s61, 1
        s_cmp_lt_u32 s61, {spin_limit * 20}
        s_cbranch_scc1 {l1}
        """)
        g.label(l2)
    def arrive(word, vsyn, vone):
        e(f"s_waitcnt lgkmcnt(0)\ns_mov_b64 exec, 1\nds_add_u32 v{vsyn}, v{vone} offset:{word}\ns_mov_b64 exec, -1")
    def srd(d, p, size):
        e(f"s_mov_b32 s{d}, s{p}\ns_mov_b32 s{d+1}, s{p+1}\ns_mov_b32 s{d+2}, {size}\ns_mov_b32 s{d+3}, 0x00020000")
    def stags(lo, hi):
        e(f"""
        s_and_b32 s56, s{lo}, {TMASK}
        s_bfe_u32 s57, s{lo}, {TAGB | (TAGB << 16)}
        s_lshr_b64 s[58:59], s[{lo}:{hi}], {2*TAGB}
        s_and_b32 s58, s58, {TMASK}
        s_bfe_u32 s59, s{hi}, {(3*TAGB-32) | (TAGB << 16)}
        """)
    def qtags(lo):
        for i in range(4):
            e(f"s_bfe_u32 s{56+i}, s{lo}, {(QTB*i) | (QTB << 16)}")
        e("s_xor_b32 s56, s56, 1")
    def check(vreg, lok, lloop, lim, slp=0, mask=TMASK):
        e(f"""
        v_and_b32 v{vreg}, {mask}, v{vreg}
        v_cmp_eq_u32 vcc, 0, v{vreg}
        s_nop 3
        s_cmp_eq_u64 vcc, -1
        s_cbranch_scc1 {lok}
        {f's_sleep {slp}' if slp else ''}
        s_add_u32 s61, s61, 1
        s_cmp_lt_u32 s61, {lim}
        s_cbranch_scc1 {lloop}
        """)
    WB = 8
    WR = 40
    def wo_issue(i, tagp):
        j, ee = i // 8, i % 8
        r = WR + 16 * (j + 1) + 2 * ee
        off = (32 * j + ee) * 1024
        e(f"s_add_u32 s50, s97, {off & ~4095}")
        g.vm(f"buffer_load_dwordx2 v[{r}:{r+1}], v4, s[24:27], s50 offen offset:{off & 4095} {wopol}", f"{tagp}{i}")
    e(f"""
    s_cmp_ge_u32 s2, 256
    s_cbranch_scc1 L_done
    s_load_dwordx16 s[64:79], s[0:1], 0
    s_memrealtime s[98:99]
    v_and_b32 v1, 63, v0
    v_lshrrev_b32 v4, 6, v0
    v_and_b32 v2, 15, v0
    v_bfe_u32 v3, v0, 4, 2
    v_readfirstlane_b32 s44, v4
    s_and_b32 s40, s2, 7
    s_lshr_b32 s41, s2, 3
    s_lshr_b32 s42, s41, 2
    s_and_b32 s43, s41, 3
    s_lshl_b32 s45, s42, 3
    s_add_u32 s45, s45, s40
    s_lshl_b32 s51, s40, 2
    s_add_u32 s51, s51, s43
    s_lshl_b32 s63, s51, 8
    s_mov_b32 s3, {FAST}
    v_mov_b32 v6, {SYN}
    s_cmp_lt_u32 s44, 8
    s_cbranch_scc1 L_cw
    s_sub_u32 s48, s44, 8
    v_lshlrev_b32 v4, 13, v3
    v_lshl_add_u32 v4, v2, 3, v4
    s_lshl_b32 s97, s63, 9
    s_lshl_b32 s50, s48, 7
    s_add_u32 s97, s97, s50
    s_and_b32 s50, s42, 1
    s_lshl_b32 s50, s50, 9
    s_add_u32 s97, s97, s50
    s_bitcmp0_b32 s44, 0
    s_cbranch_scc1 L_op
    """)
    e(f"""
    s_setprio {ldprio}
    s_lshr_b32 s49, s48, 1
    s_lshl_b32 s46, s45, 2
    s_add_u32 s46, s46, s43
    s_lshl_b32 s46, s46, 17
    s_lshl_b32 s47, s49, 16
    s_add_u32 s46, s46, s47
    s_lshl_b32 s50, s49, 2
    v_add_u32 v7, s50, v6
    s_add_u32 s94, s41, s40
    v_xor_b32 v8, v2, v3
    v_lshlrev_b32 v8, 4, v8
    v_lshl_add_u32 v8, v3, 8, v8
    v_lshlrev_b32 v12, 1, v3
    v_xor_b32 v12, v2, v12
    v_lshlrev_b32 v12, 4, v12
    v_lshl_add_u32 v12, v3, 8, v12
    v_xor_b32 v9, 64, v8
    v_xor_b32 v10, 0x80, v8
    v_xor_b32 v11, 0xc0, v8
    v_xor_b32 v13, 0x80, v12
    s_add_u32 s95, s42, s49
    """)
    for x in range(4):
        e(f"s_add_u32 s50, s94, {x}\ns_and_b32 s50, s50, 3\ns_lshl_b32 s50, s50, 12\ns_add_u32 s{52+x}, s50, s46")
        e(f"s_add_u32 s50, s95, {x}\ns_and_b32 s50, s50, 3\ns_lshl_b32 s{56+x}, s50, 10")
    e("s_waitcnt lgkmcnt(0)")
    srd(12, 66, 0x2000000); srd(16, 68, 0x2000000); srd(24, 72, 0x400000); srd(36, 78, 0x10000000)
    stamp(0)
    if not ld_early: e("s_barrier")
    kv = []; woi = [0]; sig = [0]; known = [0]
    for ph in range(2):
        for t in range(4):
            if ph == 0 and t == 3: spin(F_PD, 1, 6, 15)
            if ph == 1: spin(C_KR + 4 * t, 8, 6, 15)
            for k in range(4):
                for u in range(4):
                    n = len(kv)
                    if ld_early and n == ld_early: e("s_barrier")
                    Wc = WS[n // 16]
                    if n >= Wc and n - Wc + 1 > known[0]:
                        g.wait(kv[n - Wc]); known[0] = n - Wc + 1
                    e(f"s_add_u32 m0, s47, {16384*u + 4096*t + 1024*k}\ns_add_u32 s50, s{52 + (t+u)%4}, s{56 + (k+u)%4}\ns_add_u32 s50, s50, {16384*u}")
                    if ph == 0:
                        g.vm(f"buffer_load_dwordx4 v{8+k}, s[12:15], s50 offen {kvpol} lds", f"kv{n}")
                    else:
                        g.vm(f"buffer_load_dwordx4 v{12+(k&1)}, s[16:19], s50 offen {kvpol} lds", f"kv{n}")
                    kv.append(f"kv{n}")
                    while sig[0] < 8 and known[0] >= 16 * (sig[0] + 1):
                        sig[0] += 1
                        e(f"v_mov_b32 v14, {sig[0]}\nds_write_b32 v7, v14 offset:{PROG}")
                    gi = ph * 4 + t
                    if gi >= wo_start and woi[0] < 32 and (n % (3 if wo_start <= 1 else 2) == 0 or gi >= 6):
                        wo_issue(woi[0], "wl"); woi[0] += 1
    assert woi[0] == 32, woi[0]
    stamp(4)
    g.wait("wl31")
    e("s_branch L_tr2")
    drain = []
    while sig[0] < 8:
        drain.append((g.nvm - g.pos[kv[16 * (sig[0] + 1) - 1]], sig[0] + 1))
        sig[0] += 1

    g.label("L_cw")
    e(f"""
    s_lshl_b32 s47, s44, 14
    s_and_b32 s52, s43, 1
    s_lshr_b32 s53, s43, 1
    s_lshl_b32 s46, s52, 2
    s_add_u32 s46, s46, s44
    s_and_b32 s46, s46, 7
    s_lshl_b32 s50, s53, 3
    s_add_u32 s46, s46, s50
    v_lshrrev_b32 v14, 2, v1
    v_and_b32 v15, 3, v1
    v_lshlrev_b32 v15, 4, v15
    v_lshl_add_u32 v16, v14, 10, v15
    v_lshl_add_u32 v14, v14, 13, v15
    s_lshl_b32 s50, s46, 18
    s_lshl_b32 s51, s40, 10
    s_add_u32 s50, s50, s51
    s_lshl_b32 s51, s42, 7
    s_add_u32 s50, s50, s51
    s_lshl_b32 s51, s52, 6
    s_add_u32 s50, s50, s51
    s_lshl_b32 s51, s44, 11
    s_add_u32 s62, s51, {AUX1}
    s_lshl_b32 s51, s46, 6
    s_waitcnt lgkmcnt(0)
    """)
    if early_lead:
        e("s_or_b32 s54, s2, s44\ns_cmp_lg_u32 s54, 0\ns_cbranch_scc1 L_nolead")
        srd(32, 76, 256)
        e("""
        s_lshl_b64 s[98:99], s[98:99], 1
        s_or_b32 s98, s98, 1
        s_or_b32 s99, s99, 0x80000000
        v_mov_b32 v22, s98
        v_mov_b32 v23, s99
        v_mov_b32 v24, 0
        s_mov_b64 exec, 1
        buffer_store_dwordx2 v[22:23], v24, s[32:35], 0 offen sc0 sc1
        s_mov_b64 exec, -1
        """)
        g.label("L_nolead")
    srd(20, 70, 0x400000); srd(8, 64, 32768)
    stamp()
    e(f"""
    s_mov_b32 m0, s62
    s_add_u32 s54, s50, 0x20000
    buffer_load_dwordx4 v14, s[20:23], s50 offen {wqpol} lds
    s_add_u32 m0, s62, 1024
    s_add_u32 s55, s51, 16384
    buffer_load_dwordx4 v14, s[20:23], s54 offen {wqpol} lds
    s_add_u32 m0, s47, 12288
    s_nop 0
    buffer_load_dwordx4 v16, s[8:11], s51 offen {xpol} lds
    s_add_u32 m0, s47, 13312
    s_nop 0
    buffer_load_dwordx4 v16, s[8:11], s55 offen {xpol} lds
    s_barrier
    """)
    srd(28, 74, 32768); srd(36, 78, 0x10000000)
    e(f"""
    v_lshrrev_b32 v24, 2, v2
    v_lshl_add_u32 v24, v3, 3, v24
    v_lshlrev_b32 v24, 6, v24
    v_and_b32 v25, 3, v1
    v_lshl_add_u32 v24, v25, 3, v24
    v_add_u32 v24, s62, v24
    v_lshlrev_b32 v25, 6, v2
    v_lshl_add_u32 v25, v3, 4, v25
    v_add_u32 v25, s47, v25
    v_lshlrev_b32 v27, 4, v1
    v_add_u32 v27, s47, v27
    v_mov_b32 v20, {SYN}
    v_mov_b32 v21, 1
    s_lshr_b32 s50, s44, 2
    s_lshl_b32 s50, s50, 2
    v_add_u32 v19, s50, v20
    v_lshlrev_b32 v16, 13, v3
    v_lshl_add_u32 v16, v2, 4, v16
    s_lshl_b32 s50, s45, 15
    s_lshl_b32 s51, s43, 11
    s_add_u32 s50, s50, s51
    s_lshl_b32 s51, s44, 8
    s_add_u32 s50, s50, s51
    s_add_u32 s50, s50, {MSG1}
    v_add_u32 v16, s50, v16
    v_lshlrev_b32 v17, 8, v2
    v_lshl_add_u32 v17, v3, 4, v17
    v_add_u32 v17, {QL}, v17
    v_mov_b32 v18, {NON}
    v_xor_b32 v12, v2, v3
    v_lshlrev_b32 v12, 4, v12
    v_lshlrev_b32 v13, 8, v2
    v_add_u32 v13, s47, v13
    v_add_u32 v28, v13, v12
    v_xor_b32 v29, 64, v12
    v_add_u32 v29, v13, v29
    v_xor_b32 v30, 0x80, v12
    v_add_u32 v30, v13, v30
    v_xor_b32 v31, 0xc0, v12
    v_add_u32 v31, v13, v31
    v_mov_b32 v160, 0
    v_mov_b32 v161, 0
    v_mov_b32 v162, 0
    v_mov_b32 v163, 0
    s_waitcnt vmcnt(0)
    """)
    if prest: e("buffer_store_dwordx4 v[160:163], v16, s[36:39], s3 offen")
    stamp()
    XF = 96; WF = 104; QA = 112
    for ct in range(2):
        e(f"ds_read_b64_tr_b16 v[{WF+4*ct}:{WF+4*ct+1}], v24 offset:{32*ct}")
        e(f"ds_read_b64_tr_b16 v[{WF+4*ct+2}:{WF+4*ct+3}], v24 offset:{32*ct+256}")
    for rt in range(2):
        e(f"ds_read_b128 v[{XF+4*rt}:{XF+4*rt+3}], v25 offset:{12288 + 1024*rt}")
    e("s_waitcnt lgkmcnt(0)")
    for ct in range(2):
        for rt in range(2):
            q = QA + 4 * (2 * ct + rt)
            e(f"v_mfma_f32_16x16x32_bf16 v[{q}:{q+3}], v[{WF+4*ct}:{WF+4*ct+3}], v[{XF+4*rt}:{XF+4*rt+3}], 0")
    g.nop(8)
    for i in range(4):
        e(f"ds_write_b128 v27, v[{QA+4*i}:{QA+4*i+3}] offset:{12288 + 1024*i}")
    arrive(C_PART, 20, 21)
    stamp()
    KF = 32
    for t in range(4):
        spin(PROG, t + 1, 19, 22, sleep=slp)
        for j in range(4):
            r = KF + 16 * t + 4 * j
            e(f"ds_read_b128 v[{r}:{r+3}], v{28+j} offset:{4096*t}")
        arrive(C_KR + 4 * t, 20, 21)
    stamp()
    spin(F_Q, 1, 20, 22, sleep=slp)
    e("s_mov_b32 s94, s60")
    stamp()
    QF = 96; SA = 112; T = 128
    for j in range(4):
        e(f"ds_read_b128 v[{QF+4*j}:{QF+4*j+3}], v17 offset:{64*j}")
    e("ds_read_b64 v[22:23], v18")
    for j in range(4):
        e(f"s_waitcnt lgkmcnt({4-j})")
        for t in range(4):
            r = KF + 16 * t + 4 * j
            c = "0" if j == 0 else f"v[{SA+4*t}:{SA+4*t+3}]"
            e(f"v_mfma_f32_16x16x32_bf16 v[{SA+4*t}:{SA+4*t+3}], v[{r}:{r+3}], v[{QF+4*j}:{QF+4*j+3}], {c}")
    e(f"""
    s_waitcnt lgkmcnt(0)
    v_and_b32 v4, {TMASK}, v22
    v_bfe_u32 v5, v22, {TAGB}, {TAGB}
    v_alignbit_b32 v6, v23, v22, {2*TAGB}
    v_and_b32 v6, {TMASK}, v6
    v_bfe_u32 v7, v23, {3*TAGB-32}, {TAGB}
    s_mov_b32 s50, 0x3db504f3
    s_mov_b32 s51, 0xffff0000
    s_mov_b32 s99, 0x3fb8aa3b
    s_nop 1
    """)
    for p in range(8):
        a = SA + 2 * p
        e(f"""
        v_cvt_pk_bf16_f32 v{T}, v{a}, v{a+1}
        v_lshlrev_b32 v{a}, 16, v{T}
        v_and_b32 v{a+1}, s51, v{T}
        v_mul_f32 v{a}, s50, v{a}
        v_mul_f32 v{a+1}, s50, v{a+1}
        v_cvt_pk_bf16_f32 v{T}, v{a}, v{a+1}
        v_lshlrev_b32 v{a}, 16, v{T}
        v_and_b32 v{a+1}, s51, v{T}
        """)
    e(f"v_max3_f32 v{T}, v{SA}, v{SA+1}, v{SA+2}")
    for i in range(3, 15, 2):
        e(f"v_max3_f32 v{T}, v{T}, v{SA+i}, v{SA+i+1}")
    e(f"v_max_f32 v{T}, v{T}, v{SA+15}")
    xreduce(T, T + 1, "v_max_f32")
    e(f"""
    v_lshlrev_b32 v12, 5, v2
    v_add_u32 v12, {MX}, v12
    s_lshl_b32 s50, s44, 2
    v_add_u32 v13, s50, v12
    ds_write_b32 v13, v{T}
    """)
    arrive(C_M, 20, 21)
    spin(C_M, 8, 20, 22)
    e(f"ds_read_b128 v[{T+4}:{T+7}], v12\nds_read_b128 v[{T+8}:{T+11}], v12 offset:16\ns_waitcnt lgkmcnt(0)")
    e(f"""
    v_max3_f32 v{T}, v{T+4}, v{T+5}, v{T+6}
    v_max3_f32 v{T}, v{T}, v{T+7}, v{T+8}
    v_max3_f32 v{T}, v{T}, v{T+9}, v{T+10}
    v_max_f32 v{T}, v{T}, v{T+11}
    v_mul_f32 v23, s99, v{T}
    """)
    for i in range(16):
        e(f"v_fma_f32 v{SA+i}, v{SA+i}, s99, -v23")
    for i in range(16):
        e(f"v_exp_f32 v{SA+i}, v{SA+i}")
    e("s_nop 0")
    e(f"v_lshlrev_b32 v14, 3, v1\nv_add_u32 v14, s62, v14")
    for t in range(4):
        a = SA + 4 * t
        e(f"v_cvt_pk_bf16_f32 v{T+2*t}, v{a}, v{a+1}\nv_cvt_pk_bf16_f32 v{T+2*t+1}, v{a+2}, v{a+3}")
        e(f"ds_write_b64 v14, v[{T+2*t}:{T+2*t+1}] offset:{512*t}")
    for st in (8, 4, 2):
        for i in range(0, st, 2):
            a = SA + i; b = SA + i + st
            e(f"v_pk_add_f32 v[{a}:{a+1}], v[{a}:{a+1}], v[{b}:{b+1}]")
    e(f"v_add_f32 v{SA}, v{SA}, v{SA+1}")
    xreduce(SA, SA + 1, "v_add_f32")
    e(f"ds_write_b32 v13, v{SA} offset:512")
    arrive(C_L, 20, 21)
    PF = 32; BF = 112; PVA = 160; SC = 164
    e(f"""
    v_lshrrev_b32 v24, 2, v2
    v_lshl_add_u32 v24, v3, 2, v24
    v_and_b32 v25, 7, v24
    v_lshlrev_b32 v25, 1, v25
    v_bfe_u32 v27, v1, 1, 1
    s_lshl_b32 s50, s44, 1
    v_add_u32 v27, s50, v27
    v_xor_b32 v25, v25, v27
    v_lshlrev_b32 v25, 4, v25
    v_lshl_add_u32 v25, v24, 8, v25
    v_and_b32 v27, 1, v1
    v_lshl_add_u32 v25, v27, 3, v25
    v_add_u32 v26, 0x10000, v25
    v_lshlrev_b32 v27, 3, v1
    v_add_u32 v27, {AUX1}, v27
    v_and_b32 v30, 1, v3
    v_lshlrev_b32 v30, 4, v30
    v_cmp_le_u32 s[6:7], 2, v3
    v_lshlrev_b32 v19, 4, v3
    v_add_u32 v19, {SCL}, v19
    s_mov_b32 s98, {(~TMASK) & 0xffffffff}
    """)
    spin(C_L, 8, 20, 22)
    stamp()
    lnp = g.newlabel("Lnp")
    A = 128
    e(f"""
    s_cmp_lg_u32 s44, 1
    s_cbranch_scc1 {lnp}
    ds_read_b128 v[{A+8}:{A+11}], v12 offset:512
    ds_read_b128 v[{A+12}:{A+15}], v12 offset:528
    ds_read_b64 v[{A+18}:{A+19}], v18
    v_lshlrev_b32 v{A+21}, 4, v2
    s_lshl_b32 s50, s45, 10
    s_add_u32 s50, s50, {STATS}
    s_lshl_b32 s51, s43, 8
    s_add_u32 s51, s51, s50
    v_mov_b32 v{A+16}, v23
    s_waitcnt lgkmcnt(0)
    v_pk_add_f32 v[{A+8}:{A+9}], v[{A+8}:{A+9}], v[{A+10}:{A+11}]
    v_pk_add_f32 v[{A+12}:{A+13}], v[{A+12}:{A+13}], v[{A+14}:{A+15}]
    v_pk_add_f32 v[{A+8}:{A+9}], v[{A+8}:{A+9}], v[{A+12}:{A+13}]
    v_add_f32 v{A+17}, v{A+8}, v{A+9}
    s_mov_b64 exec, 0xffff
    s_add_u32 s55, s51, s3
    buffer_store_dwordx4 v[{A+16}:{A+19}], v{A+21}, s[36:39], s55 offen
    s_cmp_eq_u32 s94, 2
    s_cbranch_scc1 L_std
    buffer_store_dwordx4 v[{A+16}:{A+19}], v{A+21}, s[36:39], s51 offen sc1
    """)
    g.label("L_std")
    e("s_mov_b64 exec, -1")
    g.label(lnp)
    for k in range(4):
        for i in range(4):
            r = PF + 16 * k + 4 * i
            e(f"ds_read2st64_b64 v[{r}:{r+3}], v27 offset0:{8*i+k} offset1:{8*i+4+k}")
        if k == 1: e("s_waitcnt lgkmcnt(0)")
    first = [True]
    def pv_phase(k):
        for i in range(4):
            for hf in range(2):
                u = 2 * i + hf
                r = BF + 4 * i + 2 * hf
                e(f"ds_read_b64_tr_b16 v[{r}:{r+1}], v{25 if u < 4 else 26} offset:{(u % 4) * 16384 + 4096 * k}")
        for i in range(4):
            e(f"s_waitcnt lgkmcnt({6 - 2*i})")
            c = "0" if first[0] else f"v[{PVA}:{PVA+3}]"
            first[0] = False
            e(f"v_mfma_f32_16x16x32_bf16 v[{PVA}:{PVA+3}], v[{PF+16*k+4*i}:{PF+16*k+4*i+3}], v[{BF+4*i}:{BF+4*i+3}], {c}")
    for k in range(3):
        spin(PROG, 5 + k, 20, 22, sleep=slp, two=True)
        pv_phase(k)
    stamp()
    spin(F_QC, 1, 20, 22, sleep=1)
    stamp()
    spin(PROG, 8, 20, 22, sleep=0, two=True)
    stamp()
    pv_phase(3)
    g.nop(8)
    for i in range(4):
        e(f"v_and_or_b32 v{PVA+i}, v{PVA+i}, s98, v{4+i}")
    lsd = g.newlabel("Lsd")
    e(f"""
    buffer_store_dwordx4 v[{PVA}:{PVA+3}], v16, s[36:39], s3 offen
    s_cmp_eq_u32 s94, 2
    s_cbranch_scc1 {lsd}
    buffer_store_dwordx4 v[{PVA}:{PVA+3}], v16, s[36:39], 0 offen sc1
    """)
    g.label(lsd)
    stamp()
    nst[0] = 12
    lend = g.newlabel("Lend")
    e(f"s_cmp_lg_u32 s44, 0\ns_cbranch_scc1 {lend}")
    e(f"""
    v_lshlrev_b32 v24, 4, v1
    s_lshl_b32 s50, s42, 18
    s_lshl_b32 s51, s63, 5
    s_add_u32 s50, s50, s51
    s_add_u32 s50, s50, {MSG2}
    s_add_u32 s51, s50, 4096
    v_lshlrev_b32 v25, 10, v3
    v_and_b32 v26, 1, v2
    v_lshl_add_u32 v25, v26, 1, v25
    v_bfe_u32 v26, v2, 1, 2
    v_lshl_add_u32 v25, v26, 3, v25
    v_lshrrev_b32 v26, 3, v2
    v_lshl_add_u32 v25, v26, 2, v25
    s_lshl_b32 s96, s42, 12
    s_lshr_b32 s97, s63, 3
    s_add_u32 s96, s96, s97
    s_barrier
    """)
    spin(C_M2, 4, 20, 22, sleep=1)
    e("s_mov_b32 s61, 0")
    if pend:
        ll, lg = g.newlabel("Lm2l"), g.newlabel("Lm2g")
        FB = 32; RB = 64
        e("s_mov_b32 s52, 0xff")
        g.label(ll)
        for i in range(8):
            lk = g.newlabel("Lp")
            e(f"s_bitcmp0_b32 s52, {i}\ns_cbranch_scc1 {lk}\nbuffer_load_dwordx4 v[{RB+4*i}:{RB+4*i+3}], v24, s[36:39], s{50 + i // 4} offen offset:{(i % 4) * 1024} sc1")
            g.label(lk)
        e("s_waitcnt vmcnt(0)")
        for i in range(8):
            lk = g.newlabel("Lp")
            e(f"""
            s_bitcmp0_b32 s52, {i}
            s_cbranch_scc1 {lk}
            v_xor_b32 v{FB+4*i}, v{RB+4*i}, v4
            v_xor_b32 v{FB+4*i+1}, v{RB+4*i+1}, v5
            v_xor_b32 v{FB+4*i+2}, v{RB+4*i+2}, v6
            v_xor_b32 v{FB+4*i+3}, v{RB+4*i+3}, v7
            v_or3_b32 v28, v{FB+4*i}, v{FB+4*i+1}, v{FB+4*i+2}
            v_or_b32 v28, v28, v{FB+4*i+3}
            v_and_b32 v28, {TMASK}, v28
            v_cmp_eq_u32 vcc, 0, v28
            s_nop 3
            s_cmp_eq_u64 vcc, -1
            s_cbranch_scc0 {lk}
            s_bitset0_b32 s52, {i}
            """)
            g.label(lk)
        e(f"""
        s_cmp_eq_u32 s52, 0
        s_cbranch_scc1 {lg}
        s_add_u32 s61, s61, 1
        s_cmp_lt_u32 s61, {spin_limit}
        s_cbranch_scc1 {ll}
        """)
    else:
        ll, lg = g.newlabel("Lm2l"), g.newlabel("Lm2g")
        g.label(ll)
        FB = 32
        for i in range(8):
            e(f"buffer_load_dwordx4 v[{FB+4*i}:{FB+4*i+3}], v24, s[36:39], s{50 + i // 4} offen offset:{(i % 4) * 1024} sc1")
        e("s_waitcnt vmcnt(0)")
        for i in range(32):
            e(f"v_xor_b32 v{FB+i}, v{FB+i}, v{4 + i % 4}")
        e(f"v_or3_b32 v28, v{FB}, v{FB+1}, v{FB+2}")
        for i in range(3, 31, 2):
            e(f"v_or3_b32 v28, v28, v{FB+i}, v{FB+i+1}")
        e(f"v_or_b32 v28, v28, v{FB+31}")
        check(28, lg, ll, spin_limit, m2sleep)
    g.label(lg)
    stamp()
    for st in (4, 2, 1):
        for w in range(st):
            a = FB + 4 * w; b = FB + 4 * (w + st)
            e(f"v_pk_add_f32 v[{a}:{a+1}], v[{a}:{a+1}], v[{b}:{b+1}]\nv_pk_add_f32 v[{a+2}:{a+3}], v[{a+2}:{a+3}], v[{b+2}:{b+3}]")
    xsum4(FB, FB + 4)
    e(f"""
    v_cvt_pk_bf16_f32 v28, v{FB}, v{FB+1}
    v_cvt_pk_bf16_f32 v29, v{FB+2}, v{FB+3}
    s_nop 0
    v_cndmask_b32 v28, v28, v29, s[6:7]
    v_lshrrev_b32 v28, v30, v28
    buffer_store_short v28, v25, s[28:31], s96 offen
    """)
    g.label(lend)
    stamp()
    stamp_store()
    e("s_endpgm")

    g.label("L_op")
    e(f"""
    s_setprio 3
    v_mov_b32 v5, 0
    v_mov_b32 v21, 1
    v_mov_b32 v17, {NON}
    v_lshlrev_b32 v24, 4, v1
    v_mov_b32 v27, 0
    s_mov_b32 s46, {QWS}
    s_mov_b32 s47, {QWS}
    s_waitcnt lgkmcnt(0)
    """)
    srd(36, 78, 0x10000000); srd(24, 72, 0x400000)
    stamp(0)
    e("s_cmp_lg_u32 s44, 8\ns_cbranch_scc1 L_w10")
    e(f"""
    v_lshlrev_b32 v7, 2, v2
    v_add_u32 v7, {SYN}, v7
    ds_write_b32 v7, v5
    s_lshl_b32 s50, s45, 15
    s_lshl_b32 s51, s43, 12
    s_add_u32 s50, s50, s51
    s_add_u32 s50, s50, {MSG1 + FAST}
    s_add_u32 s51, s50, 16384
    """)
    if not overlay:
        e(f"s_lshl_b32 s52, s45, 14\ns_lshl_b32 s53, s43, 12\ns_add_u32 s52, s52, s53\ns_add_u32 s52, s52, {QWS + FAST}")
        for i in range(4): e(f"buffer_load_dwordx4 v[32:35], v24, s[36:39], s52 offen offset:{i * 1024} sc1")
    if ptw == 64:
        e("v_lshlrev_b32 v25, 6, v1\nbuffer_load_dword v32, v25, s[36:39], s50 offen sc1\ns_waitcnt lgkmcnt(0)\ns_barrier\nbuffer_load_dword v32, v25, s[36:39], s51 offen sc1")
    elif ptw == 128:
        e("v_and_b32 v25, 31, v1\nv_lshlrev_b32 v25, 7, v25\nv_lshrrev_b32 v26, 5, v1\nv_lshl_add_u32 v25, v26, 14, v25\nbuffer_load_dword v32, v25, s[36:39], s50 offen sc1\ns_waitcnt lgkmcnt(0)\ns_barrier")
    else:
        for i in range(4): e(f"buffer_load_dwordx4 v[32:35], v24, s[36:39], s50 offen offset:{i * 1024} sc1")
        e("s_waitcnt lgkmcnt(0)\ns_barrier")
        for i in range(4): e(f"buffer_load_dwordx4 v[32:35], v24, s[36:39], s51 offen offset:{i * 1024} sc1")
    e(f"""
    v_add_u32 v26, 12288, v24
    v_add_u32 v25, 0x10000, v26
    v_lshrrev_b32 v27, 2, v2
    v_lshlrev_b32 v27, 17, v27
    v_and_b32 v28, 3, v2
    v_lshl_add_u32 v27, v28, 9, v27
    v_lshl_add_u32 v27, v3, 4, v27
    s_lshl_b32 s52, s40, 14
    s_lshr_b32 s53, s43, 1
    s_lshl_b32 s53, s53, 13
    s_add_u32 s52, s52, s53
    s_lshr_b32 s53, s42, 1
    s_lshl_b32 s53, s53, 11
    s_add_u32 s52, s52, s53
    s_and_b32 s53, s42, 1
    s_lshl_b32 s53, s53, 8
    s_add_u32 s52, s52, s53
    s_and_b32 s53, s43, 1
    s_lshl_b32 s53, s53, 7
    s_add_u32 s52, s52, s53
    s_lshl_b32 s53, s40, 14
    s_add_u32 s54, s52, s53
    s_add_u32 s54, s54, {MSG1 + FAST if overlay else 0}
    s_add_u32 s55, s54, 0x100000
    v_lshrrev_b32 v29, 2, v2
    v_lshl_add_u32 v29, v29, 17, v27
    s_add_u32 s52, s52, {QWS}
    s_add_u32 s53, s52, 0x80000
    OVL
    s_mov_b32 s96, {(~QMASK) & 0xffffffff}
    v_mov_b32 v32, 0
    v_mov_b32 v33, 0
    v_mov_b32 v34, 0
    v_mov_b32 v35, 0
    s_lshl_b32 s50, s45, 10
    s_lshl_b32 s51, s43, 8
    s_add_u32 s50, s50, s51
    s_add_u32 s50, s50, {STATS + FAST}
    v_lshlrev_b32 v28, 4, v2
    """.replace("OVL", "s_nop 0" if overlay else "s_add_u32 s54, s52, s3\ns_add_u32 s55, s53, s3\nv_mov_b32 v29, v27"))
    e(f"""
    s_lshl_b32 s50, s45, 10
    s_add_u32 s50, s50, {STATS + FAST}
    buffer_load_dwordx4 v[32:35], v24, s[36:39], s50 offen sc1
    s_lshl_b32 s50, s45, 7
    s_add_u32 s50, s50, {TOK + FAST}
    buffer_load_dword v32, v5, s[36:39], s50 offen sc1
    """)
    if prest:
        for ct in range(2):
            for rt in range(2):
                e(f"buffer_store_dwordx4 v[32:35], v27, s[36:39], s{54 + rt} offen offset:{64*ct}")
        e("buffer_store_dwordx4 v[32:35], v28, s[36:39], s50 offen")
    spin(C_PART, 8, 6, 7)
    e("s_waitcnt vmcnt(0)")
    stamp(2)
    RT = 32
    for i in range(4):
        for w in range(8):
            r = RT + 32 * i + 4 * w
            e(f"ds_read_b128 v[{r}:{r+3}], v{26 if w < 4 else 25} offset:{(w % 4)*16384+i*1024}")
        e("s_waitcnt lgkmcnt(0)")
    e(f"ds_write_b32 v6, v21 offset:{F_PD}")
    for i in range(4):
        for st in (4, 2, 1):
            for w in range(st):
                a = RT + 32 * i + 4 * w; b = a + 4 * st
                e(f"v_pk_add_f32 v[{a}:{a+1}], v[{a}:{a+1}], v[{b}:{b+1}]\nv_pk_add_f32 v[{a+2}:{a+3}], v[{a+2}:{a+3}], v[{b+2}:{b+3}]")
        for r in range(4):
            a = RT + 32 * i + r
            e(f"v_add_u32 v{a}, {1 << (QTB-1)}, v{a}\nv_and_b32 v{a}, s96, v{a}")
    spin(F_N, 1, 6, 7)
    e(f"""
    ds_read_b64 v[10:11], v17
    s_waitcnt lgkmcnt(0)
    v_readfirstlane_b32 s98, v10
    v_readfirstlane_b32 s99, v11
    s_nop 3
    """)
    qtags(98)
    stamp(1)
    e("s_getreg_b32 s51, hwreg(HW_REG_XCC_ID)\ns_and_b32 s51, s51, 15\ns_add_u32 s51, s51, 1\ns_xor_b32 s51, s51, s57")
    for i in range(4):
        for r in range(4):
            a = RT + 32 * i + r
            e(f"v_or_b32 v{8+4*i+r}, s{56+r}, v{a}")
            e(f"v_or_b32 v{a}, s{51 if r == 1 else 56+r}, v{a}")
    for ct in range(2):
        for rt in range(2):
            a = RT + 32 * (2 * ct + rt)
            e(f"buffer_store_dwordx4 v[{a}:{a+3}], v29, s[36:39], s{54 + rt} offen offset:{64*ct}")
    e("s_mov_b32 s46, s52\ns_mov_b32 s47, s53\ns_nop 1")
    stamp(3)
    e("s_branch L_wo")
    if early_lead:
        g.label("L_w10")
        srd(32, 76, 256)
        e("buffer_load_dwordx2 v[32:33], v5, s[32:35], 0 offen sc1\ns_barrier")
        for i in range(1, npipe):
            e(f"s_sleep {psleep}\nbuffer_load_dwordx2 v[{32+2*i}:{33+2*i}], v5, s[32:35], 0 offen sc1")
        e("s_mov_b32 s61, 0")
        g.label("L_auxn")
        for i in range(npipe):
            e(f"""
            s_waitcnt vmcnt({npipe-1})
            v_readfirstlane_b32 s98, v{32+2*i}
            v_readfirstlane_b32 s99, v{33+2*i}
            s_nop 3
            s_cmp_lt_i32 s99, 0
            s_cbranch_scc1 L_n1
            buffer_load_dwordx2 v[{32+2*i}:{33+2*i}], v5, s[32:35], 0 offen sc1
            """)
        e(f"""
        s_add_u32 s61, s61, 1
        s_cmp_lt_u32 s61, {spin_limit // 2}
        s_cbranch_scc1 L_auxn
        """)
    else:
        g.label("L_w10")
        srd(32, 76, 256)
        e(f"""
        s_lshl_b64 s[98:99], s[98:99], 1
        s_or_b32 s98, s98, 1
        s_or_b32 s99, s99, 0x80000000
        s_cmp_lg_u32 s2, 0
        s_cbranch_scc1 L_n0
        LEAD
        """.replace("LEAD", """v_mov_b32 v28, s98
        v_mov_b32 v29, s99
        v_mov_b32 v30, 0
        v_mov_b32 v31, 0
        s_mov_b64 exec, 1
        buffer_atomic_cmpswap_x2 v[28:31], v5, s[32:35], 0 offen sc0 sc1
        s_mov_b64 exec, -1
        s_barrier
        s_waitcnt vmcnt(0)
        v_readfirstlane_b32 s50, v28
        v_readfirstlane_b32 s51, v29
        s_nop 3
        s_cmp_lt_i32 s51, 0
        s_cselect_b32 s98, s50, s98
        s_cselect_b32 s99, s51, s99
        s_branch L_n1""" if cas else """v_mov_b32 v22, s98
        v_mov_b32 v23, s99
        s_mov_b64 exec, 1
        buffer_store_dwordx2 v[22:23], v5, s[32:35], 0 offen sc0 sc1
        s_mov_b64 exec, -1
        s_barrier
        s_branch L_n1"""))
        g.label("L_n0")
        if snonce:
            e("s_barrier\ns_mov_b32 s61, 0")
            g.label("L_auxn")
            e(f"""
            s_sleep {snonce}
            s_load_dwordx2 s[98:99], s[76:77], 0 glc
            s_waitcnt lgkmcnt(0)
            s_cmp_lt_i32 s99, 0
            s_cbranch_scc1 L_n1
            s_add_u32 s61, s61, 1
            s_cmp_lt_u32 s61, {spin_limit}
            s_cbranch_scc1 L_auxn
            """)
        else:
            if nwait:
                e("s_barrier")
                spin(C_PART, nwait, 6, 7)
                e("buffer_load_dwordx2 v[22:23], v5, s[32:35], 0 offen sc1\ns_mov_b32 s61, 0")
            else:
                e("buffer_load_dwordx2 v[22:23], v5, s[32:35], 0 offen sc1\ns_barrier\ns_mov_b32 s61, 0")
            g.label("L_auxn")
            e(f"""
            s_waitcnt vmcnt(0)
            v_readfirstlane_b32 s98, v22
            v_readfirstlane_b32 s99, v23
            s_nop 3
            s_cmp_lt_i32 s99, 0
            s_cbranch_scc1 L_n1
            buffer_load_dwordx2 v[22:23], v5, s[32:35], 0 offen sc1
            s_add_u32 s61, s61, 1
            s_cmp_lt_u32 s61, {spin_limit}
            s_cbranch_scc1 L_auxn
            """)
    g.label("L_n1")
    stamp(1)
    e(f"""
    v_mov_b32 v22, s98
    v_mov_b32 v23, s99
    ds_write_b64 v17, v[22:23]
    s_waitcnt lgkmcnt(0)
    ds_write_b32 v6, v21 offset:{F_N}
    s_lshl_b32 s50, s45, 14
    s_add_u32 s50, s50, {QWS}
    s_lshl_b32 s51, s45, {15 if overlay else 14}
    s_add_u32 s51, s51, {MSG1 + FAST if overlay else QWS + FAST}
    v_lshlrev_b32 v16, 3, v1
    v_add_u32 v16, {QL}, v16
    v_lshrrev_b32 v18, 5, v1
    v_lshlrev_b32 v18, 13, v18
    v_bfe_u32 v19, v1, 3, 2
    v_lshl_add_u32 v18, v19, 11, v18
    v_and_b32 v19, 7, v1
    v_lshl_add_u32 v18, v19, 6, v18
    """)
    qtags(98)
    e("s_getreg_b32 s53, hwreg(HW_REG_XCC_ID)\ns_and_b32 s53, s53, 15\ns_add_u32 s53, s53, 1\ns_xor_b32 s53, s53, s57\ns_mov_b32 s52, s57")
    spin(F_PD, 1, 6, 7)
    if qat: spin(PROG, qat, 6, 28, sleep=2, two=True)
    e("s_mov_b32 s61, 0")
    stamp(3)
    g.label("L_aux4")
    e(f"s_and_b32 s54, s61, {qsm}\ns_cmp_eq_u32 s54, {qsm}\ns_cselect_b32 s54, s50, s51\ns_cselect_b32 s57, s52, s53\ns_cselect_b32 s49, 1, {1 if forceslow else 2}")
    if probe:
        e(f"""
        buffer_load_dwordx4 v[{RT}:{RT+3}], v18, s[36:39], s54 offen sc1
        s_waitcnt vmcnt(0)
        v_xor_b32 v{RT}, s56, v{RT}
        v_xor_b32 v{RT+1}, s57, v{RT+1}
        v_xor_b32 v{RT+2}, s58, v{RT+2}
        v_xor_b32 v{RT+3}, s59, v{RT+3}
        v_or3_b32 v7, v{RT}, v{RT+1}, v{RT+2}
        v_or_b32 v7, v7, v{RT+3}
        """)
        check(7, "L_aux4b", "L_aux4", spin_limit, mask=QMASK)
        g.label("L_aux4b")
    for i in range(16):
        if i % 4 == 0: e(f"s_add_u32 s55, s54, {1024*i}")
        e(f"buffer_load_dwordx4 v[{RT+4*i}:{RT+4*i+3}], v24, s[36:39], s55 offen offset:{(i % 4) * 1024} sc1")
    e("s_waitcnt vmcnt(0)")
    for i in range(64):
        e(f"v_xor_b32 v{RT+i}, s{56 + i % 4}, v{RT+i}")
    e(f"v_or3_b32 v7, v{RT}, v{RT+1}, v{RT+2}")
    for i in range(3, 63, 2):
        e(f"v_or3_b32 v7, v7, v{RT+i}, v{RT+i+1}")
    e(f"v_or_b32 v7, v7, v{RT+63}")
    check(7, "L_aux5", "L_aux4", spin_limit, mask=QMASK)
    g.label("L_aux5")
    for i in range(8):
        a = RT + 4 * i; b = a + 32
        e(f"""
        v_pk_add_f32 v[{a}:{a+1}], v[{a}:{a+1}], v[{b}:{b+1}]
        v_pk_add_f32 v[{a+2}:{a+3}], v[{a+2}:{a+3}], v[{b+2}:{b+3}]
        v_cvt_pk_bf16_f32 v{a}, v{a}, v{a+1}
        v_cvt_pk_bf16_f32 v{a+1}, v{a+2}, v{a+3}
        ds_write_b64 v16, v[{a}:{a+1}] offset:{512*i}
        """)
    e(f"v_mov_b32 v21, s49\ns_waitcnt lgkmcnt(0)\nds_write_b32 v6, v21 offset:{F_Q}\ns_waitcnt lgkmcnt(0)")
    e(f"""
    s_lshl_b32 s46, s45, 7
    s_add_u32 s46, s46, {TOK}
    s_lshl_b32 s50, s43, 4
    s_add_u32 s50, s50, s46
    s_add_u32 s51, s50, s3
    s_mov_b64 exec, 1
    buffer_store_dwordx2 v[22:23], v5, s[36:39], s51 offen
    s_cmp_eq_u32 s49, 2
    s_cbranch_scc1 L_tk1
    buffer_store_dwordx2 v[22:23], v5, s[36:39], s50 offen sc1
    """)
    g.label("L_tk1")
    e("s_mov_b64 exec, -1")
    stamp(4)
    g.label("L_wo")
    e("s_setprio 1")
    for i in range(32):
        if i >= THW: g.wait(f"wa{i-THW}")
        wo_issue(i, "wa")
    stamp(5)
    FR = WB; A = FR
    e(f"""
    s_cmp_lg_u32 s44, 8
    s_cbranch_scc1 L_tr
    s_setprio 3
    s_mov_b32 s61, 0
    """)
    g.label("L_dq")
    e(f"""
    ds_read_b64 v[28:29], v6 offset:{PROG}
    ds_read_b32 v30, v6 offset:{F_Q}
    s_waitcnt lgkmcnt(0)
    v_min_u32 v28, v28, v29
    v_readfirstlane_b32 s60, v30
    v_readfirstlane_b32 s50, v28
    s_nop 3
    s_cmp_eq_u32 s60, 2
    s_cbranch_scc1 L_dq2
    s_cmp_eq_u32 s60, 1
    s_cbranch_scc1 L_dq1
    s_cmp_ge_u32 s50, 8
    s_cbranch_scc1 L_dq1
    s_sleep 2
    s_add_u32 s61, s61, 1
    s_cmp_lt_u32 s61, {spin_limit * 20}
    s_cbranch_scc1 L_dq
    """)
    g.label("L_dq1")
    for ct in range(2):
        for rt in range(2):
            a2 = 8 + 4 * (2 * ct + rt)
            e(f"buffer_store_dwordx4 v[{a2}:{a2+3}], v27, s[36:39], s{46 + rt} offen offset:{64*ct} sc1")
    e("s_waitcnt vmcnt(0)")
    g.label("L_dq2")
    spin(F_Q, 1, 6, 7)
    e(f"""
    s_lshl_b32 s46, s45, 7
    s_add_u32 s46, s46, {TOK}
    v_lshlrev_b32 v28, 4, v3
    v_mov_b32 v29, 1
    s_mov_b32 s61, 0
    """)
    g.label("L_tk2")
    e(f"""
    s_and_b32 s55, s61, {ssm}
    s_cmp_eq_u32 s55, {ssm}
    s_cselect_b32 s55, 0, s3
    s_add_u32 s55, s55, s46
    buffer_load_dwordx2 v[30:31], v28, s[36:39], s55 offen sc1
    s_waitcnt vmcnt(0)
    v_xor_b32 v30, s98, v30
    v_xor_b32 v31, s99, v31
    v_or_b32 v30, v30, v31
    v_cmp_eq_u32 vcc, 0, v30
    s_nop 3
    s_cmp_eq_u64 vcc, -1
    s_cbranch_scc1 L_tk3
    s_add_u32 s61, s61, 1
    s_cmp_lt_u32 s61, {spin_limit}
    s_cbranch_scc1 L_tk2
    """)
    g.label("L_tk3")
    e(f"ds_write_b32 v6, v29 offset:{F_QC}\ns_waitcnt lgkmcnt(0)")
    e(f"""
    v_lshlrev_b32 v{FR+21}, 4, v2
    s_andn2_b32 s50, s45, 8
    s_lshl_b32 s50, s50, 10
    s_add_u32 s50, s50, {STATS}
    v_lshl_add_u32 v{FR+22}, v3, 8, v{FR+21}
    v_lshlrev_b32 v{FR+23}, 2, v1
    v_add_u32 v{FR+23}, {SCL}, v{FR+23}
    v_mov_b32 v{FR+24}, 1
    """)
    spin(C_L, 8, 6, 7)
    e("s_mov_b32 s61, 0")
    g.label("L_st6")
    e(f"""
    s_and_b32 s55, s61, {ssm}
    s_cmp_eq_u32 s55, {ssm}
    s_cselect_b32 s55, 0, s3
    s_add_u32 s55, s55, s50
    s_add_u32 s54, s55, 8192
    buffer_load_dwordx4 v[{A}:{A+3}], v{FR+22}, s[36:39], s55 offen sc1
    buffer_load_dwordx4 v[{A+8}:{A+11}], v{FR+22}, s[36:39], s54 offen sc1
    s_waitcnt vmcnt(0)
    v_xor_b32 v{A+2}, s98, v{A+2}
    v_xor_b32 v{A+3}, s99, v{A+3}
    v_xor_b32 v{A+10}, s98, v{A+10}
    v_xor_b32 v{A+11}, s99, v{A+11}
    v_or3_b32 v{A+2}, v{A+2}, v{A+3}, v{A+10}
    v_or_b32 v{A+2}, v{A+2}, v{A+11}
    v_cmp_eq_u32 vcc, 0, v{A+2}
    s_nop 3
    s_cmp_eq_u64 vcc, -1
    s_cbranch_scc1 L_st7
    s_add_u32 s61, s61, 1
    s_cmp_lt_u32 s61, {spin_limit}
    s_cbranch_scc1 L_st6
    """)
    g.label("L_st7")
    stamp(6)
    for be in range(2):
        B = A + 8 * be
        e(f"v_mov_b32 v{B+4}, v{B}")
        xreduce(B + 4, B + 5, "v_max_f32")
        e(f"""
        v_sub_f32 v{B}, v{B}, v{B+4}
        v_exp_f32 v{B+5}, v{B}
        s_nop 0
        v_mul_f32 v{B}, v{B+5}, v{B+1}
        """)
        xreduce(B, B + 1, "v_add_f32")
        e(f"""
        v_rcp_f32 v{B}, v{B}
        s_nop 0
        v_mul_f32 v{B+5}, v{B+5}, v{B}
        ds_write_b32 v{FR+23}, v{B+5} offset:{256*be}
        """)
    e(f"""
    s_waitcnt lgkmcnt(0)
    ds_write_b32 v6, v{FR+24} offset:{F_SCL}
    s_waitcnt lgkmcnt(0)
    """)
    g.label("L_tr")
    e("s_setprio 0\ns_waitcnt vmcnt(0)")
    g.label("L_tr2")
    e("s_mov_b32 s52, 0x05040100\ns_mov_b32 s53, 0x07060302")
    for j in range(4):
        src = WR + 16 * (j + 1); dst = WR + 16 * j
        for jc in range(4):
            for p in range(4):
                a = src + 2 * (2 * p) + (jc >> 1); b = src + 2 * (2 * p + 1) + (jc >> 1)
                e(f"v_perm_b32 v{dst+4*jc+p}, v{b}, v{a}, s{52 + (jc & 1)}")
    X = 120
    spin(F_N, 1, 6, X)
    e(f"""
    v_mov_b32 v{X+2}, {NON}
    ds_read_b64 v[{X}:{X+1}], v{X+2}
    v_and_b32 v4, 7, v2
    v_lshlrev_b32 v4, 8, v4
    v_lshl_add_u32 v4, v3, 4, v4
    v_add_u32 v4, {OB}, v4
    v_lshrrev_b32 v{X+3}, 2, v2
    v_lshlrev_b32 v{X+3}, 13, v{X+3}
    v_and_b32 v0, 3, v2
    v_lshl_add_u32 v{X+3}, v0, 5, v{X+3}
    v_lshrrev_b32 v0, 1, v3
    v_lshl_add_u32 v{X+3}, v0, 4, v{X+3}
    v_and_b32 v0, 1, v3
    v_lshl_add_u32 v{X+3}, v0, 18, v{X+3}
    s_andn2_b32 s50, s42, 1
    s_lshl_b32 s50, s50, 18
    s_and_b32 s51, s42, 1
    s_lshl_b32 s51, s51, 17
    s_add_u32 s50, s50, s51
    s_lshl_b32 s51, s48, 15
    s_add_u32 s50, s50, s51
    s_add_u32 s50, s50, s63
    s_add_u32 s96, s50, {MSG2}
    v_cmp_le_u32 s[6:7], 2, v3
    s_mov_b32 s98, {(~TMASK) & 0xffffffff}
    v_lshrrev_b32 v0, 5, v1
    v_and_b32 v{X+5}, 31, v1
    v_lshlrev_b32 v{X+4}, 12, v0
    v_lshl_add_u32 v{X+4}, v{X+5}, 4, v{X+4}
    s_andn2_b32 s50, s45, 8
    s_lshl_b32 s50, s50, 15
    s_lshl_b32 s51, s43, 13
    s_add_u32 s50, s50, s51
    s_lshl_b32 s51, s48, 9
    s_add_u32 s50, s50, s51
    s_add_u32 s54, s50, {MSG1}
    v_lshlrev_b32 v{X+5}, 1, v{X+5}
    v_lshl_add_u32 v{X+5}, v0, 9, v{X+5}
    s_lshl_b32 s50, s48, 6
    s_add_u32 s50, s50, {OB}
    v_add_u32 v{X+5}, s50, v{X+5}
    v_lshlrev_b32 v{X+6}, 7, v0
    s_lshl_b32 s50, s43, 4
    s_add_u32 s50, s50, {SCL}
    v_add_u32 v{X+6}, s50, v{X+6}
    s_waitcnt lgkmcnt(0)
    v_readfirstlane_b32 s50, v{X}
    v_readfirstlane_b32 s51, v{X+1}
    s_nop 3
    """)
    stags(50, 51)
    e("s_bitcmp0_b32 s44, 0\ns_cbranch_scc1 L_nodrain")
    for cnt, val in drain:
        e(f"s_waitcnt vmcnt({cnt})\nv_mov_b32 v5, {val}\nds_write_b32 v7, v5 offset:{PROG}")
    stamp(5)
    e("s_setprio 0")
    g.label("L_nodrain")
    SCV = 8
    spin(F_SCL, 1, 6, X, sleep=2)
    for be in range(2):
        for k in range(2):
            e(f"ds_read_b128 v[{SCV+8*be+4*k}:{SCV+8*be+4*k+3}], v{X+6} offset:{256*be + 64*k}")
    spin(PROG, 8, 6, X, sleep=2, two=True)
    e("s_mov_b32 s61, 0")
    stamp(7)
    R = 128
    g.label("L_m1l")
    e(f"""
    s_and_b32 s55, s61, {m1sm}
    s_cmp_eq_u32 s55, {m1sm}
    s_cselect_b32 s55, 0, s3
    s_add_u32 s55, s55, s54
    s_add_u32 s50, s55, 0x40000
    buffer_load_dwordx4 v[{R}:{R+3}], v{X+4}, s[36:39], s55 offen sc1
    buffer_load_dwordx4 v[{R+4}:{R+7}], v{X+4}, s[36:39], s55 offen offset:2048 sc1
    buffer_load_dwordx4 v[{R+8}:{R+11}], v{X+4}, s[36:39], s50 offen sc1
    buffer_load_dwordx4 v[{R+12}:{R+15}], v{X+4}, s[36:39], s50 offen offset:2048 sc1
    s_waitcnt vmcnt(0)
    """)
    for i in range(16):
        e(f"v_xor_b32 v{R+i}, s{56 + i % 4}, v{R+i}")
    e(f"v_or3_b32 v5, v{R}, v{R+1}, v{R+2}")
    for i in range(3, 15, 2):
        e(f"v_or3_b32 v5, v5, v{R+i}, v{R+i+1}")
    e(f"v_or_b32 v5, v5, v{R+15}")
    check(5, "L_m1g", "L_m1l", spin_limit)
    g.label("L_m1g")
    stamp(10)
    for be in range(2):
        a = R + 8 * be; sc = SCV + 8 * be
        e(f"""
        v_pk_mul_f32 v[{a}:{a+1}], v[{a}:{a+1}], v[{sc}:{sc+1}]
        v_pk_mul_f32 v[{a+2}:{a+3}], v[{a+2}:{a+3}], v[{sc+2}:{sc+3}]
        v_pk_fma_f32 v[{a}:{a+1}], v[{a+4}:{a+5}], v[{sc+4}:{sc+5}], v[{a}:{a+1}]
        v_pk_fma_f32 v[{a+2}:{a+3}], v[{a+6}:{a+7}], v[{sc+6}:{sc+7}], v[{a+2}:{a+3}]
        """)
    for be in range(2):
        a = R + 8 * be
        for i in range(4): e(f"v_mov_b32 v{a+4+i}, v{a+i}")
    for be in range(2):
        a = R + 8 * be
        for i in range(4): e(f"v_permlane32_swap_b32 v{a+i}, v{a+4+i}")
    e("s_nop 0")
    for be in range(2):
        a = R + 8 * be
        e(f"""
        v_pk_add_f32 v[{a}:{a+1}], v[{a}:{a+1}], v[{a+4}:{a+5}]
        v_pk_add_f32 v[{a+2}:{a+3}], v[{a+2}:{a+3}], v[{a+6}:{a+7}]
        v_cvt_pk_bf16_f32 v{a+4}, v{a}, v{a+1}
        v_cvt_pk_bf16_f32 v{a+5}, v{a+2}, v{a+3}
        s_nop 0
        v_cndmask_b32 v{a+4}, v{a+4}, v{a+5}, s[6:7]
        ds_write_b16 v{X+5}, v{a+4} offset:{1024*be}
        ds_write_b16_d16_hi v{X+5}, v{a+4} offset:{1024*be+256}
        """)
    e("s_waitcnt lgkmcnt(0)\ns_barrier")
    stamp(8)
    AF = 144; OA = 104
    for j in range(4):
        e(f"ds_read_b128 v[{AF+4*j}:{AF+4*j+3}], v4 offset:{64*j}")
    for j in range(4):
        e(f"s_waitcnt lgkmcnt({3-j})")
        for q in range(4):
            c = "0" if j == 0 else f"v[{OA+4*q}:{OA+4*q+3}]"
            b = WR + 16 * j + 4 * q
            e(f"v_mfma_f32_16x16x32_bf16 v[{OA+4*q}:{OA+4*q+3}], v[{AF+4*j}:{AF+4*j+3}], v[{b}:{b+3}], {c}")
    g.nop(8)
    for h in range(2):
        t0 = 8 + 4 * h
        for r in range(4):
            e(f"v_cndmask_b32 v{t0+r}, v{OA+8*h+r}, v{OA+8*h+4+r}, s[6:7]")
        for r in range(4):
            e(f"v_and_b32 v{t0+r}, s98, v{t0+r}\nv_or_b32 v{t0+r}, s{56+r}, v{t0+r}")
        e(f"buffer_store_dwordx4 v[{t0}:{t0+3}], v{X+3}, s[36:39], s96 offen offset:{128*h} sc1")
    stamp(9)
    if ackwait: e("s_waitcnt vmcnt(0)")
    if wb:
        e(f"s_and_b32 s50, s41, {wb - 1}\ns_lshl_b32 s50, s50, 4\ns_add_u32 s50, s50, s44\ns_cmp_lg_u32 s50, 10\ns_cbranch_scc1 L_nowb\nbuffer_wbl2 sc1")
        g.label("L_nowb")
    e(f"v_mov_b32 v6, {SYN}\nv_mov_b32 v7, 1\ns_mov_b64 exec, 1\nds_add_u32 v6, v7 offset:{C_M2}\ns_mov_b64 exec, -1")
    stamp_store()

    hdr = f"""; Fused GQA decode block (q-proj -> split-KV attention -> out-proj) in ONE launch, 256 workgroups x 12 waves.
; @launch grid=(256,1,1) block=({64*NW},1,1) lds={LDS_TOTAL}
.amdgcn_target "amdgcn-amd-amdhsa--gfx950"
.text
.globl {KNAME}
.p2align 8
.type {KNAME},@function
{KNAME}:
"""
    ftr = f"""L_done:
    s_endpgm
.section .rodata,"a"
.p2align 6
.amdhsa_kernel {KNAME}
  .amdhsa_next_free_vgpr 168
  .amdhsa_next_free_sgpr 102
  .amdhsa_accum_offset 168
  .amdhsa_group_segment_fixed_size 0
  .amdhsa_kernarg_size 64
  .amdhsa_user_sgpr_count 2
  .amdhsa_user_sgpr_kernarg_segment_ptr 1
  .amdhsa_system_sgpr_workgroup_id_x 1
  .amdhsa_float_denorm_mode_32 3
.end_amdhsa_kernel
"""
    body = "\n".join(l for l in g.text().split("\n") if l.strip()) + "\n"
    return hdr + body + ftr

if __name__ == "__main__":
    open("g42.s", "w").write(gen())
    open("g42_st.s", "w").write(gen(stamps=True))
    open("g42_p64.s", "w").write(gen(ptw=64))
    open("g42_p128.s", "w").write(gen(ptw=128))
    open("g42_q3.s", "w").write(gen(qat=3))
    open("g42_ws2.s", "w").write(gen(wo_start=2))
    open("g42_ws3.s", "w").write(gen(wo_start=3))
```
